```python
import torch

def _softmax(x, axis=-1):
    return torch.softmax(x, dim=axis)
def _gelu(x):
    return torch.nn.functional.gelu(x, approximate="tanh")
def _silu(x):
    return torch.nn.functional.silu(x)
def _sigmoid(x):
    return torch.sigmoid(x)
def _layernorm(x, axis=-1, eps=1e-5):
    m = x.mean(dim=axis, keepdim=True)
    v = x.var(dim=axis, keepdim=True, unbiased=False)
    return (x - m) / torch.sqrt(v + eps)
def _scatter_add(tgt, idx, src, axis=0):
    return tgt.clone().index_add_(axis, idx, src)
def _segment_sum(src, seg, n):
    out = torch.zeros((n,) + src.shape[1:], dtype=src.dtype)
    return out.index_add_(0, seg, src)
def _pad(x, pw):
    flat = tuple(v for pair in reversed(pw) for v in pair)
    return torch.nn.functional.pad(x, flat)

kernel_name = 'interleave_layers__ssm_conv_h3__swiglu_ffn__prompt'

def setup_inputs():

    _w = (lambda a: (lambda t: t.to(torch.bfloat16) if t.is_floating_point() else t)(torch.as_tensor(a)))
    def _A_setup():
        B, S, D = 1, 2048, 640
        ks = 4
        return {
            "q": _w((lambda *s: torch.randn(*s, dtype=torch.bfloat16) * 0.05)(B, S, D)),
            "k": _w((lambda *s: torch.randn(*s, dtype=torch.bfloat16) * 1.6)(B, S, D)),
            "v": _w((lambda *s: torch.randn(*s, dtype=torch.bfloat16) * 1.6)(B, S, D)),
            "shift_k": _w((lambda *s: torch.randn(*s, dtype=torch.bfloat16) * 1.6)(D, ks) * 0.5),
            "ssm_k": _w((lambda *s: torch.randn(*s, dtype=torch.bfloat16) * 1.6)(D, S) * (1.0 / S ** 0.5)),
            "ssm_D": _w((lambda *s: torch.randn(*s, dtype=torch.bfloat16) * 1.6)(D)),
        }
    _A_in = _A_setup()

    def _B_setup():
        B, S, D, F = 1, 2048, 640, 1728
        return {
            "x": _w((lambda *s: torch.randn(*s, dtype=torch.bfloat16) * 0.05)(B, S, D)),
            "w_gate": _w((lambda *s: torch.randn(*s, dtype=torch.bfloat16) * 0.2)(D, F)),
            "w_up": _w((lambda *s: torch.randn(*s, dtype=torch.bfloat16) * 0.2)(D, F)),
            "w_down": _w((lambda *s: torch.randn(*s, dtype=torch.bfloat16) * 0.2)(F, D)),
        }
    _B_in = _B_setup()

    return {
        "A_q": _A_in["q"],
        "A_k": _A_in["k"],
        "A_v": _A_in["v"],
        "A_shift_k": _A_in["shift_k"],
        "A_ssm_k": _A_in["ssm_k"],
        "A_ssm_D": _A_in["ssm_D"],
        "B_x": _B_in["x"],
        "B_w_gate": _B_in["w_gate"],
        "B_w_up": _B_in["w_up"],
        "B_w_down": _B_in["w_down"],
    }

def reference(A_q, A_k, A_v, A_shift_k, A_ssm_k, A_ssm_D, B_x, B_w_gate, B_w_up, B_w_down):
    def _A_ref(q, k, v, shift_k, ssm_k, ssm_D):
        B, S, D = q.shape
        ks = shift_k.shape[-1]
        k_pad = _pad(k, ((0, 0), (ks - 1, 0), (0, 0)))
        k_shift = torch.zeros_like(k)
        for t in range(ks):
            k_shift = k_shift + k_pad[:, t:t + S, :] * shift_k[:, ks - 1 - t][None, None, :]
        kv = k_shift * v
        L = 2 * S
        kv_pad = _pad(kv, ((0, 0), (0, S), (0, 0)))
        kf_pad = _pad(ssm_k, ((0, 0), (0, S)))
        kv_f = (lambda x, axes=(-2,-1): torch.fft.rfft2(x.float(), dim=axes))(kv_pad[:, None, :, :], axes=(1, 2))
        kf_f = (lambda x, axes=(-2,-1): torch.fft.rfft2(x.float(), dim=axes))(kf_pad[:, None, :], axes=(1, 2))
        kf_f = (lambda x, *d: x.permute(*d))(kf_f, 1, 2, 0)
        y_f = kv_f * kf_f[None, :, :, :]
        y = (lambda x, s, axes=(-2,-1): torch.fft.irfft2(x, s=s, dim=axes).to(torch.bfloat16))(y_f, (1, L), axes=(1, 2))[:, 0, :S, :]
        y = y + kv * ssm_D[None, None, :]
        return q * y

    def _B_ref(x, w_gate, w_up, w_down):
        g = _silu(x @ w_gate)
        u = x @ w_up
        return (g * u) @ w_down

    x = A_q
    x = x + _A_ref(_layernorm(x, axis=-1), A_k, A_v, A_shift_k, A_ssm_k, A_ssm_D)
    x = x + _B_ref(_layernorm(x, axis=-1), B_w_gate, B_w_up, B_w_down)
    x = x + _A_ref(_layernorm(x, axis=-1), A_k, A_v, A_shift_k, A_ssm_k, A_ssm_D)
    x = x + _B_ref(_layernorm(x, axis=-1), B_w_gate, B_w_up, B_w_down)
    return x
```

```python
import re

REG_RE = re.compile(r'\b([vas])\[(\d+):(\d+)\]|\b([vas])(\d+)\b')
MOD_RE = re.compile(r'\s(op_sel|op_sel_hi|neg_lo|neg_hi|quad_perm|row_shr|row_shl|row_ror|row_mirror|row_half_mirror|row_bcast|wave_shr|wave_shl|wave_ror|wave_rol|dst_sel|src0_sel|src1_sel|offen|idxen|offset|offset0|offset1|sc0|sc1|nt|lds|clamp|bitop3|row_mask|bank_mask|bound_ctrl|mul|div)\b')

def regs_of(tok):
    out = set()
    for m in REG_RE.finditer(tok):
        if m.group(1):
            for i in range(int(m.group(2)), int(m.group(3)) + 1):
                out.add((m.group(1), i))
        else:
            out.add((m.group(4), int(m.group(5))))
    if re.search(r'\bvcc\b', tok): out |= {('s', 106), ('s', 107)}
    if re.search(r'\bvcc_lo\b', tok): out.add(('s', 106))
    if re.search(r'\bvcc_hi\b', tok): out.add(('s', 107))
    if re.search(r'\bexec\b', tok): out |= {('s', 126), ('s', 127)}
    if re.search(r'\bm0\b', tok): out.add(('s', 124))
    return out

TRANS = ('v_exp_', 'v_log_', 'v_rcp_', 'v_rsq_', 'v_sqrt_', 'v_sin_', 'v_cos_')

class Ins:
    __slots__ = ('text', 'mn', 'cls', 'dst', 'src', 'dpp', 'trans', 'perm', 'passes', 'srcC', 'srcAB', 'wide_store', 'ldsdma',
                 'readlane', 'target', 'states', 'opselw', 'lanesel')
    def __init__(self, text):
        self.text = text
        t = text.split(';')[0].strip()
        parts = t.split(None, 1)
        mn = parts[0]; rest = parts[1] if len(parts) > 1 else ''
        self.mn = mn
        m = MOD_RE.search(' ' + rest)
        mods = ''
        if m:
            mods = (' ' + rest)[m.start():]
            rest = (' ' + rest)[:m.start()]
        ops = [o.strip() for o in rest.split(',')] if rest.strip() else []
        self.dst = set(); self.src = set()
        self.dpp = ('_dpp' in mn) or bool(re.search(r'quad_perm|row_|wave_', mods))
        self.trans = mn.startswith(TRANS)
        self.perm = mn.startswith('v_permlane')
        self.passes = 0; self.srcC = set(); self.srcAB = set()
        self.wide_store = False; self.ldsdma = False; self.readlane = False; self.target = None
        self.states = 1; self.opselw = False; self.lanesel = set()
        if mn.startswith('v_mfma'):
            self.cls = 'mfma'
            self.passes = 8 if '32x32' in mn else 4
            self.dst = regs_of(ops[0]); self.srcAB = regs_of(ops[1]) | regs_of(ops[2]); self.srcC = regs_of(ops[3])
            self.src = self.srcAB | self.srcC
        elif mn.startswith('v_'):
            self.cls = 'valu'
            if mn.startswith('v_cmp'):
                if mn.endswith('_e32') or True:
                    self.dst = regs_of(ops[0]);
                    for o in ops[1:]: self.src |= regs_of(o)
            elif self.perm and 'swap' in mn:
                self.dst = regs_of(ops[0]) | regs_of(ops[1]); self.src = set(self.dst)
            elif mn.startswith(('v_add_co', 'v_sub_co', 'v_subrev_co', 'v_addc_co', 'v_subb_co')):
                self.dst = regs_of(ops[0]) | regs_of(ops[1])
                for o in ops[2:]: self.src |= regs_of(o)
            else:
                self.dst = regs_of(ops[0])
                for o in ops[1:]: self.src |= regs_of(o)
                if mn.startswith(('v_fmac', 'v_mac', 'v_dot2c', 'v_pk_fmac', 'v_writelane')) or self.dpp:
                    self.src |= self.dst
                if mn.startswith('v_cndmask') and len(ops) == 3:
                    self.src |= {('s', 106), ('s', 107)}
                if mn.startswith(('v_readlane', 'v_readfirstlane')):
                    self.readlane = True
                if mn.startswith(('v_readlane', 'v_writelane')):
                    self.lanesel = regs_of(ops[2])
            if '_sdwa' in mn and 'dst_sel' in mods and 'dst_sel:DWORD' not in mods:
                self.opselw = True
        elif mn.startswith(('buffer_', 'global_')):
            self.cls = 'vmem'
            islds = bool(re.search(r'\blds\b', mods)) or 'load_lds' in mn
            if 'load' in mn and not islds:
                self.dst = regs_of(ops[0])
                for o in ops[1:]: self.src |= regs_of(o)
            elif 'atomic' in mn:
                for o in ops: self.src |= regs_of(o)
                if 'sc0' in mods: self.dst = regs_of(ops[0])
            else:
                for o in ops: self.src |= regs_of(o)
                if islds:
                    self.ldsdma = True; self.src.add(('s', 124))
                if 'store' in mn and ('x4' in mn or 'x3' in mn):
                    self.wide_store = True
                    self.srcC = regs_of(ops[0]) if mn.startswith('buffer_') else regs_of(ops[1])
        elif mn.startswith('ds_'):
            self.cls = 'ds'
            if mn.startswith(('ds_read', 'ds_bpermute', 'ds_permute', 'ds_swizzle')) or '_rtn' in mn:
                self.dst = regs_of(ops[0])
                for o in ops[1:]: self.src |= regs_of(o)
            else:
                for o in ops: self.src |= regs_of(o)
        elif mn.startswith('s_'):
            self.cls = 'salu'
            if mn == 's_nop':
                self.states = int(ops[0], 0) + 1
            elif mn.startswith(('s_cbranch', 's_branch')):
                self.target = ops[0]
            elif mn.startswith(('s_cmp', 's_waitcnt', 's_barrier', 's_endpgm', 's_sleep', 's_setprio', 's_bitcmp')):
                for o in ops: self.src |= regs_of(o)
            else:
                if ops:
                    self.dst = regs_of(ops[0])
                    for o in ops[1:]: self.src |= regs_of(o)
                if 'saveexec' in mn: self.dst |= {('s', 126), ('s', 127)}
        else:
            raise ValueError("unknown instruction: " + text)

def vg(rs):
    return {r for r in rs if r[0] in 'va'}
def sg(rs):
    return {r for r in rs if r[0] == 's'}

def need_states(p, c):
    n = 0
    if p.cls == 'valu':
        pw = vg(p.dst); ps = sg(p.dst)
        if pw:
            if c.cls == 'mfma' and pw & c.src: n = max(n, 2)
            if c.cls == 'valu':
                if c.dpp and pw & c.src: n = max(n, 2)
                if c.perm and pw & c.src: n = max(n, 2)
                if c.readlane and pw & c.src: n = max(n, 1)
                if p.trans and (pw & c.src or pw & c.dst): n = max(n, 1)
                if p.opselw and (pw & c.src or pw & c.dst): n = max(n, 1)
            if p.trans and c.cls in ('vmem', 'ds') and pw & c.src: n = max(n, 1)
        if ps:
            if c.cls == 'vmem' and ps & c.src: n = max(n, 5)
            if c.cls == 'valu' and ps & c.lanesel: n = max(n, 4)
            if c.cls == 'valu' and ps & c.src: n = max(n, 2)
            if c.cls == 'mfma' and ps & {('s',126),('s',127)}: n = max(n, 4)
    if p.cls == 'mfma':
        d = p.dst
        far = 8 if p.passes == 4 else 12
        if c.cls == 'mfma':
            if d & c.srcAB: n = max(n, far)
            if d & c.srcC:
                if not (c.srcC == d and c.passes == p.passes): n = max(n, far - 2)
            if d & c.dst and not (d & c.srcC) : n = max(n, far)
        elif c.cls == 'valu':
            if d & (c.src | c.dst): n = max(n, far)
            if p.srcC & c.dst: n = max(n, 3 if p.passes == 4 else 7)
        elif c.cls in ('vmem', 'ds'):
            if d & (c.src | c.dst): n = max(n, far)
    if p.cls == 'vmem' and p.wide_store:
        if p.srcC & c.dst:
            n = max(n, 2 if c.cls == 'valu' else 1)
    if p.cls == 'salu' and ('s', 124) in p.dst and c.cls == 'vmem' and c.ldsdma:
        n = max(n, 1)
    return n

class Asm:
    def __init__(self):
        self.items = []
        self.vm_issued = 0; self.vm_done = 0
        self.lg_issued = 0; self.lg_done = 0
    def __call__(self, text):
        last = None
        for line in text.strip().split('\n'):
            s = line.strip()
            if not s or s.startswith(';'): continue
            if s.endswith(':'):
                self.items.append(('l', s[:-1])); continue
            ins = Ins(s)
            self.items.append(('i', ins))
            if ins.cls == 'vmem' and not ins.mn.startswith(('buffer_wbl2', 'buffer_inv')):
                self.vm_issued += 1; last = self.vm_issued
            elif ins.cls == 'ds':
                self.lg_issued += 1; last = self.lg_issued
            elif ins.mn == 's_waitcnt':
                m = re.search(r'vmcnt\((\d+)\)', s)
                if m: self.vm_done = max(self.vm_done, self.vm_issued - int(m.group(1)))
                m = re.search(r'lgkmcnt\((\d+)\)', s)
                if m: self.lg_done = max(self.lg_done, self.lg_issued - int(m.group(1)))
        return last
    def label(self, name): self.items.append(('l', name))
    def raw(self, text): self.items.append(('r', text))
    def comment(self, text): self.items.append(('r', '; ' + text))
    def wait_vm(self, tok):
        if tok is None or tok <= self.vm_done: return
        n = min(self.vm_issued - tok, 63)
        self(f's_waitcnt vmcnt({n})')
    def wait_lg(self, tok):
        if tok is None or tok <= self.lg_done: return
        n = min(self.lg_issued - tok, 15)
        self(f's_waitcnt lgkmcnt({n})')
    def wait_both(self, vtok, ltok):
        p = []
        if vtok is not None and vtok > self.vm_done: p.append(f'vmcnt({min(self.vm_issued - vtok, 63)})')
        if ltok is not None and ltok > self.lg_done: p.append(f'lgkmcnt({min(self.lg_issued - ltok, 15)})')
        if p: self('s_waitcnt ' + ' '.join(p))
    def reset_counts(self):
        self.vm_done = self.vm_issued; self.lg_done = self.lg_issued
    def assume(self, vm_out=None, lg_out=None):
        if vm_out is not None: self.vm_done = self.vm_issued - vm_out
        if lg_out is not None: self.lg_done = self.lg_issued - lg_out

    def finalize(self):
        items = self.items
        changed = True
        nops_added = 0
        out = []
        labels = {}
        def rebuild():
            labels.clear()
            for i, it in enumerate(items):
                if it[0] == 'l': labels[it[1]] = i
        rebuild()
        branches = {}
        def rebuild_br():
            branches.clear()
            for i, it in enumerate(items):
                if it[0] == 'i' and it[1].target is not None:
                    branches.setdefault(it[1].target, []).append(i)
        rebuild_br()
        def required(i):
            c = items[i][1]
            best = 0
            stack = [(i - 1, 0)]
            seen = {}
            while stack:
                j, st = stack.pop()
                if j < 0 or st >= 20: continue
                if seen.get(j, 99) <= st: continue
                seen[j] = st
                it = items[j]
                if it[0] == 'l':
                    for b in branches.get(it[1], []):
                        stack.append((b, st))
                    stack.append((j - 1, st))
                    continue
                if it[0] == 'r':
                    stack.append((j - 1, st)); continue
                p = it[1]
                if j == i - 1 or True:
                    pass
                n = need_states(p, c)
                if n > st: best = max(best, n - st)
                stack.append((j - 1, st + p.states)) if not False else None
            return best
        i = 0
        while i < len(items):
            it = items[i]
            if it[0] == 'i' and it[1].cls != 'salu' or (it[0] == 'i' and False):
                r = required(i)
                if r > 0:
                    ins = []
                    while r > 0:
                        k = min(r, 16)
                        ins.append(('i', Ins(f's_nop {k-1}')))
                        r -= k
                    items[i:i] = ins
                    nops_added += len(ins)
                    i += len(ins)
                    rebuild(); rebuild_br()
            i += 1
        lines = []
        for it in items:
            if it[0] == 'i': lines.append('    ' + it[1].text)
            elif it[0] == 'l': lines.append(it[1] + ':')
            else: lines.append(it[1])
        self.nops_added = nops_added
        return '\n'.join(lines) + '\n'
```

```python
import sys
from asmlib import Asm

S, D, F = 2048, 640, 1728
UT   = 0x0000000
YG   = 0x0280000
X1   = 0x0500000
X2   = 0x0780000
X3   = 0x0A00000
XN1  = 0x0C80000
XN2  = 0x0F00000
W1P  = 0x1180000
WDP  = 0x15C0000
H1   = 0x17E0000
H2   = 0x1EA0000
FLG  = 0x2560000
WS_USED = 0x2600000
OOB = 0x80000000

KA = dict(q=0, k=8, v=16, shk=24, ssmk=32, ssmD=40, x=48, wg=56, wu=64, wd=72, out=80, dbg=88, ws=96)
SZ = dict(q=S*D*2, k=S*D*2, v=S*D*2, shk=D*8, ssmk=D*S*2, ssmD=D*2, wg=D*F*2, wu=D*F*2, wd=D*F*2, out=S*D*2, dbg=256, ws=WS_USED)

def srd_load(a, r, name):
    a(f's_load_dwordx2 s[{r}:{r+1}], s[0:1], {KA[name]}')
def srd_fin(a, r, nbytes):
    a(f's_mov_b32 s{r+2}, {nbytes}\ns_mov_b32 s{r+3}, 0x00020000')

SWS = 4

def prologue(a, srds):
    for r, n in srds: srd_load(a, r, n)
    for r, n in srds: srd_fin(a, r, SZ[n])
    a('s_waitcnt lgkmcnt(0)')

def stamp(a, slot, tmp=90):
    if not TIMING: return
    a(f's_memrealtime s[{tmp}:{tmp+1}]\ns_waitcnt lgkmcnt(0)')
    a(f'v_mov_b32 v250, s{tmp}\ns_lshl_b32 s{tmp+1}, s2, 6\ns_add_u32 s{tmp+1}, s{tmp+1}, {FLG+0x10000+slot*4}\nv_mov_b32 v251, 0')
    a(f'buffer_store_dword v250, v251, s[{SWS}:{SWS+3}], s{tmp+1} offen')
TIMING = False

def phase_T(a, swg='s2'):
    SK, SV, SSH = 8, 12, 16
    a(f's_mul_i32 s24, {swg}, 205\ns_lshr_b32 s24, s24, 10')
    a(f's_mul_i32 s25, s24, 5\ns_sub_u32 s25, {swg}, s25')
    a('v_and_b32 v1, 7, v0\nv_lshrrev_b32 v2, 3, v0')
    a('s_mul_i32 s26, s24, 81920\ns_lshl_b32 s27, s25, 8\ns_add_u32 s26, s26, s27')
    a('v_mul_u32_u24 v3, 10240, v1\nv_lshl_add_u32 v3, v2, 3, v3\nv_add_u32 v3, s26, v3')
    a('v_add_u32 v4, 5120, v3\nv_subrev_u32 v5, 3840, v3')
    a('s_lshl_b32 s27, s25, 10\nv_lshlrev_b32 v6, 5, v2\nv_add_u32 v6, s27, v6')
    KR, VR, WR = 10, 32, 48
    toks = []
    for r in range(3):
        a(f'buffer_load_dwordx2 v[{KR+2*r}:{KR+2*r+1}], v5, s[{SK}:{SK+3}], 0 offen offset:{1280*r}')
    for r in range(8):
        a(f'buffer_load_dwordx2 v[{KR+6+2*r}:{KR+7+2*r}], v{3+(r>>2)}, s[{SK}:{SK+3}], 0 offen offset:{1280*(r&3)}')
    a(f'buffer_load_dwordx4 v[{WR}:{WR+3}], v6, s[{SSH}:{SSH+3}], 0 offen')
    tw = a(f'buffer_load_dwordx4 v[{WR+4}:{WR+7}], v6, s[{SSH}:{SSH+3}], 0 offen offset:16')
    tv = []
    for r in range(8):
        tv.append(a(f'buffer_load_dwordx2 v[{VR+2*r}:{VR+2*r+1}], v{3+(r>>2)}, s[{SV}:{SV+3}], 0 offen offset:{1280*(r&3)}'))
    a('s_lshl_b32 s26, s25, 19\ns_lshl_b32 s27, s24, 7\ns_add_u32 s26, s26, s27')
    a('v_lshlrev_b32 v7, 14, v2\nv_lshl_add_u32 v7, v1, 4, v7\nv_add_u32 v7, s26, v7')
    for c in range(4): a(f's_mov_b32 s{28+c}, {UT + c*4096}')
    a('s_mov_b32 s32, 0xffff0000')
    KF, WF, U = 56, 100, 116
    a.wait_vm(tw)
    for r in range(11):
        for p in range(2):
            a(f'v_lshlrev_b32 v{KF+4*r+2*p}, 16, v{KR+2*r+p}\nv_and_b32 v{KF+4*r+2*p+1}, s32, v{KR+2*r+p}')
    for c in range(4):
        for h in range(2):
            a(f'v_lshlrev_b32 v{WF+4*(2*h)+c}, 16, v{WR+2*c+h}\nv_and_b32 v{WF+4*(2*h+1)+c}, s32, v{WR+2*c+h}')
    for t in range(8):
        for p in range(2):
            d = U+4*t+2*p
            for j in range(4):
                k = KF+4*(t+3-j)+2*p; w = WF+4*j+2*p
                if j == 0: a(f'v_pk_mul_f32 v[{d}:{d+1}], v[{k}:{k+1}], v[{w}:{w+1}]')
                else: a(f'v_pk_fma_f32 v[{d}:{d+1}], v[{k}:{k+1}], v[{w}:{w+1}], v[{d}:{d+1}]')
    for t in range(8):
        a.wait_vm(tv[t])
        for p in range(2):
            x = KF+4*t+2*p
            a(f'v_lshlrev_b32 v{x}, 16, v{VR+2*t+p}\nv_and_b32 v{x+1}, s32, v{VR+2*t+p}')
            d = U+4*t+2*p
            a(f'v_pk_mul_f32 v[{d}:{d+1}], v[{d}:{d+1}], v[{x}:{x+1}]')
    O = 12
    for c in range(4):
        for q in range(4):
            a(f'v_cvt_pk_bf16_f32 v{O+4*c+q}, v{U+4*(7-2*q)+c}, v{U+4*(6-2*q)+c}')
        a(f'buffer_store_dwordx4 v[{O+4*c}:{O+4*c+3}], v7, s[{SWS}:{SWS+3}], s{28+c} offen')

CS = 4160
WLDS = 4*CS + 4608
CONV_LDS = 4*WLDS
def phase_conv(a, swg='s2'):
    SH, SD = 8, 12
    a('v_lshrrev_b32 v1, 6, v0\nv_readfirstlane_b32 s24, v1')
    a(f's_lshl_b32 s25, {swg}, 2\ns_add_u32 s25, s25, s24')
    a('s_lshl_b32 s26, s25, 12')
    a(f's_add_u32 s{SH}, s{SH}, s26\ns_addc_u32 s{SH+1}, s{SH+1}, 0\ns_mov_b32 s{SH+2}, 4096')
    a('v_and_b32 v2, 63, v0')
    a(f's_mul_i32 s27, s24, {WLDS}')
    a('v_lshlrev_b32 v3, 4, v2\nv_subrev_u32 v4, 32, v3\nv_add_u32 v5, 16, v4')
    HR = 64
    a('v_add_u32 v6, 0x1000, v4\nv_add_u32 v7, 0x1000, v5')
    for i in range(4):
        if i == 0:
            a(f'buffer_load_dwordx4 v[{HR}:{HR+3}], v4, s[{SH}:{SH+3}], 0 offen')
            a(f'buffer_load_dwordx2 v[{HR+4}:{HR+5}], v5, s[{SH}:{SH+3}], 0 offen')
        else:
            a(f'buffer_load_dwordx4 v[{HR+6*i}:{HR+6*i+3}], v3, s[{SH}:{SH+3}], 0 offen offset:{1024*i-32}')
            a(f'buffer_load_dwordx2 v[{HR+6*i+4}:{HR+6*i+5}], v3, s[{SH}:{SH+3}], 0 offen offset:{1024*i-16}')
    a(f'buffer_load_dwordx4 v[{HR+24}:{HR+27}], v6, s[{SH}:{SH+3}], 0 offen')
    th = a(f'buffer_load_dwordx2 v[{HR+28}:{HR+29}], v7, s[{SH}:{SH+3}], 0 offen')
    a('s_lshl_b32 s28, s25, 1\nv_mov_b32 v8, s28')
    tD = a(f'buffer_load_ushort v9, v8, s[{SD}:{SD+3}], 0 offen')
    a(f's_add_u32 s29, s26, {UT}\ns_add_u32 s30, s27, {4*CS+512}')
    a('s_mov_b32 m0, s30')
    for i in range(4):
        tu = a(f'buffer_load_dwordx4 v3, s[{SWS}:{SWS+3}], s29 offen offset:{1024*i} lds')
    a('v_mov_b32 v10, 0\nv_mov_b32 v11, 0\nv_mov_b32 v12, 0\nv_mov_b32 v13, 0')
    a(f'v_add_u32 v14, s27, v3')
    a('s_mov_b64 exec, 0xffffffff')
    a(f'ds_write_b128 v14, v[10:13] offset:{4*CS}')
    a('s_mov_b64 exec, -1')
    a('v_and_b32 v15, 15, v2\nv_lshrrev_b32 v16, 4, v2')
    a('v_add_u32 v17, 1, v15\nv_and_b32 v18, 3, v17\nv_lshrrev_b32 v17, 2, v17')
    a(f'v_mul_u32_u24 v18, {CS}, v18\nv_lshl_add_u32 v18, v17, 3, v18\nv_lshl_add_u32 v18, v16, 4, v18\nv_add_u32 v18, s27, v18')
    a(f'v_lshlrev_b32 v19, 5, v15\nv_lshlrev_b32 v20, 4, v16\nv_sub_u32 v19, v19, v20\nv_add_u32 v19, s27, v19\nv_add_u32 v19, {4*CS+528}, v19')
    a.wait_vm(th)
    T0 = 96
    for i in range(5):
        h = HR+6*i
        if i == 4: a('s_mov_b64 exec, 3')
        off = 1024*i
        a(f'ds_write_b128 v14, v[{h}:{h+3}] offset:{off}')
        for q in range(4): a(f'v_alignbit_b32 v{T0+q}, v{h+q+1}, v{h+q}, 16')
        a(f'ds_write_b128 v14, v[{T0}:{T0+3}] offset:{CS+off}')
        a(f'v_mov_b32 v{T0+4}, v{h+1}\nv_mov_b32 v{T0+5}, v{h+2}\nv_mov_b32 v{T0+6}, v{h+3}\nv_mov_b32 v{T0+7}, v{h+4}')
        a(f'ds_write_b128 v14, v[{T0+4}:{T0+7}] offset:{2*CS+off}')
        for q in range(4): a(f'v_alignbit_b32 v{T0+8+q}, v{h+q+2}, v{h+q+1}, 16')
        a(f'ds_write_b128 v14, v[{T0+8}:{T0+11}] offset:{3*CS+off}')
    a('s_mov_b64 exec, -1')
    AD = 28
    a.wait_vm(tD)
    a('v_lshl_add_u32 v21, v16, 3, v15\nv_sub_u32 v21, 15, v21')
    a('v_and_b32 v22, 1, v21\nv_lshlrev_b32 v22, 4, v22\nv_lshlrev_b32 v22, v22, v9\nv_ashrrev_i32 v21, 1, v21')
    for wd in range(4):
        a(f'v_cmp_eq_u32 vcc, {wd}, v21\nv_cndmask_b32 v{AD+wd}, 0, v22, vcc')
    a.wait_vm(tu)
    a('s_waitcnt lgkmcnt(0)')
    A = [64, 128]; B = [96, 160]; ACC = 32
    def loads(buf):
        L = []
        for x in range(8):
            L.append(f'ds_read_b128 v[{B[buf]+4*x}:{B[buf]+4*x+3}], v19 offset:{512*x}')
            L.append(f'ds_read_b64 v[{A[buf]+4*x}:{A[buf]+4*x+1}], v18 offset:{512*x}')
            L.append(f'ds_read_b64 v[{A[buf]+4*x+2}:{A[buf]+4*x+3}], v18 offset:{512*x+8}')
        return L
    for s in loads(0): a(s)
    a('v_add_u32 v18, 64, v18\nv_subrev_u32 v19, 64, v19')
    a('s_waitcnt lgkmcnt(0)')
    for t in range(8):
        a(f'v_mfma_f32_16x16x32_bf16 v[{ACC+4*t}:{ACC+4*t+3}], v[{AD}:{AD+3}], v[{B[0]+4*t}:{B[0]+4*t+3}], 0')
    def block(buf):
        L = loads(buf ^ 1)
        n = 0
        for q in range(8):
            for dl in range(8 - q):
                t = q + dl
                a(f'v_mfma_f32_16x16x32_bf16 v[{ACC+4*t}:{ACC+4*t+3}], v[{A[buf]+4*q}:{A[buf]+4*q+3}], v[{B[buf]+4*dl}:{B[buf]+4*dl+3}], v[{ACC+4*t}:{ACC+4*t+3}]')
                if n < len(L): a(L[n])
                n += 1
        a('v_add_u32 v18, 64, v18\nv_subrev_u32 v19, 64, v19')
        a('s_waitcnt lgkmcnt(0)')
    a('s_mov_b32 s31, 4')
    a.label('L_conv_loop')
    block(0); block(1)
    a('s_sub_u32 s31, s31, 1\ns_cmp_lg_u32 s31, 0\ns_cbranch_scc1 L_conv_loop')
    a.reset_counts()
    a('v_lshlrev_b32 v21, 5, v15\nv_lshl_add_u32 v21, v16, 3, v21\nv_add_u32 v21, s27, v21')
    for t in range(8):
        r = ACC+4*t
        a(f'v_cvt_pk_bf16_f32 v{64+2*t}, v{r}, v{r+1}\nv_cvt_pk_bf16_f32 v{65+2*t}, v{r+2}, v{r+3}')
        a(f'ds_write_b64 v21, v[{64+2*t}:{65+2*t}] offset:{512*t}')
    a('s_waitcnt lgkmcnt(0)\ns_barrier')
    a('s_lshl_b32 s28, s24, 10\nv_lshl_add_u32 v22, v2, 2, s28')
    a(f'v_add_u32 v23, {2*WLDS}, v22')
    a('v_lshrrev_b32 v24, 2, v2\nv_mul_u32_u24 v24, 10240, v24\nv_and_b32 v25, 3, v2\nv_lshl_add_u32 v24, v25, 4, v24')
    a(f's_mul_i32 s28, s24, {64*10240}\ns_lshl_b32 s29, {swg}, 6\ns_add_u32 s28, s28, s29\ns_add_u32 s28, s28, {YG}')
    a('s_mov_b32 s33, 0x05040100\ns_mov_b32 s34, 0x07060302')
    tk = []
    for k in range(4):
        for c in range(4):
            base = 'v22' if c < 2 else 'v23'
            t = a(f'ds_read_b32 v{64+4*k+c}, {base} offset:{(c&1)*WLDS + 256*k}')
        tk.append(t)
    for k in range(4):
        a.wait_lg(tk[k])
        x = 64+4*k; o = 96+4*k
        a(f'v_perm_b32 v{o}, v{x+1}, v{x}, s33\nv_perm_b32 v{o+1}, v{x+3}, v{x+2}, s33\nv_perm_b32 v{o+2}, v{x+1}, v{x}, s34\nv_perm_b32 v{o+3}, v{x+3}, v{x+2}, s34')
        a(f'buffer_store_dwordx4 v[{o}:{o+3}], v24, s[{SWS}:{SWS+3}], s28 offen')
        if k < 3: a(f's_add_u32 s28, s28, {16*10240}')

def phase_prepack(a, swg='s2'):
    SG, SU, SDN = 8, 12, 16
    a(f's_lshr_b32 s24, {swg}, 5')
    a(f's_and_b32 s25, {swg}, 31')
    a('v_lshrrev_b32 v1, 6, v0\nv_readfirstlane_b32 s26, v1')
    a('s_lshl_b32 s25, s25, 2\ns_add_u32 s25, s25, s26')
    a('v_and_b32 v2, 63, v0\nv_and_b32 v3, 15, v2\nv_lshrrev_b32 v4, 4, v2')
    a('s_mov_b32 s33, 0x05040100\ns_mov_b32 s34, 0x07060302')
    a('s_cmp_eq_u32 s24, 2\ns_cbranch_scc1 L_pp_down')
    a(f's_cmp_eq_u32 s24, 1\ns_cselect_b32 s{SG}, s{SU}, s{SG}\ns_cselect_b32 s{SG+1}, s{SU+1}, s{SG+1}')
    a('v_mul_u32_u24 v5, 27648, v4\nv_lshl_add_u32 v5, v3, 3, v5')
    a('v_lshrrev_b32 v6, 2, v3\nv_mul_u32_u24 v6, 40960, v6')
    a('v_lshrrev_b32 v7, 1, v4\nv_lshl_add_u32 v6, v7, 10, v6')
    a('v_and_b32 v7, 1, v4\nv_lshl_add_u32 v6, v7, 9, v6')
    a('v_and_b32 v7, 1, v3\nv_lshl_add_u32 v6, v7, 6, v6')
    a('v_bfe_u32 v7, v3, 1, 1\nv_lshl_add_u32 v6, v7, 8, v6')
    a('s_lshl_b32 s27, s24, 7\nv_add_u32 v6, s27, v6')
    R = 16
    toks = []
    for it in range(5):
        a(f's_add_u32 s28, s25, {128*it}')
        a('s_mul_i32 s29, s28, 2428\ns_lshr_b32 s29, s29, 16')
        a('s_mul_i32 s30, s29, 27\ns_sub_u32 s30, s28, s30')
        a(f's_mul_i32 s{40+it}, s29, {32*3456}\ns_lshl_b32 s31, s30, 7\ns_add_u32 s{40+it}, s{40+it}, s31')
        a(f's_mul_i32 s{48+it}, s30, {4*40960}\ns_lshl_b32 s31, s29, 11\ns_add_u32 s{48+it}, s{48+it}, s31\ns_add_u32 s{48+it}, s{48+it}, {W1P}')
        vo = 'v5'; vd = 'v6'
        if it == 4:
            a(f's_cmp_lt_u32 s28, 540\ns_cselect_b32 s35, 0, {OOB}\nv_or_b32 v8, s35, v5\nv_or_b32 v9, s35, v6')
            vo = 'v8'; vd = 'v9'
        for e in range(8):
            if e == 0 or e == 1:
                pass
        for e in range(8):
            a(f's_add_u32 s31, s{40+it}, {e*3456}')
            t = a(f'buffer_load_dwordx2 v[{R+16*it+2*e}:{R+16*it+2*e+1}], {vo}, s[{SG}:{SG+3}], s31 offen')
        toks.append(t)
    O = 100
    def emit_tr(it, vd):
        r = R+16*it
        for c in range(4):
            for p in range(4):
                sel = 's33' if (c & 1) == 0 else 's34'
                a(f'v_perm_b32 v{O+16*(it&1)+4*c+p}, v{r+2*(2*p+1)+(c>>1)}, v{r+2*(2*p)+(c>>1)}, {sel}')
            a(f'buffer_store_dwordx4 v[{O+16*(it&1)+4*c}:{O+16*(it&1)+4*c+3}], {vd}, s[{SWS}:{SWS+3}], s{48+it} offen offset:{16*c}')
    for it in range(5):
        a.wait_vm(toks[it])
        emit_tr(it, 'v9' if it == 4 else 'v6')
    a('s_branch L_pp_end')
    a.label('L_pp_down')
    a.reset_counts()
    a('v_lshrrev_b32 v7, 1, v4\nv_lshlrev_b32 v7, 4, v7\nv_and_b32 v5, 1, v4\nv_lshl_add_u32 v5, v5, 2, v7')
    a('v_mul_u32_u24 v5, 1280, v5\nv_lshl_add_u32 v5, v3, 3, v5')
    a(f'v_lshrrev_b32 v6, 2, v3\nv_mul_u32_u24 v6, {54*1024}, v6\nv_lshl_add_u32 v6, v4, 8, v6\nv_and_b32 v7, 3, v3\nv_lshl_add_u32 v6, v7, 6, v6')
    toks = []
    for it in range(5):
        a(f's_add_u32 s28, s25, {128*it}')
        a('s_mul_i32 s29, s28, 6554\ns_lshr_b32 s29, s29, 16')
        a('s_mul_i32 s30, s29, 10\ns_sub_u32 s30, s28, s30')
        a(f's_mul_i32 s{40+it}, s29, {32*1280}\ns_lshl_b32 s31, s30, 7\ns_add_u32 s{40+it}, s{40+it}, s31')
        a(f's_mul_i32 s{48+it}, s30, {4*54*1024}\ns_lshl_b32 s31, s29, 10\ns_add_u32 s{48+it}, s{48+it}, s31\ns_add_u32 s{48+it}, s{48+it}, {WDP}')
        vo = 'v5'
        if it == 4:
            a(f's_cmp_lt_u32 s28, 540\ns_cselect_b32 s35, 0, {OOB}\nv_or_b32 v8, s35, v5\nv_or_b32 v9, s35, v6')
            vo = 'v8'
        for e in range(8):
            ro = ((e & 3) + 8*(e >> 2))*1280
            if ro < 4096:
                t = a(f'buffer_load_dwordx2 v[{R+16*it+2*e}:{R+16*it+2*e+1}], {vo}, s[{SDN}:{SDN+3}], s{40+it} offen offset:{ro}')
            else:
                if e == 4: a(f's_add_u32 s31, s{40+it}, {8*1280}')
                t = a(f'buffer_load_dwordx2 v[{R+16*it+2*e}:{R+16*it+2*e+1}], {vo}, s[{SDN}:{SDN+3}], s31 offen offset:{ro-8*1280}')
        toks.append(t)
    for it in range(5):
        a.wait_vm(toks[it])
        emit_tr(it, 'v9' if it == 4 else 'v6')
    a.label('L_pp_end')

def round_bf16(a, v, tmp):
    a(f'v_cvt_pk_bf16_f32 {tmp}, {v}, {v}\nv_lshlrev_b32 {v}, 16, {tmp}')

def allreduce_row8(a, regs, tmp):
    for r in regs:
        a(f'v_add_f32_dpp {r}, {r}, {r} row_ror:8 row_mask:0xf bank_mask:0xf')
    for r in regs:
        a(f'v_mov_b32 {tmp}, {r}\nv_permlane16_swap_b32 {tmp}, {r}\nv_add_f32 {r}, {r}, {tmp}')
    for r in regs:
        a(f'v_mov_b32 {tmp}, {r}\nv_permlane32_swap_b32 {tmp}, {r}\nv_add_f32 {r}, {r}, {tmp}')

def ln_stats(a, X, n, vs, vq, ldsw, ldsr, ldsoff, wave_first):
    a(f'v_add_f32 {vs}, v{X}, v{X+1}\nv_mul_f32 {vq}, v{X}, v{X}\nv_fmac_f32 {vq}, v{X+1}, v{X+1}')
    for i in range(2, n):
        a(f'v_add_f32 {vs}, {vs}, v{X+i}\nv_fmac_f32 {vq}, v{X+i}, v{X+i}')

def phase_R(a, layer, swg='s2'):
    SQ = 8
    XO = X1 if layer == 0 else X3
    XNO = XN1 if layer == 0 else XN2
    a('v_and_b32 v1, 7, v0\nv_bfe_u32 v2, v0, 3, 3\nv_lshrrev_b32 v3, 6, v0')
    a('v_mul_u32_u24 v4, 40, v3\nv_add_u32 v4, v4, v2')
    a(f's_mul_i32 s24, {swg}, 10240')
    a('v_lshlrev_b32 v5, 6, v4\nv_lshl_add_u32 v5, v1, 3, v5\nv_add_u32 v5, s24, v5')
    XR, YR = 10, 20
    if layer == 0:
        a('v_mul_u32_u24 v6, 1280, v1\nv_lshl_add_u32 v6, v4, 3, v6\nv_add_u32 v6, s24, v6')
        for i in range(5):
            tx = a(f'buffer_load_dwordx2 v[{XR+2*i}:{XR+2*i+1}], v6, s[{SQ}:{SQ+3}], 0 offen offset:{64*i}')
    else:
        a(f's_mov_b32 s25, {X2}')
        for i in range(5):
            tx = a(f'buffer_load_dwordx2 v[{XR+2*i}:{XR+2*i+1}], v5, s[{SWS}:{SWS+3}], s25 offen offset:{512*i}')
    a(f's_mov_b32 s26, {YG}')
    for i in range(5):
        ty = a(f'buffer_load_dwordx2 v[{YR+2*i}:{YR+2*i+1}], v5, s[{SWS}:{SWS+3}], s26 offen offset:{512*i}')
    a(f's_lshr_b32 s27, {swg}, 2\ns_mul_i32 s27, s27, 40960\ns_and_b32 s28, {swg}, 3\ns_lshl_b32 s28, s28, 7\ns_add_u32 s27, s27, s28')
    a('v_mul_u32_u24 v7, 10, v3\nv_lshrrev_b32 v8, 2, v2\nv_add_u32 v7, v7, v8\nv_lshlrev_b32 v7, 10, v7')
    a('v_bfe_u32 v8, v2, 1, 1\nv_lshl_add_u32 v7, v8, 9, v7\nv_and_b32 v8, 1, v2\nv_lshl_add_u32 v7, v8, 3, v7\nv_lshl_add_u32 v7, v1, 4, v7\nv_add_u32 v7, s27, v7')
    a('v_add_u32 v9, 4096, v7\nv_add_u32 v30, 8192, v7')
    a('v_lshlrev_b32 v31, 3, v1\nv_lshl_add_u32 v32, v3, 6, v31')
    a('s_mov_b32 s32, 0xffff0000\ns_mov_b32 s33, 0x3acccccd')
    a('s_mov_b32 s34, 0x3727c5ac')
    X = 40; Y = 60
    def unpack(dst, src, n):
        for i in range(n):
            a(f'v_lshlrev_b32 v{dst+2*i}, 16, v{src+i}\nv_and_b32 v{dst+2*i+1}, s32, v{src+i}')
    def stats(ldsoff):
        vs, vq = 'v34', 'v35'
        a(f'v_add_f32 {vs}, v{X}, v{X+1}\nv_mul_f32 {vq}, v{X}, v{X}\nv_fmac_f32 {vq}, v{X+1}, v{X+1}')
        for i in range(2, 20):
            a(f'v_add_f32 {vs}, {vs}, v{X+i}\nv_fmac_f32 {vq}, v{X+i}, v{X+i}')
        allreduce_row8(a, [vs, vq], 'v36')
        a(f'ds_write_b64 v32, v[34:35] offset:{ldsoff}')
        a('s_waitcnt lgkmcnt(0)\ns_barrier')
        for w in range(4):
            t = a(f'ds_read_b64 v[{80+2*w}:{81+2*w}], v31 offset:{ldsoff+64*w}')
        a.wait_lg(t)
        a('v_pk_add_f32 v[80:81], v[80:81], v[82:83]\nv_pk_add_f32 v[84:85], v[84:85], v[86:87]\nv_pk_add_f32 v[34:35], v[80:81], v[84:85]')
        a('v_mul_f32 v34, s33, v34\nv_mul_f32 v35, s33, v35')
        a('v_fma_f32 v35, -v34, v34, v35\nv_max_f32 v35, 0, v35')
        round_bf16(a, 'v34', 'v36'); round_bf16(a, 'v35', 'v36')
        a('v_add_f32 v35, s34, v35'); round_bf16(a, 'v35', 'v36')
        a('v_sqrt_f32 v35, v35'); round_bf16(a, 'v35', 'v36')
        a('v_rcp_f32 v35, v35')
        a('v_mul_f32 v37, v34, v35\nv_sub_f32 v37, 0, v37')
    a.wait_vm(tx)
    unpack(X, XR, 10)
    stats(0)
    a.wait_vm(ty)
    unpack(Y, YR, 10)
    for i in range(20):
        a(f'v_fma_f32 v38, v{X+i}, v35, v37\nv_fmac_f32 v{X+i}, v38, v{Y+i}')
    P = 10
    for i in range(10):
        a(f'v_cvt_pk_bf16_f32 v{P+i}, v{X+2*i}, v{X+2*i+1}')
    a(f's_mov_b32 s25, {XO}')
    for i in range(5):
        a(f'buffer_store_dwordx2 v[{P+2*i}:{P+2*i+1}], v5, s[{SWS}:{SWS+3}], s25 offen offset:{512*i}')
    unpack(X, P, 10)
    stats(256)
    P2 = 20
    for i in range(20):
        a(f'v_fma_f32 v{X+i}, v{X+i}, v35, v37')
    for i in range(10):
        a(f'v_cvt_pk_bf16_f32 v{P2+i}, v{X+2*i}, v{X+2*i+1}')
    a(f's_mov_b32 s26, {XNO}')
    for i in range(5):
        vo = ['v7', 'v7', 'v9', 'v9', 'v30'][i]
        a(f'buffer_store_dwordx2 v[{P2+2*i}:{P2+2*i+1}], {vo}, s[{SWS}:{SWS+3}], s26 offen offset:{2048*(i&1)}')

G1_RING = 140
G1_STAGE = 20
G1_LDS = G1_RING*1024
def g1_seq():
    seq = []
    for ks in range(40):
        for u in range(3): seq.append((u, ks))
    for u in range(3, 7):
        for ks in range(40): seq.append((u, ks))
    return seq

def phase_G1(a, layer, scl, sf):
    XN = XN1 if layer == 0 else XN2
    H = H1 if layer == 0 else H2
    seq = g1_seq()
    a('v_lshrrev_b32 v1, 6, v0\nv_readfirstlane_b32 s24, v1')
    a('v_and_b32 v2, 63, v0\nv_lshlrev_b32 v3, 4, v2')
    a(f's_mul_i32 s25, {sf}, 7\ns_min_u32 s25, s25, 101')
    a(f's_mul_i32 s26, s25, 40960\ns_add_u32 s26, s26, {W1P}')
    a(f's_lshl_b32 s27, {scl}, 2\ns_add_u32 s27, s27, s24\ns_mul_i32 s28, s27, 40960\ns_add_u32 s28, s28, {XN}')
    dma_tok = {}
    def dma_stage(st):
        if st*G1_STAGE >= len(seq): return
        for i in range(5):
            base = st*G1_STAGE
            slot0 = base % G1_RING
            if base >= 120:
                a(f's_add_u32 s30, s29, {3*40960 + (base-120)*1024 + 1024*i}')
            else:
                a(f's_add_u32 s31, s36, {base + i}')
                a('s_mul_i32 s30, s31, 21846\ns_lshr_b32 s30, s30, 16')
                a('s_mul_i32 s35, s30, 3\ns_sub_u32 s35, s31, s35')
                a('s_mul_i32 s35, s35, 40960\ns_lshl_b32 s30, s30, 10\ns_add_u32 s30, s30, s35\ns_add_u32 s30, s30, s26')
            a(f's_add_u32 m0, s37, {(slot0 + i)*1024}')
            t = a(f'buffer_load_dwordx4 v3, s[{SWS}:{SWS+3}], s30 offen lds')
        dma_tok[st] = t
    a('s_mul_i32 s36, s24, 5')
    a('s_lshl_b32 s37, s36, 10')
    a('s_add_u32 s29, s26, s37')
    nst = len(seq)//G1_STAGE
    NPRE = G1_RING//G1_STAGE
    xn_tok = []
    def xn_load(ks):
        if ks % 4 == 0 and ks > 0: a('s_add_u32 s28, s28, 4096')
        xn_tok.append(a(f'buffer_load_dwordx4 a[{4*ks}:{4*ks+3}], v3, s[{SWS}:{SWS+3}], s28 offen offset:{1024*(ks&3)}'))
    dma_stage(0)
    for ks in range(8): xn_load(ks)
    dma_stage(1)
    for ks in range(8, 16): xn_load(ks)
    dma_stage(2)
    for ks in range(16, 24): xn_load(ks)
    a(f'v_and_b32 v4, 15, v2\nv_lshlrev_b32 v4, 4, v4\nv_bfe_u32 v5, v2, 4, 1\nv_mul_u32_u24 v5, 55296, v5\nv_add_u32 v4, v4, v5\nv_lshrrev_b32 v5, 5, v2\nv_lshl_add_u32 v4, v5, 8, v4')
    a(f's_mul_i32 s38, s27, 110592\ns_lshl_b32 s39, s25, 9\ns_add_u32 s38, s38, s39\ns_add_u32 s38, s38, {H}')
    a('s_mov_b32 s40, 0xbfb8aa3b')
    dma_stage(3)
    for ks in range(24, 32): xn_load(ks)
    dma_stage(4)
    for ks in range(32, 40): xn_load(ks)
    dma_stage(5)
    dma_stage(6)
    a('v_add_u32 v6, 0x10000, v3\nv_add_u32 v7, 0x20000, v3')
    def lds_addr(slot):
        o = slot*1024
        return ('v3', o) if o < 0x10000 else (('v6', o-0x10000) if o < 0x20000 else ('v7', o-0x20000))
    NB = 6
    WB = 16
    ACC = [64, 80, 96, 112]
    accof = {0: 64, 1: 80, 2: 96, 3: 112, 4: 64, 5: 80, 6: 96}
    rd_tok = {}
    def rd(s):
        if s >= len(seq): return
        reg, off = lds_addr(s % G1_RING)
        b = WB + 4*(s % NB)
        rd_tok[s] = a(f'ds_read_b128 v[{b}:{b+3}], {reg} offset:{off}')
    epi = []
    def make_epi(u):
        A = accof[u]; T = 128; O = 144 + 4*(u & 1)
        L = []
        for g in range(2):
            b = A + 8*g
            for p in range(2):
                L.append(f'v_pk_mul_f32 v[{T+2*p}:{T+2*p+1}], v[{b+2*p}:{b+2*p+1}], s[40:41] op_sel_hi:[1,0]')
            for q in range(4): L.append(f'v_exp_f32 v{T+q}, v{T+q}')
            for p in range(2):
                L.append(f'v_pk_mul_f32 v[{T+4+2*p}:{T+5+2*p}], v[{b+2*p}:{b+2*p+1}], v[{b+4+2*p}:{b+5+2*p}]')
            for p in range(2):
                L.append(f'v_pk_add_f32 v[{T+2*p}:{T+2*p+1}], v[{T+2*p}:{T+2*p+1}], 1.0 op_sel_hi:[1,0]')
            for q in range(4): L.append(f'v_rcp_f32 v{T+q}, v{T+q}')
            L.append('s_nop 0')
            for p in range(2):
                L.append(f'v_pk_mul_f32 v[{T+4+2*p}:{T+5+2*p}], v[{T+4+2*p}:{T+5+2*p}], v[{T+2*p}:{T+2*p+1}]')
            for p in range(2):
                L.append(f'v_cvt_pk_bf16_f32 v{O+2*g+p}, v{T+4+2*p}, v{T+5+2*p}')
        L.append(f'buffer_store_dwordx4 v[{O}:{O+3}], v4, s[{SWS}:{SWS+3}], s38 offen offset:{512*u}')
        return L
    AHEAD = 4
    a.wait_vm(dma_tok[1]); a('s_barrier')
    for s in range(AHEAD): rd(s)
    last_of_unit = {}
    for s, (u, ks) in enumerate(seq): last_of_unit[u] = s
    pend = []
    for s, (u, ks) in enumerate(seq):
        if s % G1_STAGE == 0 and s > 0:
            st = s // G1_STAGE
            if st + 1 in dma_tok: a.wait_vm(dma_tok[st+1])
            a('s_barrier')
            if st - 1 + NPRE < nst: dma_stage(st - 1 + NPRE)
        if s < 120 and u == 0: a.wait_vm(xn_tok[ks])
        a.wait_lg(rd_tok[s])
        b = WB + 4*(s % NB); A = accof[u]
        c = '0' if ks == 0 else f'v[{A}:{A+15}]'
        a(f'v_mfma_f32_32x32x16_bf16 v[{A}:{A+15}], v[{b}:{b+3}], a[{4*ks}:{4*ks+3}], {c}')
        rd(s + AHEAD)
        for uu in list(last_of_unit):
            if last_of_unit[uu] == s: pend.append((s + 2, uu))
        while pend and pend[0][0] <= s:
            epi += make_epi(pend.pop(0)[1])
        k = 2 if len(epi) < 60 else 3
        for _ in range(k):
            if epi: a(epi.pop(0))
    for _, uu in pend: epi += make_epi(uu)
    for x in epi: a(x)

G2_LDS = 4*15360
def phase_G2(a, layer, stb, scg):
    H = H1 if layer == 0 else H2
    RES = X1 if layer == 0 else X3
    SO = 8
    AC = 20; HB = 100; NHB = 7; WX = 212; RR = 236
    a('v_lshrrev_b32 v1, 6, v0\nv_readfirstlane_b32 s24, v1')
    a('v_and_b32 v2, 63, v0\nv_lshlrev_b32 v3, 4, v2')
    a('s_mul_i32 s25, s24, 14\ns_cmp_eq_u32 s24, 3\ns_cselect_b32 s26, 1, 0\ns_sub_u32 s25, s25, s26')
    a(f's_cmp_ge_u32 s24, 2\ns_cselect_b32 s26, {OOB}, 0')
    a('v_or_b32 v4, s26, v3')
    a(f's_mul_i32 s27, {scg}, {5*55296}\ns_lshl_b32 s28, s25, 10\ns_add_u32 s27, s27, s28\ns_add_u32 s27, s27, {WDP}')
    def wreg(cb, k):
        i = k*5 + cb
        return f'a[{4*i}:{4*i+3}]' if i < 64 else f'v[{WX+4*(i-64)}:{WX+4*(i-64)+3}]'
    wtok = {}
    def wload(k):
        for cb in range(5):
            a(f's_add_u32 s29, s27, {cb*55296 + (k>>2)*4096}')
            vo = 'v4' if k == 13 else 'v3'
            wtok[(k, cb)] = a(f'buffer_load_dwordx4 {wreg(cb,k)}, {vo}, s[{SWS}:{SWS+3}], s29 offen offset:{1024*(k&3)}')
    a(f's_mul_i32 s30, {stb}, {4*55296}\ns_lshl_b32 s28, s25, 10\ns_add_u32 s30, s30, s28\ns_add_u32 s30, s30, {H}')
    for tb in range(4):
        a(f's_add_u32 s31, s24, {tb}\ns_and_b32 s31, s31, 3\ns_mul_i32 s31, s31, 55296')
        a(f'v_add_u32 v{8+tb}, s31, v3\nv_or_b32 v{12+tb}, s26, v{8+tb}')
    for j in range(4): a(f's_add_u32 s{32+j}, s30, {4096*j}')
    htok = {}
    def hload(k):
        if k >= 14: return
        for tb in range(4):
            r = HB + 16*(k % NHB) + 4*tb
            vo = f'v{12+tb}' if k == 13 else f'v{8+tb}'
            htok[(k, tb)] = a(f'buffer_load_dwordx4 v[{r}:{r+3}], {vo}, s[{SWS}:{SWS+3}], s{32+(k>>2)} offen offset:{1024*(k&3)}')
    for k in range(NHB):
        wload(k); hload(k)
    for k in range(NHB, 14): wload(k)
    a('v_bfe_u32 v16, v2, 3, 1\nv_mul_u32_u24 v16, 10240, v16\nv_lshrrev_b32 v17, 4, v2\nv_lshl_add_u32 v16, v17, 6, v16\nv_and_b32 v18, 7, v2\nv_lshl_add_u32 v16, v18, 3, v16')
    a(f's_lshl_b32 s36, {stb}, 3\ns_lshl_b32 s37, s24, 1\ns_add_u32 s36, s36, s37\ns_mul_i32 s36, s36, 10240\ns_mul_i32 s37, {scg}, 1280\ns_add_u32 s36, s36, s37')
    a(f's_add_u32 s37, s36, {RES}')
    for cb in range(5):
        tres = a(f'buffer_load_dwordx2 v[{RR+2*cb}:{RR+2*cb+1}], v16, s[{SWS}:{SWS+3}], s37 offen offset:{256*cb}')
    for tb in range(1, 4):
        a(f's_add_u32 s31, s24, {tb}\ns_and_b32 s31, s31, 3\ns_mul_i32 s31, s31, 15360\ns_add_u32 s31, s31, {(tb-1)*5120}\nv_add_u32 v{4+tb}, s31, v3')
    a('s_mul_i32 s31, s24, 15360\nv_add_u32 v19, s31, v3')
    for k in range(14):
        for tb in range(4):
            a.wait_vm(max(htok[(k, tb)], wtok[(k, 4)] if tb == 0 else 0))
            hb = HB + 16*(k % NHB) + 4*tb
            for cb in range(5):
                ac = AC + 4*(5*tb + cb)
                c = '0' if k == 0 else f'v[{ac}:{ac+3}]'
                a(f'v_mfma_f32_16x16x32_bf16 v[{ac}:{ac+3}], {wreg(cb,k)}, v[{hb}:{hb+3}], {c}')
        hload(k + NHB)
    for tb in range(1, 4):
        for cb in range(5):
            ac = AC + 4*(5*tb + cb)
            a(f'ds_write_b128 v{4+tb}, v[{ac}:{ac+3}] offset:{1024*cb}')
    a('s_waitcnt lgkmcnt(0)\ns_barrier')
    T = HB
    rt = {}
    for s in range(3):
        for cb in range(5):
            rt[(s, cb)] = a(f'ds_read_b128 v[{T+20*s+4*cb}:{T+20*s+4*cb+3}], v19 offset:{5120*s+1024*cb}')
    a('s_mov_b32 s38, 0xffff0000')
    a.wait_vm(tres)
    if layer == 1:
        a('v_and_b32 v18, 15, v2\nv_mul_u32_u24 v18, 1280, v18\nv_lshl_add_u32 v18, v17, 3, v18')
        a(f's_lshl_b32 s39, {stb}, 6\ns_lshl_b32 s31, s24, 4\ns_add_u32 s39, s39, s31\ns_mul_i32 s39, s39, 1280\ns_mul_i32 s31, {scg}, 160\ns_add_u32 s39, s39, s31')
    else:
        a(f's_add_u32 s39, s36, {X2}')
    for cb in range(5):
        ac = AC + 4*cb
        for s in range(3):
            a.wait_lg(rt[(s, cb)])
            t = T+20*s+4*cb
            a(f'v_pk_add_f32 v[{ac}:{ac+1}], v[{ac}:{ac+1}], v[{t}:{t+1}]\nv_pk_add_f32 v[{ac+2}:{ac+3}], v[{ac+2}:{ac+3}], v[{t+2}:{t+3}]')
        r = RR+2*cb; t = T+60
        a(f'v_lshlrev_b32 v{t}, 16, v{r}\nv_and_b32 v{t+1}, s38, v{r}\nv_lshlrev_b32 v{t+2}, 16, v{r+1}\nv_and_b32 v{t+3}, s38, v{r+1}')
        a(f'v_pk_add_f32 v[{ac}:{ac+1}], v[{ac}:{ac+1}], v[{t}:{t+1}]\nv_pk_add_f32 v[{ac+2}:{ac+3}], v[{ac+2}:{ac+3}], v[{t+2}:{t+3}]')
        a(f'v_cvt_pk_bf16_f32 v{r}, v{ac}, v{ac+1}\nv_cvt_pk_bf16_f32 v{r+1}, v{ac+2}, v{ac+3}')
        if layer == 1:
            a(f'buffer_store_dwordx2 v[{r}:{r+1}], v18, s[{SO}:{SO+3}], s39 offen offset:{32*cb}')
        else:
            a(f'buffer_store_dwordx2 v[{r}:{r+1}], v16, s[{SWS}:{SWS+3}], s39 offen offset:{256*cb}')

def kernel(name, body_fn, nvgpr, nagpr, nsgpr=102):
    a = Asm()
    body_fn(a)
    txt = a.finalize()
    acc_off = (nvgpr + 3)//4*4
    code = f'.p2align 8\n.globl {name}\n.type {name},@function\n{name}:\n{txt}    s_endpgm\n'
    desc = f""".p2align 6
.amdhsa_kernel {name}
  .amdhsa_next_free_vgpr {acc_off + nagpr if nagpr else nvgpr}
  .amdhsa_next_free_sgpr {nsgpr}
  .amdhsa_accum_offset {acc_off}
  .amdhsa_group_segment_fixed_size 0
  .amdhsa_kernarg_size 104
  .amdhsa_user_sgpr_count 2
  .amdhsa_user_sgpr_kernarg_segment_ptr 1
  .amdhsa_system_sgpr_workgroup_id_x 1
.end_amdhsa_kernel
"""
    return code, desc, a

def guard(a, n, lab):
    a(f's_cmp_ge_u32 s2, {n}\ns_cbranch_scc1 {lab}')

def k_T(a):
    guard(a, 256, 'L_T_end')
    a('s_cmp_ge_u32 s2, 160\ns_cbranch_scc1 L_T_pp')
    prologue(a, [(SWS, 'ws'), (8, 'k'), (12, 'v'), (16, 'shk')])
    phase_T(a)
    a('s_branch L_T_end')
    a.label('L_T_pp'); a.reset_counts()
    prologue(a, [(SWS, 'ws'), (8, 'wg'), (12, 'wu'), (16, 'wd')])
    a('s_sub_u32 s20, s2, 160')
    phase_prepack(a, 's20')
    a.label('L_T_end')
def k_conv(a):
    guard(a, 160, 'L_C_end')
    prologue(a, [(SWS, 'ws'), (8, 'ssmk'), (12, 'ssmD')])
    phase_conv(a)
    a.label('L_C_end')
def k_R(layer):
    def f(a):
        guard(a, 256, f'L_R{layer}_end')
        prologue(a, [(SWS, 'ws'), (8, 'q')])
        phase_R(a, layer)
        a.label(f'L_R{layer}_end')
    return f
def k_G1(layer):
    def f(a):
        guard(a, 256, f'L_G1{layer}_end')
        prologue(a, [(SWS, 'ws')])
        a('s_lshr_b32 s20, s2, 4\ns_and_b32 s21, s2, 15')
        phase_G1(a, layer, 's20', 's21')
        a.label(f'L_G1{layer}_end')
    return f
def k_G2(layer):
    def f(a):
        guard(a, 256, f'L_G2{layer}_end')
        prologue(a, [(SWS, 'ws'), (8, 'out')])
        a('s_lshr_b32 s20, s2, 3\ns_and_b32 s21, s2, 7')
        phase_G2(a, layer, 's20', 's21')
        a.label(f'L_G2{layer}_end')
    return f

def build_multi():
    ks = [('t_kernel', k_T, 256, 0, 256, 0), ('conv_kernel', k_conv, 256, 0, 160, CONV_LDS),
          ('r0_kernel', k_R(0), 128, 0, 256, 512), ('g10_kernel', k_G1(0), 256, 256, 256, G1_LDS), ('g20_kernel', k_G2(0), 256, 256, 256, G2_LDS),
          ('r1_kernel', k_R(1), 128, 0, 256, 512), ('g11_kernel', k_G1(1), 256, 256, 256, G1_LDS), ('g21_kernel', k_G2(1), 256, 256, 256, G2_LDS)]
    hdr = open('interleave_layers__ssm_conv_h3__swiglu_ffn__prompt.s.ref').read().split('; Override')[0]
    out = hdr
    codes = ''; descs = ''
    for name, fn, nv, na, grid, lds in ks:
        out += f'; @launch kernel={name} grid=({grid},1,1) block=(256,1,1) lds={lds}\n'
        c, d, a = kernel(name, fn, nv, na)
        codes += c; descs += d
        print(name, 'instrs', sum(1 for it in a.items if it[0] == 'i'), 'nops added', a.nops_added, file=sys.stderr)
    out += '.amdgcn_target "amdgcn-amd-amdhsa--gfx950"\n.text\n' + codes + '.section .rodata,"a"\n' + descs
    return out

if __name__ == '__main__':
    path = sys.argv[1] if len(sys.argv) > 1 else 'multi.s'
    open(path, 'w').write(build_multi())
```

```python
from g2base import *

CS = 4160
WLDS = 4*CS + 4608
CONV_BASE = LDS_BYTES - 4*WLDS
QBLK = 3
STAGE1 = False
QDELAY = 4
CDEPTH = 3
TOUCH = True
NH0 = 3
WDRAW = 224
SWD = 48
HRAW = 192

def phase_T_with_tag(a):
    SK, SV, SSH, SH, SD = 8, 12, 16, 20, 24
    a('s_mul_i32 s28, s2, 205\ns_lshr_b32 s28, s28, 10')
    a('s_mul_i32 s29, s28, 5\ns_sub_u32 s29, s2, s29')
    a('v_bfe_u32 v1, v0, 4, 2\nv_lshrrev_b32 v2, 7, v0\nv_lshl_add_u32 v1, v2, 2, v1')
    a('v_and_b32 v2, 15, v0\nv_bfe_u32 v3, v0, 6, 1\nv_lshl_add_u32 v2, v3, 4, v2')
    a('s_mul_i32 s30, s28, 81920\ns_lshl_b32 s31, s29, 8\ns_add_u32 s30, s30, s31')
    a('v_mul_u32_u24 v3, 10240, v1\nv_lshl_add_u32 v3, v2, 3, v3\nv_add_u32 v3, s30, v3')
    a('v_add_u32 v4, 5120, v3\nv_subrev_u32 v5, 3840, v3')
    a('s_lshl_b32 s31, s29, 10\nv_lshlrev_b32 v6, 5, v2\nv_add_u32 v6, s31, v6')
    KR, VR, WR = 10, 32, 48
    for r in range(3):
        a(f'buffer_load_dwordx2 v[{KR+2*r}:{KR+2*r+1}], v5, s[{SK}:{SK+3}], 0 offen offset:{1280*r}')
    for r in range(8):
        a(f'buffer_load_dwordx2 v[{KR+6+2*r}:{KR+7+2*r}], v{3+(r>>2)}, s[{SK}:{SK+3}], 0 offen offset:{1280*(r&3)}')
    a(f'buffer_load_dwordx4 v[{WR}:{WR+3}], v6, s[{SSH}:{SSH+3}], 0 offen')
    tw = a(f'buffer_load_dwordx4 v[{WR+4}:{WR+7}], v6, s[{SSH}:{SSH+3}], 0 offen offset:16')
    tv = []
    for r in range(8):
        tv.append(a(f'buffer_load_dwordx2 v[{VR+2*r}:{VR+2*r+1}], v{3+(r>>2)}, s[{SV}:{SV+3}], 0 offen offset:{1280*(r&3)}'))
    a('v_and_b32 v8, 7, v2\nv_xor_b32 v8, v8, v1\nv_lshlrev_b32 v8, 4, v8\nv_lshl_add_u32 v8, v2, 9, v8')
    a('v_lshrrev_b32 v9, 5, v0\nv_and_b32 v7, 7, v0\nv_xor_b32 v9, v9, v7\nv_lshlrev_b32 v9, 4, v9\nv_lshrrev_b32 v148, 3, v0\nv_lshl_add_u32 v9, v148, 7, v9')
    a('s_lshl_b32 s30, s29, 19\ns_lshl_b32 s31, s28, 7\ns_add_u32 s30, s30, s31')
    a('v_lshlrev_b32 v7, 4, v7\nv_lshl_add_u32 v7, v148, 12, v7\nv_add_u32 v7, s30, v7')
    for c in range(4): a(f's_mov_b32 s{36+c}, {UT + c*131072}')
    a('s_mov_b32 s40, 0xffff0000')
    KF, WF, U = 56, 100, 116
    a.st('T_issued')
    a.wait_vm(tw)
    a.st('T_kret')
    a(f's_lshl_b32 s32, s2, 2\ns_add_u32 s32, s32, s{SW}')
    a('s_lshl_b32 s33, s32, 12')
    a(f's_add_u32 s{SH}, s{SH}, s33\ns_addc_u32 s{SH+1}, s{SH+1}, 0\ns_mov_b32 s{SH+2}, 4096')
    a('v_and_b32 v160, 63, v0\nv_lshlrev_b32 v161, 4, v160')
    a('v_subrev_u32 v162, 32, v161\nv_add_u32 v163, 16, v162\nv_add_u32 v164, 0x1000, v162\nv_add_u32 v165, 0x1000, v163')
    HR = HRAW
    for i in range(4):
        if i == 0:
            a(f'buffer_load_dwordx4 v[{HR}:{HR+3}], v162, s[{SH}:{SH+3}], 0 offen')
            a(f'buffer_load_dwordx2 v[{HR+4}:{HR+5}], v163, s[{SH}:{SH+3}], 0 offen')
        else:
            a(f'buffer_load_dwordx4 v[{HR+6*i}:{HR+6*i+3}], v161, s[{SH}:{SH+3}], 0 offen offset:{1024*i-32}')
            a(f'buffer_load_dwordx2 v[{HR+6*i+4}:{HR+6*i+5}], v161, s[{SH}:{SH+3}], 0 offen offset:{1024*i-16}')
    a(f'buffer_load_dwordx4 v[{HR+24}:{HR+27}], v164, s[{SH}:{SH+3}], 0 offen')
    th = a(f'buffer_load_dwordx2 v[{HR+28}:{HR+29}], v165, s[{SH}:{SH+3}], 0 offen')
    a('s_lshl_b32 s34, s32, 1\nv_mov_b32 v166, s34')
    tD = a(f'buffer_load_ushort v153, v166, s[{SD}:{SD+3}], 0 offen')
    for r in range(11):
        for p in range(2):
            a(f'v_lshlrev_b32 v{KF+4*r+2*p}, 16, v{KR+2*r+p}\nv_and_b32 v{KF+4*r+2*p+1}, s40, v{KR+2*r+p}')
    for c in range(4):
        for h in range(2):
            a(f'v_lshlrev_b32 v{WF+4*(2*h)+c}, 16, v{WR+2*c+h}\nv_and_b32 v{WF+4*(2*h+1)+c}, s40, v{WR+2*c+h}')
    for t in range(8):
        for p in range(2):
            d = U+4*t+2*p
            for j in range(4):
                k = KF+4*(t+3-j)+2*p; w = WF+4*j+2*p
                if j == 0: a(f'v_pk_mul_f32 v[{d}:{d+1}], v[{k}:{k+1}], v[{w}:{w+1}]')
                else: a(f'v_pk_fma_f32 v[{d}:{d+1}], v[{k}:{k+1}], v[{w}:{w+1}], v[{d}:{d+1}]')
    for t in range(8):
        a.wait_vm(tv[t])
        for p in range(2):
            x = KF+4*t+2*p
            a(f'v_lshlrev_b32 v{x}, 16, v{VR+2*t+p}\nv_and_b32 v{x+1}, s40, v{VR+2*t+p}')
            d = U+4*t+2*p
            a(f'v_pk_mul_f32 v[{d}:{d+1}], v[{d}:{d+1}], v[{x}:{x+1}]')
    O = 12
    for c in range(4):
        for q in range(4):
            a(f'v_cvt_pk_bf16_f32 v{O+4*c+q}, v{U+4*(7-2*q)+c}, v{U+4*(6-2*q)+c}')
        a(f'ds_write_b128 v8, v[{O+4*c}:{O+4*c+3}] offset:{128*c}')
    a('s_waitcnt lgkmcnt(0)\ns_barrier')
    tr = [a(f'ds_read_b128 v[{O+4*c}:{O+4*c+3}], v9 offset:{4096*c}') for c in range(4)]
    for c in range(4):
        a.wait_lg(tr[c])
        tst = a(f'buffer_store_dwordx4 v[{O+4*c}:{O+4*c+3}], v7, {WS}, s{36+c} offen sc1')
    a.st('T_stored')
    a(f's_lshl_b32 s41, s29, 7\ns_add_u32 s41, s41, s28\ns_lshl_b32 s41, s41, 2\ns_add_u32 s41, s41, {FT}')
    return dict(th=th, tD=tD, tst=tst)

def conv_pre(a, tk):
    HR = HRAW
    a('v_and_b32 v2, 63, v0\nv_lshlrev_b32 v3, 4, v2')
    a(f's_mul_i32 s35, s{SW}, {WLDS}\ns_add_u32 s35, s35, {CONV_BASE}')
    a('v_add_u32 v14, s35, v3')
    a('v_and_b32 v15, 15, v2\nv_lshrrev_b32 v16, 4, v2')
    a('v_add_u32 v17, 1, v15\nv_and_b32 v18, 3, v17\nv_lshrrev_b32 v17, 2, v17')
    a(f'v_mul_u32_u24 v18, {CS}, v18\nv_lshl_add_u32 v18, v17, 3, v18\nv_lshl_add_u32 v18, v16, 4, v18\nv_add_u32 v18, s35, v18')
    a(f'v_lshlrev_b32 v19, 5, v15\nv_lshlrev_b32 v20, 4, v16\nv_sub_u32 v19, v19, v20\nv_add_u32 v19, s35, v19\nv_add_u32 v19, {4*CS+528}, v19')
    a('v_mov_b32 v28, 0\nv_mov_b32 v29, 0\nv_mov_b32 v30, 0\nv_mov_b32 v31, 0')
    a('s_mov_b64 exec, 0xffffffff')
    a(f'ds_write_b128 v14, v[28:31] offset:{4*CS}')
    a('s_mov_b64 exec, -1')
    T0 = 96
    def hround(i):
        h = HR+6*i
        if i == 4: a('s_mov_b64 exec, 3')
        off = 1024*i
        a(f'ds_write_b128 v14, v[{h}:{h+3}] offset:{off}')
        for q in range(4): a(f'v_alignbit_b32 v{T0+q}, v{h+q+1}, v{h+q}, 16')
        a(f'ds_write_b128 v14, v[{T0}:{T0+3}] offset:{CS+off}')
        a(f'v_mov_b32 v{T0+4}, v{h+1}\nv_mov_b32 v{T0+5}, v{h+2}\nv_mov_b32 v{T0+6}, v{h+3}\nv_mov_b32 v{T0+7}, v{h+4}')
        a(f'ds_write_b128 v14, v[{T0+4}:{T0+7}] offset:{2*CS+off}')
        for q in range(4): a(f'v_alignbit_b32 v{T0+8+q}, v{h+q+2}, v{h+q+1}, 16')
        a(f'ds_write_b128 v14, v[{T0+8}:{T0+11}] offset:{3*CS+off}')
        if i == 4: a('s_mov_b64 exec, -1')
    a.wait_vm(tk['tst'])
    a('s_waitcnt lgkmcnt(0)')
    tag_from_epoch(a)
    a('s_barrier')
    a.flag_store('s41', 'v4', 'v5', rep=4, stride=128)
    a.st('C_tflag')
    a('v_and_b32 v157, 15, v2\nv_lshrrev_b32 v158, 4, v2')
    wd_addr(a, 157, 158, 154, 155, 156, 159)
    a(f's_cmp_lt_u32 s32, 540\ns_cselect_b32 s34, 0, {OOB}')
    for r in (154, 155, 156): a(f'v_or_b32 v{r}, s34, v{r}')
    tk['twd'] = wd_issue(a, WDRAW, 's32', 's54', SWD, 154, 155, st=('s42', 's43', 's44', 's45'))
    a.wait_vm(tk['th'])
    a.st('C_hret')
    for i in range(5): hround(i)
    a.wait_vm(tk['tD'])
    AD = 28
    a('v_lshl_add_u32 v21, v16, 3, v15\nv_sub_u32 v21, 15, v21')
    a('v_and_b32 v22, 1, v21\nv_lshlrev_b32 v22, 4, v22\nv_lshlrev_b32 v22, v22, v153\nv_ashrrev_i32 v21, 1, v21')
    a('s_waitcnt lgkmcnt(0)')
    for wd in range(4):
        a(f'v_cmp_eq_u32 vcc, {wd}, v21\nv_cndmask_b32 v{AD+wd}, 0, v22, vcc')
    a.st('C_hcopy')

def conv_main(a, tk):
    a(f's_lshr_b32 s42, s2, 5\ns_lshl_b32 s42, s42, 2\ns_and_b32 s43, s2, 3\ns_add_u32 s42, s42, s43\ns_lshl_b32 s42, s42, 7\ns_add_u32 s42, s42, {FT}')
    a('v_and_b32 v4, 31, v2\nv_lshlrev_b32 v4, 2, v4')
    a.poll_w0(1, 'v4', 's42', 5)
    a.st('C_tpoll')
    a(f's_add_u32 s43, s33, {UT}\ns_add_u32 s44, s35, {4*CS+512}')
    a('s_mov_b32 m0, s44')
    for i in range(4):
        tu = a(f'buffer_load_dwordx4 v3, {WS}, s43 offen offset:{1024*i} sc1 lds')
    a('s_mov_b32 s55, 0x05040100\ns_mov_b32 s56, 0x07060302')
    twst = wd_finish(a, WDRAW, 32, tk['twd'], 's54', 156, 's55', 's56')
    a.wait_vm(tu)
    a.st('C_uret')
    a('v_min_u32 v6, 47, v2\nv_lshlrev_b32 v6, 3, v6')
    a(f's_mov_b32 s45, {FW}')
    tq = a.poll1_issue(2, 'v6', 's45', 8)
    AD = 28
    A = [64, 128]; B = [96, 160]; ACC = 32
    def loads(buf):
        L = []
        for x in range(8):
            L.append(f'ds_read_b128 v[{B[buf]+4*x}:{B[buf]+4*x+3}], v19 offset:{512*x}')
            L.append(f'ds_read_b64 v[{A[buf]+4*x}:{A[buf]+4*x+1}], v18 offset:{512*x}')
            L.append(f'ds_read_b64 v[{A[buf]+4*x+2}:{A[buf]+4*x+3}], v18 offset:{512*x+8}')
        return L
    for s in loads(0): a(s)
    a('v_add_u32 v18, 64, v18\nv_subrev_u32 v19, 64, v19')
    a('s_waitcnt lgkmcnt(0)')
    for t in range(8):
        a(f'v_mfma_f32_16x16x32_bf16 v[{ACC+4*t}:{ACC+4*t+3}], v[{AD}:{AD+3}], v[{B[0]+4*t}:{B[0]+4*t+3}], 0')
    QR = 192; QLO = 208; QST = 224; LNQ = 96
    extra = {}
    q_tok = []; s_tok = []
    def ql_check():
        a.st('C_b3')
        a.poll1_check(tq, 2, 'v6', 's45', 8)
        a.st('C_fw')
    def ql_addr():
        a('v_mul_u32_u24 v24, 40960, v16\nv_lshl_add_u32 v24, v15, 4, v24')
        a(f's_mul_i32 s48, s{SW}, {16*40960}\ns_lshl_b32 s49, s2, 8\ns_add_u32 s48, s48, s49')
        a(f's_add_u32 s46, s48, {QG}\ns_add_u32 s49, s48, {YG}\ns_add_u32 s48, s48, {X1}')
        a(f's_lshl_b32 s47, s{SW}, 12\ns_add_u32 s47, s47, {QS}')
    def q_load(k):
        def f():
            if k > 0: a(f's_add_u32 s46, s46, {4*40960}')
            q_tok.append(a(f'buffer_load_dwordx4 v[{QR+4*k}:{QR+4*k+3}], v24, {WS}, s46 offen sc1'))
            s_tok.append(a(f'buffer_load_dwordx4 v[{QST+4*k}:{QST+4*k+3}], v3, {WS}, s47 offen offset:{1024*k} sc1'))
        return f
    extra[QBLK] = [ql_check, ql_addr] + [q_load(k) for k in range(4)]
    unp = []
    for k in range(4):
        unp.append(lambda k=k: a.wait_vm(s_tok[k]))
        for i in range(4*k, 4*k+4):
            unp.append(f'v_lshlrev_b32 v{QLO+i}, 16, v{QR+i}')
            unp.append(f'v_and_b32 v{QR+i}, s40, v{QR+i}')
        for tok in range(2):
            for c in range(4):
                iq = 4*k + 2*tok + (c >> 1)
                rq = (QLO+iq) if (c & 1) == 0 else (QR+iq)
                unp.append(f'v_fma_f32 v{LNQ+8*k+4*tok+c}, v{rq}, v{QST+4*k+2*tok+1}, v{QST+4*k+2*tok}')
    extra[7] = unp
    import g2g
    for i in range(5):
        L = [f's_add_u32 s81, s{SW}, {4*i}', 's_min_u32 s81, s81, 18'] + g2g.quad_dma_dyn('s81', 'v3')
        extra.setdefault(4 + i//2, []).extend(L)
    for blk in range(8):
        if blk == 7: a.st('C_b7')
        buf = blk & 1
        L = loads(buf ^ 1) if blk < 7 else []
        X = list(extra.get(blk, []))
        n = 0
        for q in range(8):
            for dl in range(8 - q):
                t = q + dl
                a(f'v_mfma_f32_16x16x32_bf16 v[{ACC+4*t}:{ACC+4*t+3}], v[{A[buf]+4*q}:{A[buf]+4*q+3}], v[{B[buf]+4*dl}:{B[buf]+4*dl+3}], v[{ACC+4*t}:{ACC+4*t+3}]')
                if n < len(L): a(L[n])
                if X and (n >= len(L) or n % 2 == 0 or len(X) > 36 - n):
                    x = X.pop(0)
                    x() if callable(x) else a(x)
                n += 1
        for x in X: x() if callable(x) else a(x)
        if blk < 7:
            a('v_add_u32 v18, 64, v18\nv_subrev_u32 v19, 64, v19')
            a('s_waitcnt lgkmcnt(0)')
    a.st('C_loop')
    a('v_lshlrev_b32 v21, 6, v15\nv_lshl_add_u32 v21, v16, 4, v21\nv_add_u32 v21, s35, v21')
    for t in range(8):
        r = ACC+4*t
        a(f'ds_write_b128 v21, v[{r}:{r+3}] offset:{1024*t}')
    a(f's_lshl_b32 s47, s{SW}, 11\ns_add_u32 s47, s47, {CONV_BASE}\nv_lshl_add_u32 v22, v2, 3, s47')
    a(f'v_add_u32 v23, {2*WLDS}, v22')
    a('s_waitcnt lgkmcnt(0)\ns_barrier')
    YV = 64
    tk = []
    for k in range(4):
        for c in range(4):
            base = 'v22' if c < 2 else 'v23'
            t = a(f'ds_read_b64 v[{YV+8*k+2*c}:{YV+8*k+2*c+1}], {base} offset:{(c&1)*WLDS + 512*k}')
        tk.append(t)
    O = 128
    for k in range(4):
        a.wait_lg(tk[k])
        for tok in range(2):
            for c in range(4):
                iq = 4*k + 2*tok + (c >> 1)
                rq = (QLO+iq) if (c & 1) == 0 else (QR+iq)
                a(f'v_fma_f32 v{rq}, v{LNQ+8*k+4*tok+c}, v{YV+8*k+2*c+tok}, v{rq}')
        o = O + 4*k
        for tok in range(2):
            for h in range(2):
                iq = 4*k + 2*tok + h
                a(f'v_cvt_pk_bf16_f32 v{o+2*tok+h}, v{QLO+iq}, v{QR+iq}')
        a(f'buffer_store_dwordx4 v[{o}:{o+3}], v24, {WS}, s48 offen sc1')
        if k < 3: a(f's_add_u32 s48, s48, {4*40960}')
    a.st('C_x1st')
    OY = 48
    for k in range(4):
        o = OY + 4*k
        for tok in range(2):
            for h in range(2):
                a(f'v_cvt_pk_bf16_f32 v{o+2*tok+h}, v{YV+8*k+4*h+tok}, v{YV+8*k+4*h+2+tok}')
    a('s_waitcnt vmcnt(0)\ns_barrier')
    a(f's_lshl_b32 s50, s2, 2\ns_add_u32 s51, s50, {FY}\ns_add_u32 s50, s50, {FX1}')
    a.flag_store('s50', 'v4', 'v5', rep=16, stride=1024)
    a.st('C_x1flag')
    if STAGE1:
        for k in range(4):
            o = OY + 4*k
            a(f'buffer_store_dwordx4 v[{o}:{o+3}], v24, {WS}, s49 offen sc1')
            if k < 3: a(f's_add_u32 s49, s49, {4*40960}')
        return
    a(f'v_mov_b32 v{g2g.YOFF}, v24\ns_mov_b32 {g2g.sYB}, s49\ns_mov_b32 {g2g.sROLE}, 1')
    g2g.l16(a)
    lab = a.newlab('nd')
    a(f's_cmp_eq_u32 s{SW}, 1\ns_cbranch_scc1 {lab}')
    a(f's_min_u32 s82, s{SW}, 1\ns_sub_u32 s82, s{SW}, s82\ns_add_u32 s82, s82, 19')
    sv = a.vm_issued
    for i in range(7):
        a('s_min_u32 s81, s82, 38')
        for x in g2g.quad_dma_dyn('s81', f'v{g2g.L16}'): a(x)
        a('s_add_u32 s82, s82, 3')
    a.vm_issued = sv
    a.label(lab)
    g2g.g1_consts(a)

def allred_rows(a, regs, tmp):
    for r in regs:
        a(f'v_mov_b32 {tmp}, {r}\nv_permlane16_swap_b32 {tmp}, {r}\nv_add_f32 {r}, {r}, {tmp}')
    for r in regs:
        a(f'v_mov_b32 {tmp}, {r}\nv_permlane32_swap_b32 {tmp}, {r}\nv_add_f32 {r}, {r}, {tmp}')

QR0 = 164
QS_LDS = 0x15000
PR, PO, PCS, PONE = 20, 100, 132, 204
SG, SU, SDN, SQ = 8, 12, 16, 20

QG_LDS = 0
QRAW = 164
def qg_issue(a):
    a(f's_mul_i32 s29, s28, 40960\ns_mul_i32 s30, s{SW}, 10240\ns_add_u32 s29, s29, s30')
    a('v_lshlrev_b32 v13, 4, v2')
    tk = []
    for i in range(10):
        if i % 4 == 0 and i > 0: a('s_add_u32 s29, s29, 4096')
        tk.append(a(f'buffer_load_dwordx4 v[{QRAW+4*i}:{QRAW+4*i+3}], v13, s[{SQ}:{SQ+3}], s29 offen offset:{1024*(i&3)}'))
    return tk

def qg_stage(a, tk):
    a(f's_lshl_b32 s30, s{SW}, 3\ns_movk_i32 s31, 205')
    for i in range(10):
        a(f'v_add_u32 v14, {64*i}, v2\nv_mul_u32_u24 v17, s31, v14\nv_lshrrev_b32 v17, 14, v17')
        a('v_mul_u32_u24 v18, 80, v17\nv_sub_u32 v14, v14, v18\nv_add_u32 v17, s30, v17')
        a('v_lshrrev_b32 v18, 1, v17\nv_xor_b32 v18, v18, v14\nv_and_b32 v18, 15, v18\nv_lshlrev_b32 v18, 4, v18')
        a('v_and_b32 v17, 1, v17\nv_lshl_add_u32 v18, v17, 3, v18\nv_lshl_add_u32 v18, v14, 9, v18')
        a.wait_vm(tk[i])
        a(f'ds_write_b64 v18, v[{QRAW+4*i}:{QRAW+4*i+1}] offset:{QG_LDS}')
        a(f'ds_write_b64 v18, v[{QRAW+4*i+2}:{QRAW+4*i+3}] offset:{QG_LDS+256}')
    a(f's_mul_i32 s30, s{SW}, 40\nv_add_u32 v14, s30, v4')
    a('s_waitcnt lgkmcnt(0)\ns_barrier')
    tr = []
    for i in range(10):
        a(f'v_add_u32 v17, {4*i}, v14\nv_lshrrev_b32 v18, 1, v17\nv_xor_b32 v18, v18, v3\nv_and_b32 v18, 15, v18\nv_lshlrev_b32 v18, 4, v18\nv_lshl_add_u32 v18, v17, 8, v18')
        tr.append(a(f'ds_read_b128 v[{QR0+4*i}:{QR0+4*i+3}], v18 offset:{QG_LDS}'))
    return tr

def qg_finish(a, tk):
    a(f's_mul_i32 s29, s28, 40960\ns_mul_i32 s30, s{SW}, {40*256}\ns_add_u32 s29, s29, s30\ns_add_u32 s29, s29, {QG}')
    a('v_lshlrev_b32 v15, 4, v3\nv_lshl_add_u32 v15, v4, 8, v15')
    S0 = 208
    tr = qg_stage(a, tk)
    for i in range(10):
        a.wait_lg(tr[i])
        if i % 4 == 0 and i > 0: a('s_add_u32 s29, s29, 4096')
        a(f'buffer_store_dwordx4 v[{QR0+4*i}:{QR0+4*i+3}], v15, {WS}, s29 offen offset:{1024*(i&3)} sc1')
        for h in range(2):
            for tok in range(2):
                r = QR0+4*i+2*tok+h
                s_, q_ = S0+2*tok, S0+1+2*tok
                first = (i == 0 and h == 0)
                a(f'v_dot2_f32_bf16 v{s_}, v{r}, s38, {"0" if first else f"v{s_}"}')
                a(f'v_dot2_f32_bf16 v{q_}, v{r}, v{r}, {"0" if first else f"v{q_}"}')
    allred_rows(a, [f'v{S0+i}' for i in range(4)], 'v212')
    a(f's_lshl_b32 s31, s{SW}, 8\ns_add_u32 s31, s31, {QS_LDS}\nv_lshlrev_b32 v16, 4, v3\nv_add_u32 v17, s31, v16')
    a(f'v_add_u32 v18, {QS_LDS}, v16')
    a(f'ds_write_b128 v17, v[{S0}:{S0+3}]\ns_waitcnt lgkmcnt(0)\ns_barrier')
    for w in range(4): t = a(f'ds_read_b128 v[{216+4*w}:{219+4*w}], v18 offset:{256*w}')
    a.wait_lg(t)
    for e in range(4):
        a(f'v_add_f32 v{216+e}, v{216+e}, v{220+e}\nv_add_f32 v{224+e}, v{224+e}, v{228+e}\nv_add_f32 v{S0+e}, v{216+e}, v{224+e}')
    a('s_mov_b32 s33, 0x3acccccd\ns_mov_b32 s34, 0x3727c5ac')
    for tok in range(2):
        m, q_ = S0+2*tok, S0+1+2*tok
        a(f'v_mul_f32 v{m}, s33, v{m}\nv_mul_f32 v{q_}, s33, v{q_}\nv_fma_f32 v{q_}, -v{m}, v{m}, v{q_}\nv_max_f32 v{q_}, 0, v{q_}\nv_add_f32 v{q_}, s34, v{q_}\nv_rsq_f32 v{q_}, v{q_}')
        a(f's_nop 0\nv_mul_f32 v{m}, v{m}, v{q_}\nv_sub_f32 v{m}, 0, v{m}')
    a(f's_lshl_b32 s31, s28, 8\ns_add_u32 s31, s31, {QS}')
    lab = a.newlab('qs')
    a(f's_cmp_lg_u32 s{SW}, 0\ns_cbranch_scc1 {lab}')
    a('s_mov_b64 exec, 0xffff')
    a(f'buffer_store_dwordx4 v[{S0}:{S0+3}], v16, {WS}, s31 offen sc1')
    a.vm_issued -= 1
    a('s_mov_b64 exec, -1')
    a.label(lab)

def p_perms(a, t, ob):
    r = PR+16*t; O = PO+16*ob
    for c in range(4):
        for p in range(4):
            sel = 's36' if (c & 1) == 0 else 's37'
            a(f'v_perm_b32 v{O+4*c+p}, v{r+2*(2*p+1)+(c>>1)}, v{r+2*(2*p)+(c>>1)}, {sel}')

def w1_issue(a, t, T, masked=False):
    a(f's_mul_i32 s24, {T}, 3277\ns_lshr_b32 s24, s24, 16\ns_mul_i32 s26, s24, 20\ns_sub_u32 s26, {T}, s26')
    a(f's_cmp_ge_u32 s24, 27\ns_cselect_b32 s{SG}, s{SU}, s{SGS}\ns_cselect_b32 s{SG+1}, s{SU+1}, s{SGS+1}')
    a('s_cselect_b32 s29, 27, 0\ns_cselect_b32 s30, 512, 0\ns_sub_u32 s24, s24, s29')
    a(f's_mul_i32 s31, s26, {32*3456}\ns_lshl_b32 s32, s24, 7\ns_add_u32 s31, s31, s32')
    v0 = PMSK if masked else 5
    for e in range(8):
        tk = a(f'buffer_load_dwordx2 v[{PR+16*t+2*e}:{PR+16*t+2*e+1}], v{v0+(e>>1)}, s[{SG}:{SG+3}], s31 offen offset:{3456*(e&1)}')
    a(f's_mul_i32 s31, s24, {4*40960}\ns_lshl_b32 s32, s26, 11\ns_add_u32 s31, s31, s32\ns_add_u32 s31, s31, s30\ns_add_u32 s{41+t}, s31, {W1P}')
    a(f's_mul_i32 s31, s26, 13824\ns_lshl_b32 s32, s24, 9\ns_add_u32 s31, s31, s32\ns_lshr_b32 s30, s30, 3\ns_add_u32 s31, s31, s30\ns_add_u32 s{47+t}, s31, {CSP}')
    return tk

def w1_finish(a, t, tk, ob, masked=False):
    a.wait_vm(tk)
    p_perms(a, t, ob)
    O = PO+16*ob; C = PCS + 16*ob
    vd = PMSK+4 if masked else 9
    vc = PMSK+5 if masked else 19
    vd2 = PMSK+6 if masked else 10
    for c in range(4):
        a(f'v_mfma_f32_16x16x32_bf16 v[{C+4*c}:{C+4*c+3}], v[{O+4*c}:{O+4*c+3}], v[{PONE}:{PONE+3}], 0')
        a(f'buffer_store_dwordx4 v[{O+4*c}:{O+4*c+3}], v{vd if c < 2 else vd2}, {WS}, s{41+t} offen offset:{128*(c&1)+256*(c>>1)} sc1')
    a('s_mov_b32 exec_lo, 0x00010001\ns_mov_b32 exec_hi, 0x00010001')
    for c in range(4):
        a(f'buffer_store_dwordx4 v[{C+4*c}:{C+4*c+3}], v{vc}, {WS}, s{47+t} offen offset:{16*c} sc1')
    a('s_mov_b64 exec, -1')

def wd_addr(a, vl_quad, vl_grp, vsa, vsb, vd, vt):
    a(f'v_lshrrev_b32 v{vsa}, 1, v{vl_grp}\nv_lshlrev_b32 v{vsa}, 4, v{vsa}\nv_and_b32 v{vt}, 1, v{vl_grp}\nv_lshl_add_u32 v{vsa}, v{vt}, 2, v{vsa}')
    a(f'v_mul_u32_u24 v{vsa}, 1280, v{vsa}\nv_lshl_add_u32 v{vsa}, v{vl_quad}, 3, v{vsa}\nv_add_u32 v{vsb}, 10240, v{vsa}')
    a(f'v_and_b32 v{vd}, 3, v{vl_quad}\nv_lshlrev_b32 v{vd}, 4, v{vd}\nv_lshl_add_u32 v{vd}, v{vl_grp}, 8, v{vd}')
    a(f'v_lshrrev_b32 v{vt}, 2, v{vl_quad}\nv_mul_u32_u24 v{vt}, 55296, v{vt}\nv_add_u32 v{vd}, v{vt}, v{vd}')

def wd_issue(a, raw, T, sdst, srd, vsa, vsb, st=('s29', 's30', 's31', 's32')):
    x, y, z, u = st
    a(f's_min_u32 {x}, {T}, 539\ns_mul_i32 {y}, {x}, 6554\ns_lshr_b32 {y}, {y}, 16')
    a(f's_mul_i32 {z}, {y}, 10\ns_sub_u32 {x}, {x}, {z}')
    a(f's_mul_i32 {z}, {y}, {32*1280}\ns_lshl_b32 {u}, {x}, 7\ns_add_u32 {z}, {z}, {u}')
    for e in range(8):
        tk = a(f'buffer_load_dwordx2 v[{raw+2*e}:{raw+2*e+1}], v{(vsa, vsb)[e>>2]}, s[{srd}:{srd+3}], {z} offen offset:{1280*(e&3)}')
    a(f's_mul_i32 {z}, {x}, {4*55296}\ns_lshl_b32 {u}, {y}, 10\ns_add_u32 {z}, {z}, {u}\ns_add_u32 {sdst}, {z}, {WDP}')
    return tk

def wd_finish(a, raw, O, tk, sdst, vd, sel0, sel1):
    a.wait_vm(tk)
    for c in range(4):
        for p in range(4):
            sel = sel0 if (c & 1) == 0 else sel1
            a(f'v_perm_b32 v{O+4*c+p}, v{raw+2*(2*p+1)+(c>>1)}, v{raw+2*(2*p)+(c>>1)}, {sel}')
    for c in range(4):
        t = a(f'buffer_store_dwordx4 v[{O+4*c}:{O+4*c+3}], v{vd}, {WS}, {sdst} offen offset:{64*c} sc1')
    return t

SGS = 52
PMSK = 236
def phase_P(a):
    a(f's_mov_b32 s{SGS}, s{SG}\ns_mov_b32 s{SGS+1}, s{SG+1}')
    a('s_sub_u32 s28, s2, 160')
    a('v_and_b32 v2, 63, v0\nv_and_b32 v3, 15, v2\nv_lshrrev_b32 v4, 4, v2')
    a('s_mov_b32 s36, 0x05040100\ns_mov_b32 s37, 0x07060302\ns_mov_b32 s38, 0x3f803f80')
    a(f's_lshl_b32 s56, s28, 2\ns_add_u32 s56, s56, {FW}')
    def w1_addr():
        a('v_mul_u32_u24 v5, 27648, v4\nv_lshl_add_u32 v5, v3, 3, v5')
        a('v_add_u32 v6, 6912, v5\nv_add_u32 v7, 13824, v5\nv_add_u32 v8, 20736, v5')
        a('v_and_b32 v12, 3, v3\nv_lshlrev_b32 v12, 4, v12\nv_and_b32 v19, 1, v4\nv_lshl_add_u32 v12, v19, 6, v12')
        a('v_lshrrev_b32 v19, 1, v4\nv_lshl_add_u32 v12, v19, 10, v12')
        a('v_lshrrev_b32 v19, 2, v3\nv_mul_u32_u24 v9, 40960, v19\nv_add_u32 v9, v9, v12\nv_xor_b32 v10, 64, v9')
        a('v_lshlrev_b32 v19, 7, v4')
        for i in range(4): a(f'v_mov_b32 v{PONE+i}, s38')
    a('s_cmp_ge_u32 s28, 64\ns_cbranch_scc1 L_pp_nq')
    qtk = qg_issue(a)
    w1_addr()
    a.wait_vm(qtk[QDELAY])
    a.st('P_qret')
    a(f's_lshl_b32 s25, s28, 2\ns_add_u32 s25, s25, s{SW}\ns_lshl_b32 s25, s25, 1')
    tA = [w1_issue(a, 0, 's25')]
    a('s_add_u32 s25, s25, 1')
    tA.append(w1_issue(a, 1, 's25'))
    a.st('P_issued')
    qg_finish(a, qtk)
    a.st('P_qst')
    for t in range(2): w1_finish(a, t, tA[t], t & 1)
    a('s_branch L_pp_end')
    a.label('L_pp_nq'); a.reset_counts()
    w1_addr()
    a(f's_sub_u32 s25, s28, 64\ns_mul_i32 s25, s25, 18\ns_add_u32 s25, s25, 512')
    a(f's_mul_i32 s33, s{SW}, 5\ns_cmp_eq_u32 s{SW}, 3\ns_cselect_b32 s34, 1, 0\ns_sub_u32 s33, s33, s34\ns_add_u32 s25, s25, s33')
    a(f's_add_u32 s33, s25, 3\ns_cmp_lt_u32 s33, 1080\ns_cselect_b32 s35, 0, {OOB}')
    for r in (5, 6, 7, 8, 9, 10, 19): a(f'v_or_b32 v{r}, s35, v{r}')
    a(f's_add_u32 s33, s25, 4\ns_cmp_lt_u32 s33, 1080\ns_cselect_b32 s35, 0, {OOB}\ns_cmp_lt_u32 s{SW}, 2\ns_cselect_b32 s35, s35, {OOB}')
    for i, r in enumerate((5, 6, 7, 8, 9, 19, 10)): a(f'v_or_b32 v{PMSK+i}, s35, v{r}')
    tC = []
    def c_issue(t):
        if t >= 5: return
        a(f's_add_u32 s33, s25, {t}\ns_min_u32 s33, s33, 1079')
        tC.append(w1_issue(a, t, 's33', masked=(t == 4)))
    for t in range(CDEPTH): c_issue(t)
    a.st('P_issued')
    for t in range(5):
        a.wait_vm(tC[t])
        c_issue(t + CDEPTH)
        w1_finish(a, t, tC[t], t & 1, masked=(t == 4))
    a.label('L_pp_end')
    a.st('P_wst')
    a('s_waitcnt lgkmcnt(0)')
    tag_from_epoch(a)
    a('s_waitcnt vmcnt(0)\ns_barrier')
    a.reset_counts()
    a.flag_store('s56', 'v16', 'v17')
    a.st('P_done')
    if STAGE1: return
    import g2g
    a(f's_mov_b32 {g2g.sROLE}, 0')
    g2g.l16(a)
    a(f'v_lshrrev_b32 v88, 4, v{g2g.L16}\nv_min_u32 v88, 47, v88\nv_lshlrev_b32 v88, 3, v88\ns_mov_b32 s45, {FW}')
    a.poll_w0(2, 'v88', 's45', 84)
    a.st('P_fw')
    for i in range(10):
        a(f's_add_u32 s81, s{SW}, {4*i}\ns_min_u32 s81, s81, 38')
        for x in g2g.quad_dma_dyn('s81', f'v{g2g.L16}'): a(x)
    g2g.g1_consts(a)
```

```python
from asmlib import Asm

S, D, F = 2048, 640, 1728
FLG  = 0x0000000
E_OFF = FLG + 0x0
FT   = FLG + 0x1000
FW   = FLG + 0x2000
FY   = FLG + 0x2400
FWD  = FLG + 0x2800
FH   = [FLG + 0x3000, FLG + 0x5000]
FX3  = FLG + 0xC000
FX1  = FLG + 0x8000
ST   = [0x2440000, 0x2460000]
XS   = FLG + 0x20000
STAMPS = FLG + 0x80000
UT   = 0x0100000
QG   = 0x0380000
QS   = 0x0600000
X1   = 0x0880000
YG   = 0x0B00000
X3   = 0x0D80000
W1P  = 0x1000000
WDP  = 0x1440000
CSP  = 0x1660000
H0   = 0x16C0000
H1   = 0x1D80000
WS_USED = 0x2480000
HB = [H0, H1]
OOB = 0x80000000
LDS_BYTES = 163840

KA = dict(q=0, k=8, v=16, shk=24, ssmk=32, ssmD=40, x=48, wg=56, wu=64, wd=72, out=80, dbg=88, ws=96)
SZ = dict(q=S*D*2, k=S*D*2, v=S*D*2, shk=D*8, ssmk=D*S*2, ssmD=D*2, wg=D*F*2, wu=D*F*2, wd=D*F*2, out=S*D*2, dbg=256, ws=WS_USED)

SWS = 4
STAG = 3
SW = 59
POLL_LIMIT = 20000
WS = f's[{SWS}:{SWS+3}]'

class K(Asm):
    def __init__(self, timing=False):
        super().__init__()
        self.timing = timing
        self.nst = 0
        self.stnames = []
        self.tail = []
        self.uid = 0
    def newlab(self, p):
        self.uid += 1
        return f'L_{p}_{self.uid}'
    def st(self, name):
        if not self.timing: return
        if name in self.stnames: i = self.stnames.index(name)
        else:
            i = len(self.stnames); self.stnames.append(name)
        assert i < 64, name
        import os
        op = 's_memtime' if os.environ.get('STCYC') else 's_memrealtime'
        self(f'{op} s[60:61]\ns_waitcnt lgkmcnt(0)\nv_writelane_b32 v255, s60, {i}')
        self.lg_done = self.lg_issued
    def st_init(self):
        if not self.timing: return
        self('v_mov_b32 v255, 0')
    def st_flush(self, layer, vt='v254'):
        if not self.timing: return
        a = self
        a(f's_lshl_b32 s60, s2, 2\ns_add_u32 s60, s60, s{SW}\ns_lshl_b32 s60, s60, 9\ns_add_u32 s60, s60, {STAMPS}')
        a(f's_add_u32 s60, s60, {layer*256 if isinstance(layer, int) else layer}')
        a(f'v_mbcnt_lo_u32_b32 {vt}, -1, 0\nv_mbcnt_hi_u32_b32 {vt}, -1, {vt}\nv_lshlrev_b32 {vt}, 2, {vt}')
        a(f'buffer_store_dword v255, {vt}, {WS}, s60 offen')
    def srd_load(self, r, name):
        self(f's_load_dwordx2 s[{r}:{r+1}], s[0:1], {KA[name]}')
    def srd_fin(self, r, name):
        self(f's_mov_b32 s{r+2}, {SZ[name]}\ns_mov_b32 s{r+3}, 0x00020000')
    def flag_store(self, soff, vz, vt, rep=1, stride=0, wave=0):
        a = self
        lab = a.newlab('fs')
        a(f's_cmp_lg_u32 s{SW}, {wave}\ns_cbranch_scc1 {lab}')
        if rep == 1:
            a(f'v_mov_b32 {vz}, 0')
        else:
            a(f'v_mbcnt_lo_u32_b32 {vz}, -1, 0\nv_mul_u32_u24 {vz}, {stride}, {vz}')
        a(f'v_mov_b32 {vt}, s{STAG}\ns_mov_b64 exec, {(1 << rep) - 1}')
        a(f'buffer_store_dword {vt}, {vz}, {WS}, {soff} offen sc1')
        a.vm_issued -= 1
        a('s_mov_b64 exec, -1')
        a.label(lab)
    def poll_w0(self, nd, vaddr, soff, vd, wave=1, **kw):
        a = self
        lab = a.newlab('pw')
        sv = (a.vm_issued, a.vm_done)
        a(f's_cmp_lg_u32 s{SW}, {wave}\ns_cbranch_scc1 {lab}')
        a.poll(nd, vaddr, soff, vd, **kw)
        a.label(lab)
        a.vm_issued, a.vm_done = sv
        a('s_barrier')
    def poll1_issue(self, nd, vaddr, soff, vd, wave=1, off=0):
        a = self
        lab = a.newlab('p1')
        a(f's_cmp_lg_u32 s{SW}, {wave}\ns_cbranch_scc1 {lab}')
        a.poll_issue(nd, vaddr, soff, vd, off)
        a.vm_issued -= 1
        a.label(lab)
        return a.vm_issued
    def poll1_check(self, mark, nd, vaddr, soff, vd, wave=1, barrier=True, **kw):
        a = self
        lab = a.newlab('p1c')
        sv = (a.vm_issued, a.vm_done)
        a(f's_cmp_lg_u32 s{SW}, {wave}\ns_cbranch_scc1 {lab}')
        n = min(a.vm_issued - mark, 63)
        a(f's_waitcnt vmcnt({n})')
        a.vm_done = sv[1]
        a.poll_check(None, nd, vaddr, soff, vd, **kw)
        a.label(lab)
        a.vm_issued, a.vm_done = sv
        if barrier: a('s_barrier')
    def _cmp(self, nd, vd):
        a = self
        if nd == 1:
            a(f'v_cmp_ne_u32 vcc, s{STAG}, v{vd}')
        else:
            for i in range(nd): a(f'v_xor_b32 v{vd+i}, s{STAG}, v{vd+i}')
            if nd == 2: a(f'v_or_b32 v{vd}, v{vd}, v{vd+1}')
            else: a(f'v_or3_b32 v{vd}, v{vd}, v{vd+1}, v{vd+2}\nv_or_b32 v{vd}, v{vd}, v{vd+3}')
            a(f'v_cmp_ne_u32 vcc, 0, v{vd}')
    def poll_issue(self, nd, vaddr, soff, vd, off=0):
        op = {1: 'buffer_load_dword', 2: 'buffer_load_dwordx2', 4: 'buffer_load_dwordx4'}[nd]
        reg = f'v{vd}' if nd == 1 else f'v[{vd}:{vd+nd-1}]'
        o = f' offset:{off}' if off else ''
        return self(f'{op} {reg}, {vaddr}, {WS}, {soff} offen{o} sc1')
    def poll_check(self, tok, nd, vaddr, soff, vd, scnt='s57', off=0, cmp=None):
        a = self
        cmp = cmp or (lambda: a._cmp(nd, vd))
        lspin = a.newlab('spin'); lback = a.newlab('back')
        a.wait_vm(tok)
        cmp()
        a(f's_cbranch_vccnz {lspin}')
        a.label(lback)
        def tail():
            a.label(lspin)
            a(f's_mov_b32 {scnt}, {POLL_LIMIT}')
            lp = a.newlab('lp')
            a.label(lp)
            sv = (a.vm_issued, a.vm_done, a.lg_issued, a.lg_done)
            a.poll_issue(nd, vaddr, soff, vd, off)
            a('s_waitcnt vmcnt(0)')
            cmp()
            a(f's_cbranch_vccz {lback}')
            a(f's_sub_u32 {scnt}, {scnt}, 1\ns_cbranch_scc0 {lp}')
            a(f's_branch {lback}')
        a.tail.append(tail)
    def poll(self, nd, vaddr, soff, vd, **kw):
        t = self.poll_issue(nd, vaddr, soff, vd, kw.get('off', 0))
        self.poll_check(t, nd, vaddr, soff, vd, **kw)
    def emit_tail(self):
        for t in self.tail: t()
        self.tail = []
```

```python
from g2base import *
import os
SH = '' if os.environ.get('PLAIN') else ' sc1'

sC, sS, sU0, sW1, sTB, sCG, sROLE = 's64', 's65', 's66', 's67', 's68', 's69', 's70'
sW4K = 's71'
sYB = 's73'
L16, WA, HOFF, NM, K1, IR2, CSR, CSA, YOFF = 224, 225, 228, 229, 230, 231, 232, 248, 249
XF = 64
WB = 232
NB, AHEAD = 6, 4
CS_LDS = 159744
RED = 98304
SOUT = 8

def role_setup(a):
    a('s_and_b32 s62, s2, 7\ns_lshr_b32 s63, s2, 3')
    a(f's_lshr_b32 {sC}, s62, 1\ns_lshl_b32 {sC}, {sC}, 2\ns_lshr_b32 {sS}, s63, 3\ns_add_u32 {sC}, {sC}, {sS}')
    a(f's_lshr_b32 {sTB}, s62, 1\ns_lshl_b32 {sTB}, {sTB}, 3\ns_add_u32 {sTB}, {sTB}, {sS}')
    a(f's_and_b32 s62, s62, 1\ns_lshl_b32 {sCG}, s62, 2\ns_add_u32 {sTB}, {sTB}, {sCG}')
    a(f's_and_b32 {sCG}, s63, 7\ns_lshl_b32 {sS}, s62, 3\ns_add_u32 {sS}, {sS}, {sCG}')
    a(f's_mul_i32 {sU0}, {sS}, 7\ns_min_u32 {sU0}, {sU0}, 101\ns_mul_i32 {sW1}, {sU0}, 40960\ns_add_u32 {sW1}, {sW1}, {W1P}')
    a(f's_lshl_b32 {sW4K}, s{SW}, 12')

def l16(a):
    a(f'v_mbcnt_lo_u32_b32 v{L16}, -1, 0\nv_mbcnt_hi_u32_b32 v{L16}, -1, v{L16}\nv_lshlrev_b32 v{L16}, 4, v{L16}')

def quad_src(g):
    return (g % 3)*40960 + (g//3)*4096 if g < 30 else 122880 + (g-30)*4096

def quad_dma_dyn(sg, vl, t=('s74', 's75', 's76')):
    x, y, z = t
    L = [f's_mul_i32 {x}, {sg}, 21846', f's_lshr_b32 {x}, {x}, 16', f's_mul_i32 {y}, {x}, 3', f's_sub_u32 {y}, {sg}, {y}',
         f's_mul_i32 {y}, {y}, 40960', f's_lshl_b32 {x}, {x}, 12', f's_add_u32 {x}, {x}, {y}',
         f's_lshl_b32 {z}, {sg}, 12',
         f's_cmp_lt_u32 {sg}, 30', f's_cselect_b32 {x}, {x}, {z}', f's_add_u32 {x}, {x}, {sW1}', f's_mov_b32 m0, {z}']
    for i in range(4):
        L.append(f'buffer_load_dwordx4 {vl}, {WS}, {x} offen offset:{1024*i}{SH} lds')
    return L

def cs_issue(a, vt=250):
    a(f'v_lshrrev_b32 v{vt}, 4, v{L16}')
    a(f'v_bfe_u32 v{vt+1}, v{vt}, 3, 1\ns_lshl_b32 s74, s{SW}, 1\nv_add_u32 v{vt+1}, s74, v{vt+1}\nv_min_u32 v{vt+1}, 6, v{vt+1}')
    a(f'v_and_b32 v{vt+2}, 7, v{vt}\nv_lshlrev_b32 v{vt+2}, 4, v{vt+2}')
    a(f'v_lshl_add_u32 v{vt+3}, v{vt+1}, 7, v{vt+2}')
    a(f'v_lshrrev_b32 v{vt}, 4, v{vt}\nv_mul_u32_u24 v{vt}, {5*13824}, v{vt}\nv_add_u32 v{vt}, v{vt}, v{vt+3}')
    a(f's_lshl_b32 s74, {sU0}, 7\ns_add_u32 s74, s74, {CSP}')
    t = None
    for i in range(5):
        t = a(f'buffer_load_dwordx4 v[{64+4*i}:{67+4*i}], v{vt}, {WS}, s74 offen sc1')
        if i < 4: a('s_add_u32 s74, s74, 13824')
    a(f'v_bfe_u32 v{vt+3}, v{vt+2}, 6, 1\nv_lshlrev_b32 v{vt+3}, 4, v{vt+3}\nv_lshl_add_u32 v{vt+3}, v{vt+1}, 7, v{vt+3}')
    a(f'v_bfe_u32 v{vt+2}, v{vt+2}, 4, 2\nv_lshl_add_u32 v{vt+3}, v{vt+2}, 2, v{vt+3}\nv_add_u32 v{vt+3}, {CS_LDS}, v{vt+3}')
    return t

def cs_finish(a, t, vt=250):
    a.wait_vm(t)
    for i in range(1, 5):
        for e in range(4): a(f'v_add_f32 v{64+e}, v{64+e}, v{64+4*i+e}')
    for r in range(64, 68):
        a(f'v_mov_b32 v{vt}, v{r}\nv_permlane16_swap_b32 v{vt}, v{r}\nv_add_f32 v{r}, v{r}, v{vt}')
    for r in range(64, 68):
        a(f'v_mov_b32 v{vt}, v{r}\nv_permlane32_swap_b32 v{vt}, v{r}\nv_add_f32 v{r}, v{r}, v{vt}')
    for q3 in range(4):
        a(f'ds_write_b32 v{vt+3}, v{64+q3} offset:{(q3&1)*64 + (q3>>1)*32}')

def g1_consts(a):
    t = 250
    a(f'v_lshrrev_b32 v{t}, 4, v{L16}')
    a(f'v_bfe_u32 v{t+1}, v{t}, 2, 1\nv_bfe_u32 v{t+2}, v{t}, 4, 1\nv_lshl_add_u32 v{t+1}, v{t+2}, 1, v{t+1}')
    a(f'v_bfe_u32 v{t+2}, v{t}, 1, 1\nv_lshrrev_b32 v{t+3}, 5, v{t}\nv_xor_b32 v{t+3}, v{t+3}, v{t+2}\nv_lshl_add_u32 v{t+1}, v{t+3}, 2, v{t+1}')
    a(f'v_lshl_add_u32 v{t+1}, v{t+2}, 4, v{t+1}\nv_and_b32 v{t+2}, 1, v{t}\nv_lshl_add_u32 v{t+1}, v{t+2}, 3, v{t+1}')
    a(f'v_bfe_u32 v{t+2}, v{t}, 3, 1\nv_lshl_add_u32 v{t+1}, v{t+2}, 5, v{t+1}')
    a(f'v_lshlrev_b32 v{WA}, 4, v{t+1}\nv_add_u32 v{WA+1}, 0x10000, v{WA}\nv_add_u32 v{WA+2}, 0x20000, v{WA}')
    a(f'v_and_b32 v{t+1}, 7, v{t}\nv_bfe_u32 v{t+2}, v{t}, 4, 1\nv_lshl_add_u32 v{t+1}, v{t+1}, 1, v{t+2}\nv_lshlrev_b32 v{t+1}, 4, v{t+1}')
    a(f'v_bfe_u32 v{t+2}, v{t}, 3, 1\nv_mul_u32_u24 v{t+2}, 55296, v{t+2}\nv_add_u32 v{t+1}, v{t+1}, v{t+2}')
    a(f'v_lshrrev_b32 v{t+2}, 5, v{t}\nv_lshl_add_u32 v{HOFF}, v{t+2}, 8, v{t+1}')
    a(f'v_lshlrev_b32 v{CSA}, 6, v{t+2}\nv_add_u32 v{CSA}, {CS_LDS}, v{CSA}')

def g1_seq():
    seq = []
    for ks in range(40):
        for u in range(3): seq.append((u, ks, 3*(ks >> 2) + u))
    for u in range(3, 7):
        for ks in range(40): seq.append((u, ks, 30 + 10*(u-3) + (ks >> 2)))
    return seq

def lds_addr(off):
    return (f'v{WA + (off >> 16)}', off & 0xffff)

def guarded(a, cond_reg, fn):
    lab = a.newlab('gd')
    a(f's_cmp_eq_u32 {cond_reg}, 0\ns_cbranch_scc1 {lab}')
    sv = a.vm_issued
    fn()
    a.vm_issued = sv
    a.label(lab)

def poll2(a, toks, regs, issue, cmp):
    lspin = a.newlab('spin'); lback = a.newlab('back')
    a.wait_vm(toks)
    cmp()
    a(f's_cbranch_vccnz {lspin}')
    a.label(lback)
    def tail():
        a.label(lspin)
        a(f's_mov_b32 s57, {POLL_LIMIT}')
        lp = a.newlab('lp'); a.label(lp)
        issue()
        a('s_waitcnt vmcnt(0)')
        cmp()
        a(f's_cbranch_vccz {lback}')
        a(f's_sub_u32 s57, s57, 1\ns_cbranch_scc0 {lp}')
        a(f's_branch {lback}')
    a.tail.append(tail)

NXUP = int(os.environ.get('NXUP', 16))
NWDG1 = int(os.environ.get('NWDG1', 30))
EPB = int(os.environ.get('EPB', 3))

def wd_list():
    return [(k, cb) for k in range(14) for cb in range(5)]
def wd_reg(k, cb):
    i = 5*k + cb
    return f'a[{4*i}:{4*i+3}]' if i < 58 else f'v[{4*(i-58)}:{4*(i-58)+3}]'
sWD = ['s84', 's85', 's86', 's87', 's88']
def wd_bases(a):
    a(f's_mul_i32 s79, s{SW}, 14\ns_cmp_eq_u32 s{SW}, 3\ns_cselect_b32 s74, 1, 0\ns_sub_u32 s79, s79, s74\ns_lshl_b32 s79, s79, 10')
    a(f's_mul_i32 s74, {sCG}, {5*55296}\ns_add_u32 s79, s79, s74\ns_add_u32 {sWD[0]}, s79, {WDP}')
    for cb in range(1, 5): a(f's_add_u32 {sWD[cb]}, {sWD[cb-1]}, 55296')
def wd_load(k, cb, vo=None):
    L = []
    L.append(f'buffer_load_dwordx4 {wd_reg(k, cb)}, {vo or "v%d" % L16}, {WS}, {sWD[cb]} offen offset:{1024*(k&3)}{SH}')
    if k & 3 == 3: L.append(f's_add_u32 {sWD[cb]}, {sWD[cb]}, 4096')
    return L

def G1(a, layer):
    X = X1 if layer == 0 else X3
    H = HB[layer]
    seq = g1_seq()
    tg = f'G1{layer}_'
    a.st(tg + 'go')
    a(f's_lshl_b32 s72, {sC}, 2\ns_add_u32 s72, s72, s{SW}\ns_mul_i32 s72, s72, 40960\ns_add_u32 s72, s72, {X}')
    xt = []
    def xload():
        ks = len(xt)
        if ks % 4 == 0 and ks > 0: a('s_add_u32 s72, s72, 4096')
        xt.append(a(f'buffer_load_dwordx4 v[{XF+4*ks}:{XF+4*ks+3}], v{L16}, {WS}, s72 offen offset:{1024*(ks&3)}{SH}'))
    NX0 = 4
    for ks in range(NX0): xload()
    SR = CSR
    a(f'v_lshrrev_b32 v250, 6, v{L16}\nv_lshlrev_b32 v250, 8, v250\nv_and_b32 v251, 0x30, v{L16}\nv_or_b32 v250, v250, v251')
    a(f'v_mov_b32 v252, {(OOB)}\nv_cmp_le_u32 vcc, 0x200, v{L16}\nv_cndmask_b32 v251, 0, v252, vcc\nv_or_b32 v251, v251, v250')
    a(f's_lshr_b32 s74, {sS}, 2\ns_lshl_b32 s75, {sC}, 2\ns_add_u32 s74, s74, s75\ns_mul_i32 s74, s74, 40960')
    a(f's_and_b32 s75, {sS}, 3\ns_lshl_b32 s75, s75, 6\ns_add_u32 s74, s74, s75\ns_mul_i32 s75, s{SW}, 10240\ns_add_u32 s74, s74, s75\ns_add_u32 s74, s74, {X}')
    stt = []
    for i in range(3):
        stt.append(a(f'buffer_load_dwordx4 v[{SR+4*i}:{SR+4*i+3}], v{251 if i == 2 else 250}, {WS}, s74 offen{SH}'))
        if i < 2: a('s_add_u32 s74, s74, 4096')
    for ks in range(NX0, NXUP): xload()
    rd_tok = {}
    def rd(s):
        if s >= len(seq): return
        u, ks, g = seq[s]
        reg, off = lds_addr((g % 39)*4096 + (ks & 3)*1024)
        b = WB + 4*(s % NB)
        rd_tok[s] = a(f'ds_read_b128 a[{b}:{b+3}], {reg} offset:{off}')
    for s in range(AHEAD): rd(s)
    a(f's_lshl_b32 s75, {sC}, 2\ns_add_u32 s75, s75, s{SW}\ns_mul_i32 s75, s75, 110592\ns_lshl_b32 s76, {sU0}, 9\ns_add_u32 s75, s75, s76\ns_add_u32 s77, s75, {H}')
    a(f's_mov_b32 s82, {sW4K}\ns_add_u32 s83, {sW4K}, {quad_src(39)}\ns_add_u32 s83, s83, {sW1}')
    if layer == 0: wd_bases(a)
    def swaps(ks):
        r = XF + 4*ks
        return [f'v_permlane16_swap_b32 v{r}, v{r+2}', f'v_permlane16_swap_b32 v{r+1}, v{r+3}']
    Q = []
    def push(at, items):
        for it in items: Q.append([at, it])
    S0 = CSR + 12
    st = [lambda: a.wait_vm(stt[2])]
    for i in range(3):
        for h in range(4):
            r = SR + 4*i + h; s_ = S0 + 2*(h >> 1); q_ = s_ + 1
            first = (i == 0 and (h & 1) == 0)
            st += [f'v_lshlrev_b32 v250, 16, v{r}', f'v_and_b32 v251, s78, v{r}']
            if first: st += [f'v_add_f32 v{s_}, v250, v251', f'v_mul_f32 v{q_}, v250, v250']
            else: st += [f'v_add_f32 v{s_}, v{s_}, v250', f'v_fmac_f32 v{q_}, v250, v250', f'v_add_f32 v{s_}, v{s_}, v251']
            st += [f'v_fmac_f32 v{q_}, v251, v251']
    for rot in (4, 8):
        for e in range(4): st.append(f'v_add_f32_dpp v{S0+e}, v{S0+e}, v{S0+e} row_ror:{rot} row_mask:0xf bank_mask:0xf')
    for op in ('v_permlane16_swap_b32', 'v_permlane32_swap_b32'):
        for e in range(4): st += [f'v_mov_b32 v{250+e}, v{S0+e}']
        for e in range(4): st += [f'{op} v{250+e}, v{S0+e}']
        for e in range(4): st += [f'v_add_f32 v{S0+e}, v{S0+e}, v{250+e}']
    st += [f'v_and_b32 v254, 0x40, v{L16}', 'v_cmp_ne_u32 vcc, 0, v254',
           f's_lshr_b32 s74, {sS}, 2', 's_lshl_b32 s74, s74, 9',
           f'v_cndmask_b32 v250, v{S0}, v{S0+2}, vcc', f'v_cndmask_b32 v252, v{S0+1}, v{S0+3}, vcc',
           f'v_mov_b32 v251, s{STAG}', f'v_mov_b32 v253, s{STAG}',
           'v_lshlrev_b32 v254, 2, v254', f'v_and_b32 v{S0}, 0x30, v{L16}', f'v_add_u32 v254, v254, v{S0}',
           f's_and_b32 s75, {sS}, 3', 's_lshl_b32 s75, s75, 6', 's_add_u32 s74, s74, s75',
           f's_lshl_b32 s75, s{SW}, 11', 's_add_u32 s74, s74, s75', f's_lshl_b32 s75, {sC}, 13', 's_add_u32 s74, s74, s75', f's_add_u32 s74, s74, {ST[layer]}']
    def st_store():
        a(f's_mov_b64 exec, 0xff\nbuffer_store_dwordx4 v[250:253], v254, {WS}, s74 offen sc1\ns_mov_b64 exec, -1')
    st.append(st_store)
    PR_ = CSR
    ptk = []
    def sp_issue():
        ptk.append(a(f'buffer_load_dwordx4 v[{PR_}:{PR_+3}], v254, {WS}, s74 offen sc1'))
        ptk.append(a(f'buffer_load_dwordx4 v[{PR_+4}:{PR_+7}], v254, {WS}, s74 offen offset:2048 sc1'))
    def sp_cmp():
        a(f'v_xor_b32 v250, s{STAG}, v{PR_+1}\nv_xor_b32 v251, s{STAG}, v{PR_+3}\nv_xor_b32 v252, s{STAG}, v{PR_+5}\nv_xor_b32 v253, s{STAG}, v{PR_+7}')
        a('v_or3_b32 v250, v250, v251, v252\nv_or_b32 v250, v250, v253\nv_cmp_ne_u32 vcc, 0, v250')
    sp = [f'v_and_b32 v254, 0x1f0, v{L16}', f'v_lshrrev_b32 v250, 9, v{L16}', 'v_lshl_add_u32 v254, v250, 12, v254',
          f's_lshl_b32 s74, {sC}, 13', f's_lshl_b32 s75, s{SW}, 9', 's_add_u32 s74, s74, s75', f's_add_u32 s74, s74, {ST[layer]}', sp_issue]
    sf = [lambda: poll2(a, ptk[1], None, sp_issue, sp_cmp),
          f'v_add_f32 v{PR_}, v{PR_}, v{PR_+4}', f'v_add_f32 v{PR_+2}, v{PR_+2}, v{PR_+6}',
          's_mov_b32 s74, 0x3acccccd', 's_mov_b32 s75, 0x3727c5ac',
          f'v_mov_b32 v250, v{PR_}', f'v_mov_b32 v251, v{PR_+2}', 's_mov_b32 s76, 0xbfb8aa3b', 's_nop 0',
          f'v_permlane32_swap_b32 v250, v{PR_}', f'v_permlane32_swap_b32 v251, v{PR_+2}',
          f'v_add_f32 v{PR_}, v{PR_}, v250', f'v_add_f32 v{PR_+2}, v{PR_+2}, v251',
          f'v_mul_f32 v{NM}, s74, v{PR_}', f'v_mul_f32 v{IR2}, s74, v{PR_+2}',
          f'v_fma_f32 v{IR2}, -v{NM}, v{NM}, v{IR2}', f'v_max_f32 v{IR2}, 0, v{IR2}', f'v_add_f32 v{IR2}, s75, v{IR2}',
          f'v_rsq_f32 v{K1}, v{IR2}', f'v_sub_f32 v{NM}, 0, v{NM}', f'v_mul_f32 v{K1}, s76, v{K1}']
    a('s_mov_b32 s78, 0xffff0000')
    push(9, st)
    push(ST_POLL, sp)
    push(ST_CHK, sf)
    accof = {0: 0, 1: 16, 2: 32, 3: 48, 4: 0, 5: 16, 6: 32}
    def epi(u):
        A = accof[u]; L = []
        cst = {}
        def csrd(hf):
            def f():
                a(f'ds_read_b128 v[{CSR+8*hf}:{CSR+8*hf+3}], v{CSA} offset:{128*u + 32*hf}')
                cst[hf] = a(f'ds_read_b128 v[{CSR+8*hf+4}:{CSR+8*hf+7}], v{CSA} offset:{128*u + 32*hf + 16}')
            return (2, f)
        L += [csrd(0), csrd(1)]
        for hf in range(2):
            G = A + 8*hf; U = G + 4; C = CSR + 8*hf
            L.append((0, lambda hf=hf: a.wait_lg(cst[hf])))
            for r in range(4): L.append((1, f'v_fmac_f32 v{G+r}, v{NM}, v{C+r}'))
            for r in range(4): L.append((1, f'v_fmac_f32 v{U+r}, v{NM}, v{C+4+r}'))
            for r in range(4): L.append((1, f'v_mul_f32 v{C+r}, v{K1}, v{G+r}'))
            for r in range(4): L += [(2, f'v_exp_f32 v{C+r}, v{C+r}'), (1, f'v_mul_f32 v{G+r}, v{G+r}, v{U+r}')]
            for r in range(4): L.append((1, f'v_fma_f32 v{C+r}, v{C+r}, v{IR2}, v{IR2}'))
            for r in range(4): L.append((2, f'v_rcp_f32 v{C+r}, v{C+r}'))
            for r in range(4): L.append((1, f'v_mul_f32 v{G+r}, v{G+r}, v{C+r}'))
            O = A + 4 + 2*hf
            L += [(1, f'v_cvt_pk_bf16_f32 v{O}, v{G}, v{G+1}'), (1, f'v_cvt_pk_bf16_f32 v{O+1}, v{G+2}, v{G+3}')]
        L.append((1, f'buffer_store_dwordx4 v[{A+4}:{A+7}], v{HOFF}, {WS}, s77 offen offset:{512*u} sc1'))
        return L
    V = []
    dt = {}
    def refill_items(gam, at):
        for i in range(4):
            L = []
            if i == 0:
                if gam == 7:
                    L += [f's_min_u32 s74, {sW4K}, {2*4096}', f's_add_u32 s82, s74, {28*4096}', f's_add_u32 s83, s74, {quad_src(67)}', f's_add_u32 s83, s83, {sW1}']
                L.append('s_mov_b32 m0, s82')
            L.append(f'buffer_load_dwordx4 v{L16}, {WS}, s83 offen offset:{1024*i}{SH} lds')
            if i == 3 and gam < 6: L += ['s_add_u32 s82, s82, 16384', 's_add_u32 s83, s83, 16384']
            if i == 3 and gam == 6: pass
            V.append([at, L, ('dma', gam)])
    for gam in range(6): refill_items(gam, RB0)
    for gam in (6, 7): refill_items(gam, 148)
    V.sort(key=lambda x: x[0])
    WQ = []
    if layer == 0:
        for (k, cb) in wd_list()[:NWDG1]: WQ.append(wd_load(k, cb))
    BARS = {RB0: [], 148: [2], 196: [5], 244: [7]}
    last_of = {}
    for s, (u, ks, g) in enumerate(seq): last_of[u] = s
    avail = {u: last_of[u] + 3 for u in range(7)}
    nxt = 0
    cur = []
    a.wait_vm(xt[0])
    for x in swaps(0): a(x)
    a.st(tg + 'x0')
    fy = None
    lastv = -9
    for s, (u, ks, g) in enumerate(seq):
        if s in BARS:
            for gam in BARS[s]:
                assert gam in dt, (s, gam)
                a.wait_vm(dt[gam])
            if s == 244 and layer == 0:
                a.poll1_check(fy, 4, 'v249', 's80', 250, barrier=False)
            a('s_barrier')
            if s == 148 and layer == 0:
                def fyf():
                    a(f's_lshl_b32 s74, s2, 2\ns_add_u32 s74, s74, {FY}')
                    a.flag_store('s74', 'v250', 'v251')
                guarded(a, sROLE, fyf)
        if s == YS_AT and layer == 0:
            def ys():
                for k in range(4):
                    a(f'buffer_store_dwordx4 v[{48+4*k}:{48+4*k+3}], v{YOFF}, {WS}, {sYB} offen sc1')
                    if k < 3: a(f's_add_u32 {sYB}, {sYB}, {4*40960}')
            guarded(a, sROLE, ys)
        if s == 232 and layer == 0:
            a(f'v_lshrrev_b32 v249, 4, v{L16}\nv_min_u32 v249, 39, v249\nv_lshlrev_b32 v249, 4, v249\ns_mov_b32 s80, {FY}')
            fy = a.poll1_issue(4, 'v249', 's80', 250)
        if s % 2 == 0: a.wait_lg(rd_tok[min(s + 1, len(seq) - 1)])
        b = WB + 4*(s % NB); A = accof[u]
        c = '0' if ks == 0 else f'v[{A}:{A+15}]'
        a(f'v_mfma_f32_32x32x16_bf16 v[{A}:{A+15}], a[{b}:{b+3}], v[{XF+4*ks}:{XF+4*ks+3}], {c}')
        rd(s + AHEAD)
        n = 1 + (1 if s % 2 == 1 else 0)
        if s < 120 and u == 1 and ks + 1 < 40:
            a.wait_vm(xt[ks+1])
            for x in swaps(ks+1): a(x)
            n += 3
        if s < 120 and u == 0 and len(xt) < 40:
            xload(); n += 1; lastv = s
        elif s - lastv >= 2:
            if V and V[0][0] <= s:
                _, L, nm = V.pop(0)
                for x in L: t = a(x)
                dt[nm[1]] = a.vm_issued
                n += len(L); lastv = s
            elif WQ and s >= WD_AT:
                L = WQ.pop(0)
                for x in L: a(x)
                n += len(L); lastv = s
        budget = 6
        while n < budget and Q and Q[0][0] <= s:
            it = Q.pop(0)[1]
            it() if callable(it) else a(it)
            n += 1
        if s >= 120:
            if not cur and nxt < 6 and avail[nxt] <= s and not Q:
                cur = epi(nxt); nxt += 1
            m = 0
            while cur and (n + cur[0][0] <= budget) and m < EPB:
                c_, it = cur.pop(0)
                it() if callable(it) else a(it)
                n += c_; m += 1 if c_ else 0
        if s in (119, 159, 199, 239): a.st(tg + f'm{s+1}')
        if s + 1 < len(seq) and seq[s+1][1] == 0 and seq[s+1][0] >= 4:
            assert nxt > seq[s+1][0] - 4 and not (nxt == seq[s+1][0] - 3 and cur), ('epilogue late', s, nxt, len(cur))
    assert not Q and not V and not WQ, (len(Q), len(V), len(WQ))
    a.st(tg + 'mend')
    for c_, it in cur: it() if callable(it) else a(it)
    while nxt < 7:
        for c_, it in epi(nxt): it() if callable(it) else a(it)
        nxt += 1
    a.st(tg + 'epi')
    a(f's_lshl_b32 s74, {sC}, 9\ns_lshl_b32 s75, {sS}, 2\ns_add_u32 s74, s74, s75\ns_add_u32 s74, s74, {FH[layer]}')
    a(f's_lshl_b32 s75, s{SW}, 2\ns_add_u32 s76, s75, 3\ns_cmp_eq_u32 s{SW}, 3\ns_cselect_b32 s80, 1, 0\ns_sub_u32 s75, s75, s80')
    a(f'v_lshrrev_b32 v249, 4, v{L16}\nv_add_u32 v249, s75, v249\nv_min_u32 v249, s76, v249\nv_lshlrev_b32 v249, 2, v249')
    a(f's_lshr_b32 s80, {sTB}, 1\ns_lshl_b32 s80, s80, 2\ns_add_u32 s80, s80, s{SW}\ns_lshl_b32 s80, s80, 7\ns_add_u32 s80, s80, {FH[layer]}')
    a('s_waitcnt vmcnt(0)\ns_barrier')
    a.reset_counts()

RB0 = 96
ST_POLL, ST_CHK = 84, 112
YS_AT = 78
WD_AT = 100

def pre_G1_common(a):
    t = cs_issue(a)
    cs_finish(a, t)
    a.st('J_cs')
    a(f'v_lshrrev_b32 v88, 4, v{L16}\nv_min_u32 v88, 39, v88\nv_lshlrev_b32 v88, 4, v88')
    a(f's_and_b32 s74, s2, 15\ns_lshl_b32 s74, s74, 10\ns_add_u32 s74, s74, {FX1}')
    a('s_waitcnt vmcnt(0) lgkmcnt(0)')
    a.poll_w0(4, 'v88', 's74', 84)
    a.reset_counts()

def rest(a, stages, epoch_update):
    import g2h
    pre_G1_common(a)
    epoch_update(a)
    G1(a, 0)
    if stages == 2:
        a.flag_store('s74', 'v250', 'v251', rep=4, stride=128)
        return
    g2h.G2(a, 0, last=(stages == 3))
    if stages == 3: return
    G1(a, 1)
    if stages == 4:
        a.flag_store('s74', 'v250', 'v251', rep=4, stride=128)
        return
    g2h.G2(a, 1)
```

```python
from g2base import *
from g2g import *
import g2g

ACC = 64
HBUF = 144
NHB = 5
RX = 232
RY = 48
sHB = ['s90', 's91', 's92', 's93']
VM, VR, VT = 242, 243, 244
VE = 58
def acc(tb, cb): return ACC + 20*tb + 4*cb
def hb(k, tb): return HBUF + 16*(k % NHB) + 4*tb

def G2(a, layer, last=False):
    H = HB[layer]; X = X1 if layer == 0 else X3
    tg = f'G2{layer}_'
    if layer == 1: a.srd_load(SOUT, 'out'); a.srd_fin(SOUT, 'out')
    tp = a.poll_issue(1, 'v249', 's80', 250)
    a.flag_store('s74', 'v251', 'v252', rep=4, stride=128)
    a.st(tg + 'flag')
    a(f'v_mov_b32 v{VM}, {OOB}\ns_cmp_ge_u32 s{SW}, 2\ns_cselect_b32 s74, -1, 0\nv_and_b32 v{VM}, s74, v{VM}\nv_or_b32 v{VM}, v{VM}, v{L16}')
    wl = wd_list()
    tw = {}
    if layer == 0:
        for (k, cb) in wl[g2g.NWDG1:]:
            for x in wd_load(k, cb, vo=(f'v{VM}' if k == 13 else None)): t = a(x); tw[(k, cb)] = t or tw.get((k, cb))
            tw[(k, cb)] = a.vm_issued
    else:
        for (k, cb) in wl[58:]:
            if k == 11:
                a(f's_sub_u32 s74, {sWD[cb]}, 4096')
                a(f'buffer_load_dwordx4 {wd_reg(k, cb)}, v{L16}, {WS}, s74 offen offset:3072{SH}')
            else:
                a(f'buffer_load_dwordx4 {wd_reg(k, cb)}, v{VM if k == 13 else L16}, {WS}, {sWD[cb]} offen offset:{1024*(k&3)}{SH}')
            tw[(k, cb)] = a.vm_issued
    a(f'v_lshrrev_b32 v{VT}, 8, v{L16}\nv_lshlrev_b32 v{VT}, 8, v{VT}\nv_bfe_u32 v{VR}, v{L16}, 4, 4\nv_lshl_add_u32 v{VR}, v{VR}, 3, v{VT}')
    a(f's_lshl_b32 s75, {sTB}, 1\ns_lshr_b32 s76, s{SW}, 1\ns_add_u32 s75, s75, s76\ns_mul_i32 s75, s75, 40960\ns_mul_i32 s76, {sCG}, 5120\ns_add_u32 s75, s75, s76')
    a(f's_and_b32 s76, s{SW}, 1\ns_lshl_b32 s76, s76, 7\ns_add_u32 s94, s75, s76')
    def gran_loads(base, reg):
        a(f's_add_u32 s75, s94, {base}\ns_add_u32 s76, s75, 4096')
        for cb in range(5):
            t = a(f'buffer_load_dwordx2 v[{reg+2*cb}:{reg+2*cb+1}], v{VR}, {WS}, {"s75" if cb < 4 else "s76"} offen offset:{1024*(cb&3)}{SH}')
        return t
    tx = gran_loads(X, RX)
    ty = gran_loads(YG, RY) if layer == 0 else None
    a(f's_mul_i32 s79, s{SW}, 14\ns_cmp_eq_u32 s{SW}, 3\ns_cselect_b32 s74, 1, 0\ns_sub_u32 s79, s79, s74\ns_lshl_b32 s79, s79, 10\ns_add_u32 s79, s79, {H}')
    for tb in range(4):
        a(f's_add_u32 s74, s{SW}, {tb}\ns_and_b32 s74, s74, 3\ns_lshl_b32 s75, {sTB}, 2\ns_add_u32 s74, s74, s75\ns_mul_i32 s74, s74, 55296\ns_add_u32 {sHB[tb]}, s74, s79')
    a.poll_check(tp, 1, 'v249', 's80', 250)
    a.st(tg + 'go')
    th = {}
    def hload(k, tb):
        if k >= 14: return
        r = hb(k, tb)
        th[(k, tb)] = a(f'buffer_load_dwordx4 v[{r}:{r+3}], v{VM if k == 13 else L16}, {WS}, {sHB[tb]} offen offset:{1024*(k&3)}{SH}')
        if k & 3 == 3: a(f's_add_u32 {sHB[tb]}, {sHB[tb]}, 4096')
    PF = NHB - 1
    for k in range(PF):
        for tb in range(4): hload(k, tb)
    for tb in range(1, 4):
        a(f's_add_u32 s74, s{SW}, {tb}\ns_and_b32 s74, s74, 3\ns_mul_i32 s74, s74, 15360\ns_add_u32 s74, s74, {RED + (tb-1)*5120}\nv_add_u32 v{VT+tb-1}, s74, v{L16}')
    a(f's_mul_i32 s74, s{SW}, 15360\ns_add_u32 s74, s74, {RED}\nv_add_u32 v{VT+3}, s74, v{L16}')
    DQ = []
    if layer == 0 and not last:
        for i in range(6):
            L = [f's_add_u32 s81, s{SW}, {4*i}'] + quad_dma_dyn('s81', f'v{L16}', t=('s74', 's75', 's76'))
            DQ.append(L[:-3]); DQ += [[x] for x in L[-3:]]
    lskip = a.newlab('g2skip')
    first = True
    for k in range(14):
        if k == 13:
            a(f's_cmp_ge_u32 s{SW}, 2\ns_cbranch_scc1 {lskip}')
            sv = (a.vm_issued, a.vm_done)
        order = [0, 1, 2, 3] if k < 13 else [1, 2, 3, 0]
        for j, tb in enumerate(order):
            toks = [th[(k, tb)]] + [tw[(k, cb)] for cb in range(5) if (k, cb) in tw]
            a.wait_vm(max(toks))
            if first: a.st(tg + 'h0'); first = False
            for cb in range(5):
                A = acc(tb, cb); b = hb(k, tb)
                c = '0' if k == 0 else f'v[{A}:{A+3}]'
                a(f'v_mfma_f32_16x16x32_bf16 v[{A}:{A+3}], {wd_reg(k, cb)}, v[{b}:{b+3}], {c}')
                if cb == 0 and k + PF < 14: hload(k + PF, tb)
                elif k >= 14 - PF and k < 13 and cb == 0 and DQ:
                    for x in DQ.pop(0): a(x)
    a.label(lskip)
    a.vm_done = sv[1]
    a.wait_vm(th[(13, 3)])
    a.st(tg + 'mend')
    for tb in (1, 2, 3):
        for cb in range(5):
            A = acc(tb, cb)
            a(f'ds_write_b128 v{VT+tb-1}, v[{A}:{A+3}] offset:{1024*cb}')
    for _ in range(4):
        if DQ:
            for x in DQ.pop(0): a(x)
    a('s_waitcnt lgkmcnt(0)\ns_barrier')
    RB = HBUF
    tr = []
    for cb in range(5):
        for j in range(3):
            r = RB + 12*cb + 4*j
            t = a(f'ds_read_b128 v[{r}:{r+3}], v{VT+3} offset:{5120*j + 1024*cb}')
        tr.append(t)
    a.wait_vm(tx)
    PK = 204
    U = 84
    a('s_mov_b32 s78, 0xffff0000')
    for cb in range(5):
        A = acc(0, cb); r = RB + 12*cb
        a.wait_lg(tr[cb])
        for e in range(4): a(f'v_add_f32 v{r+e}, v{r+e}, v{r+4+e}')
        if DQ:
            for x in DQ.pop(0): a(x)
        for e in range(4): a(f'v_add_f32 v{A+e}, v{A+e}, v{r+8+e}')
        for e in range(4): a(f'v_add_f32 v{A+e}, v{A+e}, v{r+e}')
        a(f'v_permlane32_swap_b32 v{A}, v{A+2}\nv_permlane32_swap_b32 v{A+1}, v{A+3}')
        a(f'v_permlane16_swap_b32 v{A}, v{A+1}\nv_permlane16_swap_b32 v{A+2}, v{A+3}')
        x = RX + 2*cb
        if DQ:
            for x_ in DQ.pop(0): a(x_)
        a(f'v_lshlrev_b32 v{r}, 16, v{x}\nv_and_b32 v{r+1}, s78, v{x}\nv_lshlrev_b32 v{r+2}, 16, v{x+1}\nv_and_b32 v{r+3}, s78, v{x+1}')
        for e in range(4): a(f'v_add_f32 v{A+e}, v{A+e}, v{r+e}')
        a(f'v_cvt_pk_bf16_f32 v{PK+2*cb}, v{A}, v{A+1}\nv_cvt_pk_bf16_f32 v{PK+2*cb+1}, v{A+2}, v{A+3}')
    assert not DQ
    a.st(tg + 'red')
    if layer == 1:
        a(f'v_bfe_u32 v{VT}, v{L16}, 4, 4\nv_mul_u32_u24 v{VT}, 1280, v{VT}\nv_bfe_u32 v{VT+1}, v{L16}, 8, 1\nv_lshl_add_u32 v{VT}, v{VT+1}, 5, v{VT}')
        a(f'v_bfe_u32 v{VT+1}, v{L16}, 9, 1\nv_lshl_add_u32 v{VT}, v{VT+1}, 4, v{VT}')
        a(f's_lshl_b32 s74, {sTB}, 2\ns_add_u32 s74, s74, s{SW}\ns_mul_i32 s74, s74, {16*1280}\ns_mul_i32 s75, {sCG}, 160\ns_add_u32 s74, s74, s75')
        for p in range(3):
            R = PK + 4*p
            a(f'v_permlane16_swap_b32 v{R}, v{R+2}\nv_permlane16_swap_b32 v{R+1}, v{R+3}')
        for p in range(3):
            R = PK + 4*p
            if p == 2: a('s_mov_b32 exec_lo, 0x0000ffff\ns_mov_b32 exec_hi, 0x0000ffff')
            a(f'buffer_store_dwordx4 v[{R}:{R+3}], v{VT}, s[{SOUT}:{SOUT+3}], s74 offen offset:{64*p}')
        a('s_mov_b64 exec, -1')
        a.st(tg + 'end')
        return
    S_, Q_ = VT, VT+2
    a('s_mov_b32 s75, 0x3f803f80')
    for i in range(10):
        a(f'v_dot2_f32_bf16 v{S_}, v{PK+i}, s75, {"0" if i == 0 else f"v{S_}"}')
        a(f'v_dot2_f32_bf16 v{Q_}, v{PK+i}, v{PK+i}, {"0" if i == 0 else f"v{Q_}"}')
    for op in ('v_permlane16_swap_b32', 'v_permlane32_swap_b32'):
        a(f'v_mov_b32 v{VE}, v{S_}\nv_mov_b32 v{VE+1}, v{Q_}\n{op} v{VE}, v{S_}\n{op} v{VE+1}, v{Q_}')
        a(f'v_add_f32 v{S_}, v{S_}, v{VE}\nv_add_f32 v{Q_}, v{Q_}, v{VE+1}')
    a(f'v_mov_b32 v{VT+1}, s{STAG}\nv_mov_b32 v{VT+3}, s{STAG}')
    a(f'v_and_b32 v{VE}, 0xf0, v{L16}')
    a(f's_lshl_b32 s74, {sTB}, 13\ns_lshl_b32 s75, s{SW}, 8\ns_add_u32 s74, s74, s75\ns_add_u32 s79, s74, {XS}\ns_lshl_b32 s75, {sCG}, 10\ns_add_u32 s74, s79, s75')
    a(f's_mov_b64 exec, 0xffff\nbuffer_store_dwordx4 v[{VT}:{VT+3}], v{VE}, {WS}, s74 offen sc1\ns_mov_b64 exec, -1')
    a(f'v_lshrrev_b32 v{VE+1}, 8, v{L16}\nv_lshl_add_u32 v{VE}, v{VE+1}, 11, v{VE}')
    PR_ = RB
    ptk = []
    def xs_issue():
        ptk.append(a(f'buffer_load_dwordx4 v[{PR_}:{PR_+3}], v{VE}, {WS}, s79 offen sc1'))
        ptk.append(a(f'buffer_load_dwordx4 v[{PR_+4}:{PR_+7}], v{VE}, {WS}, s79 offen offset:1024 sc1'))
    def xs_cmp():
        a(f'v_xor_b32 v250, s{STAG}, v{PR_+1}\nv_xor_b32 v251, s{STAG}, v{PR_+3}\nv_xor_b32 v252, s{STAG}, v{PR_+5}\nv_xor_b32 v253, s{STAG}, v{PR_+7}')
        a('v_or3_b32 v250, v250, v251, v252\nv_or_b32 v250, v250, v253\nv_cmp_ne_u32 vcc, 0, v250')
    xs_issue()
    a.st(tg + 'xs')
    a.wait_vm(ty)
    YU = 104
    for i in range(10):
        a(f'v_lshlrev_b32 v{U+2*i}, 16, v{PK+i}\nv_and_b32 v{U+2*i+1}, s78, v{PK+i}')
        a(f'v_lshlrev_b32 v{YU+2*i}, 16, v{RY+i}\nv_and_b32 v{YU+2*i+1}, s78, v{RY+i}')
    a(f'v_bfe_u32 v{VE+2}, v{L16}, 4, 1')
    a(f'v_lshlrev_b32 v{VE+3}, 3, v{VE+2}\nv_sub_u32 v{VE+3}, v{VR}, v{VE+3}\nv_lshl_add_u32 v{VE+3}, v{VE+2}, 10, v{VE+3}')
    poll2(a, ptk[1], None, xs_issue, xs_cmp)
    a.st(tg + 'xsok')
    a(f'v_add_f32 v{PR_}, v{PR_}, v{PR_+4}\nv_add_f32 v{PR_+2}, v{PR_+2}, v{PR_+6}')
    for op in ('v_permlane16_swap_b32', 'v_permlane32_swap_b32'):
        a(f'v_mov_b32 v250, v{PR_}\nv_mov_b32 v251, v{PR_+2}\n{op} v250, v{PR_}\n{op} v251, v{PR_+2}')
        a(f'v_add_f32 v{PR_}, v{PR_}, v250\nv_add_f32 v{PR_+2}, v{PR_+2}, v251')
    m_, q_ = PR_, PR_+2
    a('s_mov_b32 s74, 0x3acccccd\ns_mov_b32 s75, 0x3727c5ac')
    a(f'v_mul_f32 v{m_}, s74, v{m_}\nv_mul_f32 v{q_}, s74, v{q_}\nv_fma_f32 v{q_}, -v{m_}, v{m_}, v{q_}\nv_max_f32 v{q_}, 0, v{q_}\nv_add_f32 v{q_}, s75, v{q_}\nv_rsq_f32 v{q_}, v{q_}')
    a(f's_nop 0\nv_mul_f32 v{m_}, v{m_}, v{q_}\nv_sub_f32 v{m_}, 0, v{m_}')
    for i in range(20):
        a(f'v_fma_f32 v250, v{U+i}, v{q_}, v{m_}\nv_fma_f32 v{U+i}, v250, v{YU+i}, v{U+i}') if False else None
    T = 124
    for i in range(20): a(f'v_fma_f32 v{T+i}, v{U+i}, v{q_}, v{m_}')
    for i in range(20): a(f'v_fma_f32 v{U+i}, v{T+i}, v{YU+i}, v{U+i}')
    for i in range(10): a(f'v_cvt_pk_bf16_f32 v{PK+i}, v{U+2*i}, v{U+2*i+1}')
    O = 216
    a(f'v_cmp_eq_u32 vcc, 0, v{VE+2}')
    a(f's_add_u32 s75, s94, {X3}\ns_add_u32 s76, s75, 4096')
    for p in range(2):
        R = PK + 4*p; o = O + 4*p
        a(f'v_cndmask_b32 v250, v{R}, v{R+2}, vcc\nv_cndmask_b32 v251, v{R+1}, v{R+3}, vcc')
        a(f'v_cndmask_b32_dpp v{o}, v250, v{R}, vcc quad_perm:[1,0,3,2] row_mask:0xf bank_mask:0xf')
        a(f'v_cndmask_b32_dpp v{o+1}, v251, v{R+1}, vcc quad_perm:[1,0,3,2] row_mask:0xf bank_mask:0xf')
        a('s_not_b64 vcc, vcc\ns_nop 1')
        a(f'v_cndmask_b32_dpp v{o+2}, v250, v{R+2}, vcc quad_perm:[1,0,3,2] row_mask:0xf bank_mask:0xf')
        a(f'v_cndmask_b32_dpp v{o+3}, v251, v{R+3}, vcc quad_perm:[1,0,3,2] row_mask:0xf bank_mask:0xf')
        a('s_not_b64 vcc, vcc\ns_nop 1')
        a(f'buffer_store_dwordx4 v[{o}:{o+3}], v{VE+3}, {WS}, s75 offen offset:{2048*p} sc1')
    R = PK + 8
    a(f'v_mov_b32_dpp v{R+2}, v{R} quad_perm:[1,0,3,2] row_mask:0xf bank_mask:0xf\nv_mov_b32_dpp v{R+3}, v{R+1} quad_perm:[1,0,3,2] row_mask:0xf bank_mask:0xf')
    a('s_mov_b32 exec_lo, 0x55555555\ns_mov_b32 exec_hi, 0x55555555')
    a(f'buffer_store_dwordx4 v[{R}:{R+3}], v{VE+3}, {WS}, s76 offen sc1')
    a('s_mov_b64 exec, -1')
    a.st(tg + 'x3st')
    a(f's_lshr_b32 s74, {sTB}, 1\ns_lshl_b32 s74, s74, 9\ns_and_b32 s75, {sTB}, 1\ns_lshl_b32 s75, s75, 3\ns_add_u32 s75, s75, {sCG}\ns_lshl_b32 s75, s75, 2\ns_add_u32 s74, s74, s75\ns_add_u32 s79, s74, {FX3}')
    a(f's_lshl_b32 s80, {sC}, 2\ns_and_b32 s75, {sS}, 3\ns_add_u32 s80, s80, s75\ns_lshl_b32 s80, s80, 7\ns_add_u32 s80, s80, {FX3}')
    a(f'v_lshrrev_b32 v249, 4, v{L16}\nv_min_u32 v249, 15, v249\nv_lshlrev_b32 v249, 2, v249')
    a('s_waitcnt vmcnt(0)\ns_barrier')
    a.reset_counts()
    a.flag_store('s79', 'v250', 'v251', rep=4, stride=128)
    a.st(tg + 'x3flag')
    if last: return
    lab = a.newlab('nd')
    a(f's_cmp_eq_u32 s{SW}, 1\ns_cbranch_scc1 {lab}')
    a(f's_min_u32 s82, s{SW}, 1\ns_sub_u32 s82, s{SW}, s82\ns_add_u32 s82, s82, 24')
    sv = a.vm_issued
    for i in range(5):
        for x in quad_dma_dyn('s82', f'v{L16}'): a(x)
        if i < 4: a('s_add_u32 s82, s82, 3')
    a.vm_issued = sv
    a('s_waitcnt vmcnt(0)')
    a.label(lab)
    a.poll_w0(1, 'v249', 's80', 250)
    a.reset_counts()
```

```python
import sys
from g2base import *
import g2a
NAME = 'interleave_layers__ssm_conv_h3__swiglu_ffn__prompt_kernel'

def body(a, stages):
    a('s_cmp_ge_u32 s2, 256\ns_cbranch_scc1 L_exit')
    code_prefetch(a)
    a.srd_load(SWS, 'ws'); a.srd_fin(SWS, 'ws')
    a.st_init()
    a(f'v_lshrrev_b32 v1, 6, v0\ns_nop 0\nv_readfirstlane_b32 s{SW}, v1')
    import g2g
    g2a.STAGE1 = stages < 2
    g2g.role_setup(a)
    a('s_cmp_ge_u32 s2, 160\ns_cbranch_scc1 L_roleP')
    for r, n in ((8, 'k'), (12, 'v'), (16, 'shk'), (20, 'ssmk'), (24, 'ssmD'), (92, 'q')):
        a.srd_load(r, n); a.srd_fin(r, n)
    a('s_waitcnt lgkmcnt(0)')
    a.st('start')
    a(f's_load_dword s{STAG}, s[{SWS}:{SWS+1}], {E_OFF}')
    tk = g2a.phase_T_with_tag(a)
    g2a.conv_pre(a, tk)
    g2a.conv_main(a, tk)
    a('s_branch L_joinA')
    a.label('L_roleP'); a.reset_counts()
    for r, n in ((8, 'wg'), (12, 'wu'), (16, 'wd'), (20, 'q')):
        a.srd_load(r, n); a.srd_fin(r, n)
    a('s_waitcnt lgkmcnt(0)')
    a.st('start')
    a(f's_load_dword s{STAG}, s[{SWS}:{SWS+1}], {E_OFF}')
    g2a.phase_P(a)
    a.label('L_joinA'); a.reset_counts()
    if stages >= 2:
        g2g.rest(a, stages, epoch_update)
    else:
        a('s_waitcnt vmcnt(0)\ns_barrier')
        a('s_cmp_ge_u32 s2, 160\ns_cbranch_scc1 L_nofy')
        a.flag_store('s51', 'v4', 'v5')
        a.label('L_nofy')
        a('v_and_b32 v2, 63, v0\nv_min_u32 v4, 39, v2\nv_lshlrev_b32 v4, 4, v4')
        a(f's_and_b32 s45, s2, 15\ns_lshl_b32 s45, s45, 10\ns_add_u32 s45, s45, {FX1}')
        a.poll_w0(4, 'v4', 's45', 8)
        a('v_min_u32 v4, 47, v2\nv_lshlrev_b32 v4, 3, v4')
        a(f's_mov_b32 s45, {FW}')
        a.poll_w0(2, 'v4', 's45', 8)
        epoch_update(a)
    a.st('end')
    a.st_flush(0)
    import os
    if not os.environ.get('NOENDW'): a('s_waitcnt vmcnt(0)')
    a('s_endpgm')
    a.emit_tail()
    a.label('L_exit')
    a.label('L_code_end')

def code_prefetch(a):
    import os
    if os.environ.get('NOPF'): return
    a('s_getpc_b64 s[16:17]')
    a.label('L_pc')
    a('s_lshr_b32 s18, s2, 3\ns_lshl_b32 s18, s18, 12')
    a('v_lshlrev_b32 v4, 4, v0\nv_add_u32 v4, s18, v4')
    a.raw('    v_min_u32 v4, L_code_end-L_pc-16, v4')
    a('v_mov_b32 v5, s17\nv_add_co_u32 v4, vcc, s16, v4\nv_addc_co_u32 v5, vcc, 0, v5, vcc')
    a('global_load_dwordx4 v[248:251], v[4:5], off')

def tag_from_epoch(a):
    a(f's_mul_i32 s{STAG}, s{STAG}, 1664525\ns_add_u32 s{STAG}, s{STAG}, 1013904223')
g2a.tag_from_epoch = tag_from_epoch

def epoch_update(a):
    lab = a.newlab('ep')
    a(f's_cmp_lg_u32 s2, 0\ns_cbranch_scc1 {lab}')
    a(f's_mov_b32 s45, {E_OFF}')
    a.flag_store('s45', 'v4', 'v5')
    a.label(lab)

def build(stages=9, timing=False):
    a = K(timing)
    body(a, stages)
    txt = a.finalize()
    hdr = open('interleave_layers__ssm_conv_h3__swiglu_ffn__prompt.s.ref').read().split('; Override')[0]
    out = hdr + f'; @launch grid=(256,1,1) block=(256,1,1) lds={LDS_BYTES}\n'
    out += '.amdgcn_target "amdgcn-amd-amdhsa--gfx950"\n.text\n'
    out += f'.globl {NAME}\n.p2align 8\n.type {NAME},@function\n{NAME}:\n{txt}    s_endpgm\n'
    out += f""".section .rodata,"a"
.p2align 6
.amdhsa_kernel {NAME}
  .amdhsa_next_free_vgpr 512
  .amdhsa_next_free_sgpr 102
  .amdhsa_accum_offset 256
  .amdhsa_group_segment_fixed_size 0
  .amdhsa_kernarg_size 104
  .amdhsa_user_sgpr_count 2
  .amdhsa_user_sgpr_kernarg_segment_ptr 1
  .amdhsa_system_sgpr_workgroup_id_x 1
.end_amdhsa_kernel
"""
    print('instrs', sum(1 for it in a.items if it[0] == 'i'), 'nops added', a.nops_added, file=sys.stderr)
    return out, a.stnames

if __name__ == '__main__':
    path = sys.argv[1]
    stages = int(sys.argv[2]) if len(sys.argv) > 2 else 9
    timing = len(sys.argv) > 3 and sys.argv[3] == 'timing'
    txt, names = build(stages, timing)
    open(path, 'w').write(txt)
    open(path.replace('.s', '.names'), 'w').write(','.join(names))
```

```python
import re

REG_RE = re.compile(r'\b([vas])\[(\d+):(\d+)\]|\b([vas])(\d+)\b')
MOD_RE = re.compile(r'\s(op_sel|op_sel_hi|neg_lo|neg_hi|quad_perm|row_shr|row_shl|row_ror|row_mirror|row_half_mirror|row_bcast|wave_shr|wave_shl|wave_ror|wave_rol|dst_sel|src0_sel|src1_sel|offen|idxen|offset|offset0|offset1|sc0|sc1|nt|lds|clamp|bitop3|row_mask|bank_mask|bound_ctrl|mul|div)\b')

def regs_of(tok):
    out = set()
    for m in REG_RE.finditer(tok):
        if m.group(1):
            for i in range(int(m.group(2)), int(m.group(3)) + 1):
                out.add((m.group(1), i))
        else:
            out.add((m.group(4), int(m.group(5))))
    if re.search(r'\bvcc\b', tok): out |= {('s', 106), ('s', 107)}
    if re.search(r'\bvcc_lo\b', tok): out.add(('s', 106))
    if re.search(r'\bvcc_hi\b', tok): out.add(('s', 107))
    if re.search(r'\bexec\b', tok): out |= {('s', 126), ('s', 127)}
    if re.search(r'\bm0\b', tok): out.add(('s', 124))
    return out

TRANS = ('v_exp_', 'v_log_', 'v_rcp_', 'v_rsq_', 'v_sqrt_', 'v_sin_', 'v_cos_')

class Ins:
    __slots__ = ('text', 'mn', 'cls', 'dst', 'src', 'dpp', 'trans', 'perm', 'passes', 'srcC', 'srcAB', 'wide_store', 'ldsdma',
                 'readlane', 'target', 'states', 'opselw', 'lanesel')
    def __init__(self, text):
        self.text = text
        t = text.split(';')[0].strip()
        parts = t.split(None, 1)
        mn = parts[0]; rest = parts[1] if len(parts) > 1 else ''
        self.mn = mn
        m = MOD_RE.search(' ' + rest)
        mods = ''
        if m:
            mods = (' ' + rest)[m.start():]
            rest = (' ' + rest)[:m.start()]
        ops = [o.strip() for o in rest.split(',')] if rest.strip() else []
        self.dst = set(); self.src = set()
        self.dpp = ('_dpp' in mn) or bool(re.search(r'quad_perm|row_|wave_', mods))
        self.trans = mn.startswith(TRANS)
        self.perm = mn.startswith('v_permlane')
        self.passes = 0; self.srcC = set(); self.srcAB = set()
        self.wide_store = False; self.ldsdma = False; self.readlane = False; self.target = None
        self.states = 1; self.opselw = False; self.lanesel = set()
        if mn.startswith('v_mfma'):
            self.cls = 'mfma'
            self.passes = 8 if '32x32' in mn else 4
            self.dst = regs_of(ops[0]); self.srcAB = regs_of(ops[1]) | regs_of(ops[2]); self.srcC = regs_of(ops[3])
            self.src = self.srcAB | self.srcC
        elif mn.startswith('v_'):
            self.cls = 'valu'
            if mn.startswith('v_cmp'):
                if mn.endswith('_e32') or True:
                    self.dst = regs_of(ops[0]);
                    for o in ops[1:]: self.src |= regs_of(o)
            elif self.perm and 'swap' in mn:
                self.dst = regs_of(ops[0]) | regs_of(ops[1]); self.src = set(self.dst)
            elif mn.startswith(('v_add_co', 'v_sub_co', 'v_subrev_co', 'v_addc_co', 'v_subb_co')):
                self.dst = regs_of(ops[0]) | regs_of(ops[1])
                for o in ops[2:]: self.src |= regs_of(o)
            else:
                self.dst = regs_of(ops[0])
                for o in ops[1:]: self.src |= regs_of(o)
                if mn.startswith(('v_fmac', 'v_mac', 'v_dot2c', 'v_pk_fmac', 'v_writelane')) or self.dpp:
                    self.src |= self.dst
                if mn.startswith('v_cndmask') and len(ops) == 3:
                    self.src |= {('s', 106), ('s', 107)}
                if mn.startswith(('v_readlane', 'v_readfirstlane')):
                    self.readlane = True
                if mn.startswith(('v_readlane', 'v_writelane')):
                    self.lanesel = regs_of(ops[2])
            if '_sdwa' in mn and 'dst_sel' in mods and 'dst_sel:DWORD' not in mods:
                self.opselw = True
        elif mn.startswith(('buffer_', 'global_')):
            self.cls = 'vmem'
            islds = bool(re.search(r'\blds\b', mods)) or 'load_lds' in mn
            if 'load' in mn and not islds:
                self.dst = regs_of(ops[0])
                for o in ops[1:]: self.src |= regs_of(o)
            elif 'atomic' in mn:
                for o in ops: self.src |= regs_of(o)
                if 'sc0' in mods: self.dst = regs_of(ops[0])
            else:
                for o in ops: self.src |= regs_of(o)
                if islds:
                    self.ldsdma = True; self.src.add(('s', 124))
                if 'store' in mn and ('x4' in mn or 'x3' in mn):
                    self.wide_store = True
                    self.srcC = regs_of(ops[0]) if mn.startswith('buffer_') else regs_of(ops[1])
        elif mn.startswith('ds_'):
            self.cls = 'ds'
            if mn.startswith(('ds_read', 'ds_bpermute', 'ds_permute', 'ds_swizzle')) or '_rtn' in mn:
                self.dst = regs_of(ops[0])
                for o in ops[1:]: self.src |= regs_of(o)
            else:
                for o in ops: self.src |= regs_of(o)
        elif mn.startswith('s_'):
            self.cls = 'salu'
            if mn == 's_nop':
                self.states = int(ops[0], 0) + 1
            elif mn.startswith(('s_cbranch', 's_branch')):
                self.target = ops[0]
            elif mn.startswith(('s_cmp', 's_waitcnt', 's_barrier', 's_endpgm', 's_sleep', 's_setprio', 's_bitcmp')):
                for o in ops: self.src |= regs_of(o)
            else:
                if ops:
                    self.dst = regs_of(ops[0])
                    for o in ops[1:]: self.src |= regs_of(o)
                if 'saveexec' in mn: self.dst |= {('s', 126), ('s', 127)}
        else:
            raise ValueError("unknown instruction: " + text)

def vg(rs):
    return {r for r in rs if r[0] in 'va'}
def sg(rs):
    return {r for r in rs if r[0] == 's'}

def need_states(p, c):
    n = 0
    if p.cls == 'valu':
        pw = vg(p.dst); ps = sg(p.dst)
        if pw:
            if c.cls == 'mfma' and pw & c.src: n = max(n, 2)
            if c.cls == 'valu':
                if c.dpp and pw & c.src: n = max(n, 2)
                if c.perm and pw & c.src: n = max(n, 2)
                if c.readlane and pw & c.src: n = max(n, 1)
                if p.trans and (pw & c.src or pw & c.dst): n = max(n, 1)
                if p.opselw and (pw & c.src or pw & c.dst): n = max(n, 1)
            if p.trans and c.cls in ('vmem', 'ds') and pw & c.src: n = max(n, 1)
        if ps:
            if c.cls == 'vmem' and ps & c.src: n = max(n, 5)
            if c.cls == 'valu' and ps & c.lanesel: n = max(n, 4)
            if c.cls == 'valu' and ps & c.src: n = max(n, 2)
            if c.cls == 'mfma' and ps & {('s',126),('s',127)}: n = max(n, 4)
    if p.cls == 'valu' and p.mn.startswith('v_dot'):
        d = vg(p.dst)
        if c.mn == p.mn:
            ops = c.text.split(None, 1)[1].split(',')
            if d & (regs_of(ops[1]) | regs_of(ops[2])): n = max(n, 3)
        elif d & (c.src | c.dst): n = max(n, 3)
    if p.cls == 'mfma':
        d = p.dst
        far = 8 if p.passes == 4 else 12
        if c.cls == 'mfma':
            if d & c.srcAB: n = max(n, far)
            if d & c.srcC:
                if not (c.srcC == d and c.passes == p.passes): n = max(n, far - 2)
            if d & c.dst and not (d & c.srcC) : n = max(n, far)
        elif c.cls == 'valu':
            if d & (c.src | c.dst): n = max(n, far)
            if p.srcC & c.dst: n = max(n, 3 if p.passes == 4 else 7)
        elif c.cls in ('vmem', 'ds'):
            if d & (c.src | c.dst): n = max(n, far)
    if p.cls == 'vmem' and p.wide_store:
        if p.srcC & c.dst:
            n = max(n, 2 if c.cls == 'valu' else 1)
    if p.cls == 'salu' and ('s', 124) in p.dst and c.cls == 'vmem' and c.ldsdma:
        n = max(n, 1)
    return n

class Asm:
    def __init__(self):
        self.items = []
        self.vm_issued = 0; self.vm_done = 0
        self.lg_issued = 0; self.lg_done = 0
    def __call__(self, text):
        last = None
        for line in text.strip().split('\n'):
            s = line.strip()
            if not s or s.startswith(';'): continue
            if s.endswith(':'):
                self.items.append(('l', s[:-1])); continue
            ins = Ins(s)
            self.items.append(('i', ins))
            if ins.cls == 'vmem' and not ins.mn.startswith(('buffer_wbl2', 'buffer_inv')):
                self.vm_issued += 1; last = self.vm_issued
            elif ins.cls == 'ds':
                self.lg_issued += 1; last = self.lg_issued
            elif ins.mn == 's_waitcnt':
                m = re.search(r'vmcnt\((\d+)\)', s)
                if m: self.vm_done = max(self.vm_done, self.vm_issued - int(m.group(1)))
                m = re.search(r'lgkmcnt\((\d+)\)', s)
                if m: self.lg_done = max(self.lg_done, self.lg_issued - int(m.group(1)))
        return last
    def label(self, name): self.items.append(('l', name))
    def raw(self, text): self.items.append(('r', text))
    def comment(self, text): self.items.append(('r', '; ' + text))
    def wait_vm(self, tok):
        if tok is None or tok <= self.vm_done: return
        n = min(self.vm_issued - tok, 63)
        self(f's_waitcnt vmcnt({n})')
    def wait_lg(self, tok):
        if tok is None or tok <= self.lg_done: return
        n = min(self.lg_issued - tok, 15)
        self(f's_waitcnt lgkmcnt({n})')
    def wait_both(self, vtok, ltok):
        p = []
        if vtok is not None and vtok > self.vm_done: p.append(f'vmcnt({min(self.vm_issued - vtok, 63)})')
        if ltok is not None and ltok > self.lg_done: p.append(f'lgkmcnt({min(self.lg_issued - ltok, 15)})')
        if p: self('s_waitcnt ' + ' '.join(p))
    def reset_counts(self):
        self.vm_done = self.vm_issued; self.lg_done = self.lg_issued
    def assume(self, vm_out=None, lg_out=None):
        if vm_out is not None: self.vm_done = self.vm_issued - vm_out
        if lg_out is not None: self.lg_done = self.lg_issued - lg_out

    def finalize(self):
        items = self.items
        changed = True
        nops_added = 0
        out = []
        labels = {}
        def rebuild():
            labels.clear()
            for i, it in enumerate(items):
                if it[0] == 'l': labels[it[1]] = i
        rebuild()
        branches = {}
        def rebuild_br():
            branches.clear()
            for i, it in enumerate(items):
                if it[0] == 'i' and it[1].target is not None:
                    branches.setdefault(it[1].target, []).append(i)
        rebuild_br()
        def required(i):
            c = items[i][1]
            best = 0
            stack = [(i - 1, 0)]
            seen = {}
            while stack:
                j, st = stack.pop()
                if j < 0 or st >= 20: continue
                if seen.get(j, 99) <= st: continue
                seen[j] = st
                it = items[j]
                if it[0] == 'l':
                    for b in branches.get(it[1], []):
                        stack.append((b, st))
                    stack.append((j - 1, st))
                    continue
                if it[0] == 'r':
                    stack.append((j - 1, st)); continue
                p = it[1]
                if j == i - 1 or True:
                    pass
                n = need_states(p, c)
                if n > st: best = max(best, n - st)
                stack.append((j - 1, st + p.states)) if not False else None
            return best
        i = 0
        while i < len(items):
            it = items[i]
            if it[0] == 'i' and it[1].cls != 'salu' or (it[0] == 'i' and False):
                r = required(i)
                if r > 0:
                    ins = []
                    while r > 0:
                        k = min(r, 16)
                        ins.append(('i', Ins(f's_nop {k-1}')))
                        r -= k
                    items[i:i] = ins
                    nops_added += len(ins)
                    i += len(ins)
                    rebuild(); rebuild_br()
            i += 1
        lines = []
        for it in items:
            if it[0] == 'i': lines.append('    ' + it[1].text)
            elif it[0] == 'l': lines.append(it[1] + ':')
            else: lines.append(it[1])
        self.nops_added = nops_added
        return '\n'.join(lines) + '\n'
```

```python
from g2base import *

CS = 4160
WLDS = 4*CS + 4608
CONV_BASE = LDS_BYTES - 4*WLDS
QBLK = 3
STAGE1 = False
QDELAY = 4
CDEPTH = 3
TOUCH = True
NH0 = 3
WDRAW = 224
SWD = 48
HRAW = 192

def phase_T_with_tag(a):
    SK, SV, SSH, SH, SD = 8, 12, 16, 20, 24
    a('s_mul_i32 s28, s2, 205\ns_lshr_b32 s28, s28, 10')
    a('s_mul_i32 s29, s28, 5\ns_sub_u32 s29, s2, s29')
    a('v_bfe_u32 v1, v0, 4, 2\nv_lshrrev_b32 v2, 7, v0\nv_lshl_add_u32 v1, v2, 2, v1')
    a('v_and_b32 v2, 15, v0\nv_bfe_u32 v3, v0, 6, 1\nv_lshl_add_u32 v2, v3, 4, v2')
    a('s_mul_i32 s30, s28, 81920\ns_lshl_b32 s31, s29, 8\ns_add_u32 s30, s30, s31')
    a('v_mul_u32_u24 v3, 10240, v1\nv_lshl_add_u32 v3, v2, 3, v3\nv_add_u32 v3, s30, v3')
    a('v_add_u32 v4, 5120, v3\nv_subrev_u32 v5, 3840, v3')
    a('s_lshl_b32 s31, s29, 10\nv_lshlrev_b32 v6, 5, v2\nv_add_u32 v6, s31, v6')
    KR, VR, WR = 10, 32, 48
    for r in range(3):
        a(f'buffer_load_dwordx2 v[{KR+2*r}:{KR+2*r+1}], v5, s[{SK}:{SK+3}], 0 offen offset:{1280*r}')
    for r in range(8):
        a(f'buffer_load_dwordx2 v[{KR+6+2*r}:{KR+7+2*r}], v{3+(r>>2)}, s[{SK}:{SK+3}], 0 offen offset:{1280*(r&3)}')
    a(f'buffer_load_dwordx4 v[{WR}:{WR+3}], v6, s[{SSH}:{SSH+3}], 0 offen')
    tw = a(f'buffer_load_dwordx4 v[{WR+4}:{WR+7}], v6, s[{SSH}:{SSH+3}], 0 offen offset:16')
    tv = []
    for r in range(8):
        tv.append(a(f'buffer_load_dwordx2 v[{VR+2*r}:{VR+2*r+1}], v{3+(r>>2)}, s[{SV}:{SV+3}], 0 offen offset:{1280*(r&3)}'))
    a('v_and_b32 v8, 7, v2\nv_xor_b32 v8, v8, v1\nv_lshlrev_b32 v8, 4, v8\nv_lshl_add_u32 v8, v2, 9, v8')
    a('v_lshrrev_b32 v9, 5, v0\nv_and_b32 v7, 7, v0\nv_xor_b32 v9, v9, v7\nv_lshlrev_b32 v9, 4, v9\nv_lshrrev_b32 v148, 3, v0\nv_lshl_add_u32 v9, v148, 7, v9')
    a('s_lshl_b32 s30, s29, 19\ns_lshl_b32 s31, s28, 7\ns_add_u32 s30, s30, s31')
    a('v_lshlrev_b32 v7, 4, v7\nv_lshl_add_u32 v7, v148, 12, v7\nv_add_u32 v7, s30, v7')
    for c in range(4): a(f's_mov_b32 s{36+c}, {UT + c*131072}')
    a('s_mov_b32 s40, 0xffff0000')
    KF, WF, U = 56, 100, 116
    a.st('T_issued')
    a.wait_vm(tw)
    a.st('T_kret')
    a(f's_lshl_b32 s32, s2, 2\ns_add_u32 s32, s32, s{SW}')
    a('s_lshl_b32 s33, s32, 12')
    a(f's_add_u32 s{SH}, s{SH}, s33\ns_addc_u32 s{SH+1}, s{SH+1}, 0\ns_mov_b32 s{SH+2}, 4096')
    a('v_and_b32 v160, 63, v0\nv_lshlrev_b32 v161, 4, v160')
    a('v_subrev_u32 v162, 32, v161\nv_add_u32 v163, 16, v162\nv_add_u32 v164, 0x1000, v162\nv_add_u32 v165, 0x1000, v163')
    HR = HRAW
    for i in range(4):
        if i == 0:
            a(f'buffer_load_dwordx4 v[{HR}:{HR+3}], v162, s[{SH}:{SH+3}], 0 offen')
            a(f'buffer_load_dwordx2 v[{HR+4}:{HR+5}], v163, s[{SH}:{SH+3}], 0 offen')
        else:
            a(f'buffer_load_dwordx4 v[{HR+6*i}:{HR+6*i+3}], v161, s[{SH}:{SH+3}], 0 offen offset:{1024*i-32}')
            a(f'buffer_load_dwordx2 v[{HR+6*i+4}:{HR+6*i+5}], v161, s[{SH}:{SH+3}], 0 offen offset:{1024*i-16}')
    a(f'buffer_load_dwordx4 v[{HR+24}:{HR+27}], v164, s[{SH}:{SH+3}], 0 offen')
    th = a(f'buffer_load_dwordx2 v[{HR+28}:{HR+29}], v165, s[{SH}:{SH+3}], 0 offen')
    a('s_lshl_b32 s34, s32, 1\nv_mov_b32 v166, s34')
    tD = a(f'buffer_load_ushort v153, v166, s[{SD}:{SD+3}], 0 offen')
    for r in range(11):
        for p in range(2):
            a(f'v_lshlrev_b32 v{KF+4*r+2*p}, 16, v{KR+2*r+p}\nv_and_b32 v{KF+4*r+2*p+1}, s40, v{KR+2*r+p}')
    for c in range(4):
        for h in range(2):
            a(f'v_lshlrev_b32 v{WF+4*(2*h)+c}, 16, v{WR+2*c+h}\nv_and_b32 v{WF+4*(2*h+1)+c}, s40, v{WR+2*c+h}')
    for t in range(8):
        for p in range(2):
            d = U+4*t+2*p
            for j in range(4):
                k = KF+4*(t+3-j)+2*p; w = WF+4*j+2*p
                if j == 0: a(f'v_pk_mul_f32 v[{d}:{d+1}], v[{k}:{k+1}], v[{w}:{w+1}]')
                else: a(f'v_pk_fma_f32 v[{d}:{d+1}], v[{k}:{k+1}], v[{w}:{w+1}], v[{d}:{d+1}]')
    for t in range(8):
        a.wait_vm(tv[t])
        for p in range(2):
            x = KF+4*t+2*p
            a(f'v_lshlrev_b32 v{x}, 16, v{VR+2*t+p}\nv_and_b32 v{x+1}, s40, v{VR+2*t+p}')
            d = U+4*t+2*p
            a(f'v_pk_mul_f32 v[{d}:{d+1}], v[{d}:{d+1}], v[{x}:{x+1}]')
    O = 12
    for c in range(4):
        for q in range(4):
            a(f'v_cvt_pk_bf16_f32 v{O+4*c+q}, v{U+4*(7-2*q)+c}, v{U+4*(6-2*q)+c}')
        a(f'ds_write_b128 v8, v[{O+4*c}:{O+4*c+3}] offset:{128*c}')
    a('s_waitcnt lgkmcnt(0)\ns_barrier')
    tr = [a(f'ds_read_b128 v[{O+4*c}:{O+4*c+3}], v9 offset:{4096*c}') for c in range(4)]
    for c in range(4):
        a.wait_lg(tr[c])
        tst = a(f'buffer_store_dwordx4 v[{O+4*c}:{O+4*c+3}], v7, {WS}, s{36+c} offen sc1')
    a.st('T_stored')
    a(f's_lshl_b32 s41, s29, 7\ns_add_u32 s41, s41, s28\ns_lshl_b32 s41, s41, 2\ns_add_u32 s41, s41, {FT}')
    return dict(th=th, tD=tD, tst=tst)

def conv_pre(a, tk):
    HR = HRAW
    a('v_and_b32 v2, 63, v0\nv_lshlrev_b32 v3, 4, v2')
    a(f's_mul_i32 s35, s{SW}, {WLDS}\ns_add_u32 s35, s35, {CONV_BASE}')
    a('v_add_u32 v14, s35, v3')
    a('v_and_b32 v15, 15, v2\nv_lshrrev_b32 v16, 4, v2')
    a('v_add_u32 v17, 1, v15\nv_and_b32 v18, 3, v17\nv_lshrrev_b32 v17, 2, v17')
    a(f'v_mul_u32_u24 v18, {CS}, v18\nv_lshl_add_u32 v18, v17, 3, v18\nv_lshl_add_u32 v18, v16, 4, v18\nv_add_u32 v18, s35, v18')
    a(f'v_lshlrev_b32 v19, 5, v15\nv_lshlrev_b32 v20, 4, v16\nv_sub_u32 v19, v19, v20\nv_add_u32 v19, s35, v19\nv_add_u32 v19, {4*CS+528}, v19')
    a('v_mov_b32 v28, 0\nv_mov_b32 v29, 0\nv_mov_b32 v30, 0\nv_mov_b32 v31, 0')
    a('s_mov_b64 exec, 0xffffffff')
    a(f'ds_write_b128 v14, v[28:31] offset:{4*CS}')
    a('s_mov_b64 exec, -1')
    T0 = 96
    def hround(i):
        h = HR+6*i
        if i == 4: a('s_mov_b64 exec, 3')
        off = 1024*i
        a(f'ds_write_b128 v14, v[{h}:{h+3}] offset:{off}')
        for q in range(4): a(f'v_alignbit_b32 v{T0+q}, v{h+q+1}, v{h+q}, 16')
        a(f'ds_write_b128 v14, v[{T0}:{T0+3}] offset:{CS+off}')
        a(f'v_mov_b32 v{T0+4}, v{h+1}\nv_mov_b32 v{T0+5}, v{h+2}\nv_mov_b32 v{T0+6}, v{h+3}\nv_mov_b32 v{T0+7}, v{h+4}')
        a(f'ds_write_b128 v14, v[{T0+4}:{T0+7}] offset:{2*CS+off}')
        for q in range(4): a(f'v_alignbit_b32 v{T0+8+q}, v{h+q+2}, v{h+q+1}, 16')
        a(f'ds_write_b128 v14, v[{T0+8}:{T0+11}] offset:{3*CS+off}')
        if i == 4: a('s_mov_b64 exec, -1')
    a.wait_vm(tk['tst'])
    a('s_waitcnt lgkmcnt(0)')
    tag_from_epoch(a)
    a('s_barrier')
    a.flag_store('s41', 'v4', 'v5', rep=4, stride=128)
    a.st('C_tflag')
    a.wait_vm(tk['th'])
    a.st('C_hret')
    for i in range(5): hround(i)
    a.wait_vm(tk['tD'])
    AD = 28
    a('v_lshl_add_u32 v21, v16, 3, v15\nv_sub_u32 v21, 15, v21')
    a('v_and_b32 v22, 1, v21\nv_lshlrev_b32 v22, 4, v22\nv_lshlrev_b32 v22, v22, v153\nv_ashrrev_i32 v21, 1, v21')
    a('s_waitcnt lgkmcnt(0)')
    for wd in range(4):
        a(f'v_cmp_eq_u32 vcc, {wd}, v21\nv_cndmask_b32 v{AD+wd}, 0, v22, vcc')
    a.st('C_hcopy')

def conv_main(a, tk):
    a(f's_lshr_b32 s42, s2, 5\ns_lshl_b32 s42, s42, 2\ns_and_b32 s43, s2, 3\ns_add_u32 s42, s42, s43\ns_lshl_b32 s42, s42, 7\ns_add_u32 s42, s42, {FT}')
    a('v_and_b32 v4, 31, v2\nv_lshlrev_b32 v4, 2, v4')
    a.poll_w0(1, 'v4', 's42', 5)
    a.st('C_tpoll')
    a(f's_add_u32 s43, s33, {UT}\ns_add_u32 s44, s35, {4*CS+512}')
    a('s_mov_b32 m0, s44')
    for i in range(4):
        tu = a(f'buffer_load_dwordx4 v3, {WS}, s43 offen offset:{1024*i} sc1 lds')
    a.wait_vm(tu)
    a.st('C_uret')
    a('v_min_u32 v6, 15, v2\nv_lshlrev_b32 v6, 4, v6\nv_min_u32 v7, 23, v2\nv_lshlrev_b32 v7, 4, v7')
    a(f's_and_b32 s45, s2, 15\ns_lshl_b32 s52, s45, 9\ns_lshl_b32 s45, s45, 8\ns_add_u32 s45, s45, {FQ}\ns_add_u32 s52, s52, {FW}')
    tq = a.poll1_issue(4, 'v6', 's45', 8)
    tfw = []
    AD = 28
    A = [64, 128]; B = [96, 160]; ACC = 32
    def loads(buf):
        L = []
        for x in range(8):
            L.append(f'ds_read_b128 v[{B[buf]+4*x}:{B[buf]+4*x+3}], v19 offset:{512*x}')
            L.append(f'ds_read_b64 v[{A[buf]+4*x}:{A[buf]+4*x+1}], v18 offset:{512*x}')
            L.append(f'ds_read_b64 v[{A[buf]+4*x+2}:{A[buf]+4*x+3}], v18 offset:{512*x+8}')
        return L
    for s in loads(0): a(s)
    a('v_add_u32 v18, 64, v18\nv_subrev_u32 v19, 64, v19')
    a('s_waitcnt lgkmcnt(0)')
    for t in range(8):
        a(f'v_mfma_f32_16x16x32_bf16 v[{ACC+4*t}:{ACC+4*t+3}], v[{AD}:{AD+3}], v[{B[0]+4*t}:{B[0]+4*t+3}], 0')
    QR = 192; QLO = 208; QST = 224; LNQ = 96
    extra = {}
    q_tok = []; s_tok = []
    def ql_check():
        a.st('C_b3')
        a.poll1_check(tq, 4, 'v6', 's45', 8)
        a.st('C_fq')
        tfw.append(a.poll1_issue(4, 'v7', 's52', 8))
    def fw_check():
        a.poll1_check(tfw[0], 4, 'v7', 's52', 8)
        a.st('C_fw')
    def ql_addr():
        a('v_mul_u32_u24 v24, 40960, v16\nv_lshl_add_u32 v24, v15, 4, v24')
        a(f's_mul_i32 s48, s{SW}, {16*40960}\ns_lshl_b32 s49, s2, 8\ns_add_u32 s48, s48, s49')
        a(f's_add_u32 s46, s48, {QG}\ns_add_u32 s49, s48, {YG}\ns_add_u32 s48, s48, {X1}')
        a(f's_lshl_b32 s47, s{SW}, 12\ns_add_u32 s47, s47, {QS}')
    def q_load(k):
        def f():
            if k > 0: a(f's_add_u32 s46, s46, {4*40960}')
            q_tok.append(a(f'buffer_load_dwordx4 v[{QR+4*k}:{QR+4*k+3}], v24, {WS}, s46 offen sc1'))
            s_tok.append(a(f'buffer_load_dwordx4 v[{QST+4*k}:{QST+4*k+3}], v3, {WS}, s47 offen offset:{1024*k} sc1'))
        return f
    extra[QBLK] = [ql_check, ql_addr] + [q_load(k) for k in range(4)]
    unp = []
    for k in range(4):
        unp.append(lambda k=k: a.wait_vm(s_tok[k]))
        for i in range(4*k, 4*k+4):
            unp.append(f'v_lshlrev_b32 v{QLO+i}, 16, v{QR+i}')
            unp.append(f'v_and_b32 v{QR+i}, s40, v{QR+i}')
        for tok in range(2):
            for c in range(4):
                iq = 4*k + 2*tok + (c >> 1)
                rq = (QLO+iq) if (c & 1) == 0 else (QR+iq)
                unp.append(f'v_fma_f32 v{LNQ+8*k+4*tok+c}, v{rq}, v{QST+4*k+2*tok+1}, v{QST+4*k+2*tok}')
    extra[7] = unp
    import g2g
    extra[4] = [fw_check]
    for i in range(5):
        L = [f's_add_u32 s81, s{SW}, {4*i}', 's_min_u32 s81, s81, 18'] + g2g.quad_dma_dyn('s81', 'v3')
        extra.setdefault(4 + i//2, []).extend(L)
    cs_tok = []
    extra[6].extend(g2g.cs_issue_list('v3'))
    extra[6].append(lambda: cs_tok.append(a.vm_issued))
    for blk in range(8):
        if blk == 7: a.st('C_b7')
        buf = blk & 1
        L = loads(buf ^ 1) if blk < 7 else []
        X = list(extra.get(blk, []))
        n = 0
        for q in range(8):
            for dl in range(8 - q):
                t = q + dl
                a(f'v_mfma_f32_16x16x32_bf16 v[{ACC+4*t}:{ACC+4*t+3}], v[{A[buf]+4*q}:{A[buf]+4*q+3}], v[{B[buf]+4*dl}:{B[buf]+4*dl+3}], v[{ACC+4*t}:{ACC+4*t+3}]')
                if n < len(L): a(L[n])
                if X and (n >= len(L) or n % 2 == 0 or len(X) > 36 - n):
                    x = X.pop(0)
                    x() if callable(x) else a(x)
                n += 1
        for x in X: x() if callable(x) else a(x)
        if blk < 7:
            a('v_add_u32 v18, 64, v18\nv_subrev_u32 v19, 64, v19')
            a('s_waitcnt lgkmcnt(0)')
    a.st('C_loop')
    a('v_lshlrev_b32 v21, 6, v15\nv_lshl_add_u32 v21, v16, 4, v21\nv_add_u32 v21, s35, v21')
    for t in range(8):
        r = ACC+4*t
        a(f'ds_write_b128 v21, v[{r}:{r+3}] offset:{1024*t}')
    a(f's_lshl_b32 s47, s{SW}, 11\ns_add_u32 s47, s47, {CONV_BASE}\nv_lshl_add_u32 v22, v2, 3, s47')
    a(f'v_add_u32 v23, {2*WLDS}, v22')
    a('s_waitcnt lgkmcnt(0)\ns_barrier')
    YV = 64
    tk = []
    for k in range(4):
        for c in range(4):
            base = 'v22' if c < 2 else 'v23'
            t = a(f'ds_read_b64 v[{YV+8*k+2*c}:{YV+8*k+2*c+1}], {base} offset:{(c&1)*WLDS + 512*k}')
        tk.append(t)
    O = 128
    for k in range(4):
        a.wait_lg(tk[k])
        for tok in range(2):
            for c in range(4):
                iq = 4*k + 2*tok + (c >> 1)
                rq = (QLO+iq) if (c & 1) == 0 else (QR+iq)
                a(f'v_fma_f32 v{rq}, v{LNQ+8*k+4*tok+c}, v{YV+8*k+2*c+tok}, v{rq}')
        o = O + 4*k
        for tok in range(2):
            for h in range(2):
                iq = 4*k + 2*tok + h
                a(f'v_cvt_pk_bf16_f32 v{o+2*tok+h}, v{QLO+iq}, v{QR+iq}')
        a(f'buffer_store_dwordx4 v[{o}:{o+3}], v24, {WS}, s48 offen sc1')
        if k < 3: a(f's_add_u32 s48, s48, {4*40960}')
    a.st('C_x1st')
    OY = 48
    for k in range(4):
        o = OY + 4*k
        for tok in range(2):
            for h in range(2):
                a(f'v_cvt_pk_bf16_f32 v{o+2*tok+h}, v{YV+8*k+4*h+tok}, v{YV+8*k+4*h+2+tok}')
    if not STAGE1:
        a.wait_vm(cs_tok[0])
        g2g.cs_finish(a)
    a('s_waitcnt vmcnt(0)\ns_barrier')
    a(f's_lshl_b32 s50, s2, 2\ns_add_u32 s51, s50, {FY}\ns_add_u32 s50, s50, {FX1}')
    a.flag_store('s50', 'v4', 'v5', rep=16, stride=1024)
    a.st('C_x1flag')
    if STAGE1:
        for k in range(4):
            o = OY + 4*k
            a(f'buffer_store_dwordx4 v[{o}:{o+3}], v24, {WS}, s49 offen sc1')
            if k < 3: a(f's_add_u32 s49, s49, {4*40960}')
        return
    a(f'v_mov_b32 v{g2g.YOFF}, v24\ns_mov_b32 {g2g.sYB}, s49\ns_mov_b32 {g2g.sROLE}, 1')
    g2g.l16(a)
    lab = a.newlab('nd')
    a(f's_cmp_eq_u32 s{SW}, 1\ns_cbranch_scc1 {lab}')
    a(f's_min_u32 s82, s{SW}, 1\ns_sub_u32 s82, s{SW}, s82\ns_add_u32 s82, s82, 19')
    sv = a.vm_issued
    for i in range(7):
        a('s_min_u32 s81, s82, 38')
        for x in g2g.quad_dma_dyn('s81', f'v{g2g.L16}'): a(x)
        a('s_add_u32 s82, s82, 3')
    a.vm_issued = sv
    a.label(lab)
    g2g.g1_consts(a)

def allred_rows(a, regs, tmp):
    for r in regs:
        a(f'v_mov_b32 {tmp}, {r}\nv_permlane16_swap_b32 {tmp}, {r}\nv_add_f32 {r}, {r}, {tmp}')
    for r in regs:
        a(f'v_mov_b32 {tmp}, {r}\nv_permlane32_swap_b32 {tmp}, {r}\nv_add_f32 {r}, {r}, {tmp}')

QR0 = 164
QS_LDS = 0x15000
PR, PO, PCS, PONE = 20, 116, 208, 204
SG, SU, SDN, SQ = 8, 12, 16, 20

QG_LDS = 0
QRAW = 164
def qg_issue(a):
    a(f's_mul_i32 s29, s28, 40960\ns_mul_i32 s30, s{SW}, 10240\ns_add_u32 s29, s29, s30')
    a('v_lshlrev_b32 v13, 4, v2')
    tk = []
    for i in range(10):
        if i % 4 == 0 and i > 0: a('s_add_u32 s29, s29, 4096')
        tk.append(a(f'buffer_load_dwordx4 v[{QRAW+4*i}:{QRAW+4*i+3}], v13, s[{SQ}:{SQ+3}], s29 offen offset:{1024*(i&3)}'))
    return tk

def qg_stage(a, tk):
    a(f's_lshl_b32 s30, s{SW}, 3\ns_movk_i32 s31, 205')
    for i in range(10):
        a(f'v_add_u32 v14, {64*i}, v2\nv_mul_u32_u24 v17, s31, v14\nv_lshrrev_b32 v17, 14, v17')
        a('v_mul_u32_u24 v18, 80, v17\nv_sub_u32 v14, v14, v18\nv_add_u32 v17, s30, v17')
        a('v_lshrrev_b32 v18, 1, v17\nv_xor_b32 v18, v18, v14\nv_and_b32 v18, 15, v18\nv_lshlrev_b32 v18, 4, v18')
        a('v_and_b32 v17, 1, v17\nv_lshl_add_u32 v18, v17, 3, v18\nv_lshl_add_u32 v18, v14, 9, v18')
        a.wait_vm(tk[i])
        a(f'ds_write_b64 v18, v[{QRAW+4*i}:{QRAW+4*i+1}] offset:{QG_LDS}')
        a(f'ds_write_b64 v18, v[{QRAW+4*i+2}:{QRAW+4*i+3}] offset:{QG_LDS+256}')
    a(f's_mul_i32 s30, s{SW}, 40\nv_add_u32 v14, s30, v4')
    a('s_waitcnt lgkmcnt(0)\ns_barrier')
    tr = []
    for i in range(10):
        a(f'v_add_u32 v17, {4*i}, v14\nv_lshrrev_b32 v18, 1, v17\nv_xor_b32 v18, v18, v3\nv_and_b32 v18, 15, v18\nv_lshlrev_b32 v18, 4, v18\nv_lshl_add_u32 v18, v17, 8, v18')
        tr.append(a(f'ds_read_b128 v[{QR0+4*i}:{QR0+4*i+3}], v18 offset:{QG_LDS}'))
    return tr

def qg_finish(a, tk):
    a(f's_mul_i32 s29, s28, 40960\ns_mul_i32 s30, s{SW}, {40*256}\ns_add_u32 s29, s29, s30\ns_add_u32 s29, s29, {QG}')
    a('v_lshlrev_b32 v15, 4, v3\nv_lshl_add_u32 v15, v4, 8, v15')
    S0 = 208
    tr = qg_stage(a, tk)
    for i in range(10):
        a.wait_lg(tr[i])
        if i % 4 == 0 and i > 0: a('s_add_u32 s29, s29, 4096')
        tlast = a(f'buffer_store_dwordx4 v[{QR0+4*i}:{QR0+4*i+3}], v15, {WS}, s29 offen offset:{1024*(i&3)} sc1')
        for h in range(2):
            for tok in range(2):
                r = QR0+4*i+2*tok+h
                s_, q_ = S0+2*tok, S0+1+2*tok
                first = (i == 0 and h == 0)
                a(f'v_dot2_f32_bf16 v{s_}, v{r}, s38, {"0" if first else f"v{s_}"}')
                a(f'v_dot2_f32_bf16 v{q_}, v{r}, v{r}, {"0" if first else f"v{q_}"}')
    allred_rows(a, [f'v{S0+i}' for i in range(4)], 'v212')
    a(f's_lshl_b32 s31, s{SW}, 8\ns_add_u32 s31, s31, {QS_LDS}\nv_lshlrev_b32 v16, 4, v3\nv_add_u32 v17, s31, v16')
    a(f'v_add_u32 v18, {QS_LDS}, v16')
    a(f'ds_write_b128 v17, v[{S0}:{S0+3}]\ns_waitcnt lgkmcnt(0)\ns_barrier')
    for w in range(4): t = a(f'ds_read_b128 v[{216+4*w}:{219+4*w}], v18 offset:{256*w}')
    a.wait_lg(t)
    for e in range(4):
        a(f'v_add_f32 v{216+e}, v{216+e}, v{220+e}\nv_add_f32 v{224+e}, v{224+e}, v{228+e}\nv_add_f32 v{S0+e}, v{216+e}, v{224+e}')
    a('s_mov_b32 s33, 0x3acccccd\ns_mov_b32 s34, 0x3727c5ac')
    for tok in range(2):
        m, q_ = S0+2*tok, S0+1+2*tok
        a(f'v_mul_f32 v{m}, s33, v{m}\nv_mul_f32 v{q_}, s33, v{q_}\nv_fma_f32 v{q_}, -v{m}, v{m}, v{q_}\nv_max_f32 v{q_}, 0, v{q_}\nv_add_f32 v{q_}, s34, v{q_}\nv_rsq_f32 v{q_}, v{q_}')
        a(f's_nop 0\nv_mul_f32 v{m}, v{m}, v{q_}\nv_sub_f32 v{m}, 0, v{m}')
    a(f's_lshl_b32 s31, s28, 8\ns_add_u32 s31, s31, {QS}')
    lab = a.newlab('qs')
    a(f's_cmp_lg_u32 s{SW}, 0\ns_cbranch_scc1 {lab}')
    a('s_mov_b64 exec, 0xffff')
    a(f'buffer_store_dwordx4 v[{S0}:{S0+3}], v16, {WS}, s31 offen sc1')
    a.vm_issued -= 1
    a('s_mov_b64 exec, -1')
    a.label(lab)
    return tlast

def p_perms(a, t, ob):
    r = PR+16*t; O = PO+16*ob
    for c in range(4):
        for p in range(4):
            sel = 's36' if (c & 1) == 0 else 's37'
            a(f'v_perm_b32 v{O+4*c+p}, v{r+2*(2*p+1)+(c>>1)}, v{r+2*(2*p)+(c>>1)}, {sel}')

def w1_issue(a, t, T, masked=False):
    a(f's_mul_i32 s24, {T}, 3277\ns_lshr_b32 s24, s24, 16\ns_mul_i32 s26, s24, 20\ns_sub_u32 s26, {T}, s26')
    a(f's_cmp_ge_u32 s24, 27\ns_cselect_b32 s{SG}, s{SU}, s{SGS}\ns_cselect_b32 s{SG+1}, s{SU+1}, s{SGS+1}')
    a('s_cselect_b32 s29, 27, 0\ns_cselect_b32 s30, 512, 0\ns_sub_u32 s24, s24, s29')
    a(f's_mul_i32 s31, s26, {32*3456}\ns_lshl_b32 s32, s24, 7\ns_add_u32 s31, s31, s32')
    v0 = PMSK if masked else 5
    for e in range(8):
        tk = a(f'buffer_load_dwordx2 v[{PR+16*t+2*e}:{PR+16*t+2*e+1}], v{v0+(e>>1)}, s[{SG}:{SG+3}], s31 offen offset:{3456*(e&1)}')
    a(f's_mul_i32 s31, s24, {4*40960}\ns_lshl_b32 s32, s26, 11\ns_add_u32 s31, s31, s32\ns_add_u32 s31, s31, s30\ns_add_u32 s{41+t}, s31, {W1P}')
    a(f's_mul_i32 s31, s26, 13824\ns_lshl_b32 s32, s24, 9\ns_add_u32 s31, s31, s32\ns_lshr_b32 s30, s30, 3\ns_add_u32 s31, s31, s30\ns_add_u32 s{47+t}, s31, {CSP}')
    return tk

def w1_finish(a, t, tk, ob, masked=False):
    a.wait_vm(tk)
    p_perms(a, t, ob)
    O = PO+16*ob; C = PCS + 16*ob
    vd = PMSK+4 if masked else 9
    vc = PMSK+5 if masked else 19
    vd2 = PMSK+6 if masked else 10
    for c in range(4):
        a(f'v_mfma_f32_16x16x32_bf16 v[{C+4*c}:{C+4*c+3}], v[{O+4*c}:{O+4*c+3}], v[{PONE}:{PONE+3}], 0')
        a(f'buffer_store_dwordx4 v[{O+4*c}:{O+4*c+3}], v{vd if c < 2 else vd2}, {WS}, s{41+t} offen offset:{128*(c&1)+256*(c>>1)} sc1')
    a('s_mov_b32 exec_lo, 0x00010001\ns_mov_b32 exec_hi, 0x00010001')
    for c in range(4):
        a(f'buffer_store_dwordx4 v[{C+4*c}:{C+4*c+3}], v{vc}, {WS}, s{47+t} offen offset:{16*c} sc1')
    a('s_mov_b64 exec, -1')

def wd_addr(a, vl_quad, vl_grp, vsa, vsb, vd, vt):
    a(f'v_lshrrev_b32 v{vsa}, 1, v{vl_grp}\nv_lshlrev_b32 v{vsa}, 4, v{vsa}\nv_and_b32 v{vt}, 1, v{vl_grp}\nv_lshl_add_u32 v{vsa}, v{vt}, 2, v{vsa}')
    a(f'v_mul_u32_u24 v{vsa}, 1280, v{vsa}\nv_lshl_add_u32 v{vsa}, v{vl_quad}, 3, v{vsa}\nv_add_u32 v{vsb}, 10240, v{vsa}')
    a(f'v_and_b32 v{vd}, 3, v{vl_quad}\nv_lshlrev_b32 v{vd}, 4, v{vd}\nv_lshl_add_u32 v{vd}, v{vl_grp}, 8, v{vd}')
    a(f'v_lshrrev_b32 v{vt}, 2, v{vl_quad}\nv_mul_u32_u24 v{vt}, 55296, v{vt}\nv_add_u32 v{vd}, v{vt}, v{vd}')

def wd_issue(a, raw, T, sdst, srd, vsa, vsb, st=('s29', 's30', 's31', 's32')):
    x, y, z, u = st
    a(f's_min_u32 {x}, {T}, 539\ns_mul_i32 {y}, {x}, 6554\ns_lshr_b32 {y}, {y}, 16')
    a(f's_mul_i32 {z}, {y}, 10\ns_sub_u32 {x}, {x}, {z}')
    a(f's_mul_i32 {z}, {y}, {32*1280}\ns_lshl_b32 {u}, {x}, 7\ns_add_u32 {z}, {z}, {u}')
    for e in range(8):
        tk = a(f'buffer_load_dwordx2 v[{raw+2*e}:{raw+2*e+1}], v{(vsa, vsb)[e>>2]}, s[{srd}:{srd+3}], {z} offen offset:{1280*(e&3)}')
    a(f's_mul_i32 {z}, {x}, {4*55296}\ns_lshl_b32 {u}, {y}, 10\ns_add_u32 {z}, {z}, {u}\ns_add_u32 {sdst}, {z}, {WDP}')
    return tk

def wd_finish(a, raw, O, tk, sdst, vd, sel0, sel1):
    a.wait_vm(tk)
    for c in range(4):
        for p in range(4):
            sel = sel0 if (c & 1) == 0 else sel1
            a(f'v_perm_b32 v{O+4*c+p}, v{raw+2*(2*p+1)+(c>>1)}, v{raw+2*(2*p)+(c>>1)}, {sel}')
    for c in range(4):
        t = a(f'buffer_store_dwordx4 v[{O+4*c}:{O+4*c+3}], v{vd}, {WS}, {sdst} offen offset:{64*c} sc1')
    return t

SGS = 52
WDA = 240
def p_flag(a, base, stride, sreg='s56'):
    a(f's_lshl_b32 {sreg}, s28, 2\ns_add_u32 {sreg}, {sreg}, {base}')
    a.flag_store(sreg, 'v16', 'v17', rep=16, stride=stride)

def phase_P(a):
    a(f's_mov_b32 s{SGS}, s{SG}\ns_mov_b32 s{SGS+1}, s{SG+1}')
    a('s_sub_u32 s28, s2, 160')
    a('v_and_b32 v2, 63, v0\nv_and_b32 v3, 15, v2\nv_lshrrev_b32 v4, 4, v2')
    a('s_mov_b32 s36, 0x05040100\ns_mov_b32 s37, 0x07060302\ns_mov_b32 s38, 0x3f803f80')
    a(f's_lshl_b32 s50, s28, 2\ns_add_u32 s50, s50, s{SW}')
    a('s_mul_i32 s25, s50, 3')
    def w1_addr():
        a('v_mul_u32_u24 v5, 27648, v4\nv_lshl_add_u32 v5, v3, 3, v5')
        a('v_add_u32 v6, 6912, v5\nv_add_u32 v7, 13824, v5\nv_add_u32 v8, 20736, v5')
        a('v_and_b32 v12, 3, v3\nv_lshlrev_b32 v12, 4, v12\nv_and_b32 v19, 1, v4\nv_lshl_add_u32 v12, v19, 6, v12')
        a('v_lshrrev_b32 v19, 1, v4\nv_lshl_add_u32 v12, v19, 10, v12')
        a('v_lshrrev_b32 v19, 2, v3\nv_mul_u32_u24 v9, 40960, v19\nv_add_u32 v9, v9, v12\nv_xor_b32 v10, 64, v9')
        a('v_lshlrev_b32 v19, 7, v4')
        for i in range(4): a(f'v_mov_b32 v{PONE+i}, s38')
        a(f's_cmp_lt_u32 s25, 1080\ns_cselect_b32 s35, 0, {OOB}')
        for r in (5, 6, 7, 8, 9, 10, 19): a(f'v_or_b32 v{r}, s35, v{r}')
        wd_addr(a, 3, 4, WDA, WDA+1, WDA+2, WDA+3)
    def w1_tasks():
        tk = []
        for t in range(3):
            a(f's_add_u32 s33, s25, {t}\ns_min_u32 s33, s33, 1079')
            tk.append(w1_issue(a, t, 's33'))
        return tk
    WDS = ('s29', 's30', 's31', 's32')
    a('s_cmp_ge_u32 s28, 64\ns_cbranch_scc1 L_pp_nq')
    qtk = qg_issue(a)
    w1_addr()
    a.wait_vm(qtk[QDELAY])
    a.st('P_qret')
    tA = w1_tasks()
    a.st('P_issued')
    tq = qg_finish(a, qtk)
    a.st('P_qst')
    td = wd_issue(a, PR+48, 's50', 's44', SDN, WDA, WDA+1, st=WDS)
    w1_finish(a, 0, tA[0], 0)
    a('s_waitcnt lgkmcnt(0)')
    tag_from_epoch(a)
    a.wait_vm(tq)
    a('s_barrier')
    p_flag(a, FQ, 256)
    a.st('P_fq')
    for t in (1, 2): w1_finish(a, t, tA[t], t & 1)
    a('s_waitcnt vmcnt(0)\ns_barrier')
    a.reset_counts()
    p_flag(a, FW, 512)
    a.st('P_w1')
    wd_finish(a, PR+48, PO, td, 's44', WDA+2, 's36', 's37')
    a('s_branch L_pp_end')
    a.label('L_pp_nq'); a.reset_counts()
    w1_addr()
    tC = w1_tasks()
    a.st('P_issued')
    a('s_sub_u32 s54, s50, 256\ns_lshl_b32 s54, s54, 1\ns_add_u32 s54, s54, 256')
    a.wait_vm(tC[0])
    td = [wd_issue(a, PR+48, 's54', 's44', SDN, WDA, WDA+1, st=WDS)]
    a('s_add_u32 s54, s54, 1')
    td.append(wd_issue(a, PR+64, 's54', 's45', SDN, WDA, WDA+1, st=WDS))
    a('s_sub_u32 s54, s50, 356\ns_cselect_b32 s51, 0, 1\ns_add_u32 s54, s54, 512')
    g2g_guarded(a, 's51', lambda: wd_issue(a, PR+80, 's54', 's46', SDN, WDA, WDA+1, st=WDS))
    for t in range(3): w1_finish(a, t, tC[t], t & 1)
    a('s_waitcnt lgkmcnt(0)')
    tag_from_epoch(a)
    a('s_waitcnt vmcnt(0)\ns_barrier')
    a.reset_counts()
    p_flag(a, FW, 512)
    a.st('P_w1')
    g2g_guarded(a, 's51', lambda: wd_finish(a, PR+80, PO+16, None, 's46', WDA+2, 's36', 's37'))
    wd_finish(a, PR+48, PO, None, 's44', WDA+2, 's36', 's37')
    wd_finish(a, PR+64, PO+16, None, 's45', WDA+2, 's36', 's37')
    a.label('L_pp_end')
    a('s_waitcnt vmcnt(0)\ns_barrier')
    a.reset_counts()
    p_flag(a, FWD, 512)
    a.st('P_done')
    if STAGE1: return
    import g2g
    a(f's_mov_b32 {g2g.sROLE}, 0')
    g2g.l16(a)
    a(f'v_lshrrev_b32 v88, 4, v{g2g.L16}\nv_min_u32 v88, 23, v88\nv_lshlrev_b32 v88, 4, v88')
    a(f's_and_b32 s45, s2, 15\ns_lshl_b32 s45, s45, 9\ns_add_u32 s45, s45, {FW}')
    a.poll_w0(4, 'v88', 's45', 84)
    a.st('P_fw')
    for i in range(10):
        a(f's_add_u32 s81, s{SW}, {4*i}\ns_min_u32 s81, s81, 38')
        for x in g2g.quad_dma_dyn('s81', f'v{g2g.L16}'): a(x)
    for x in g2g.cs_issue_list(f'v{g2g.L16}'): a(x)
    g2g.g1_consts(a)
    a('s_waitcnt vmcnt(0)')
    g2g.cs_finish(a)

def g2g_guarded(a, reg, fn):
    import g2g
    g2g.guarded(a, reg, fn)
```

```python
from asmlib import Asm

S, D, F = 2048, 640, 1728
FLG  = 0x0000000
E_OFF = FLG + 0x0
FT   = FLG + 0x1000
FQ   = FLG + 0x10000
FW   = FLG + 0x11000
FY   = FLG + 0x2400
FWD  = FLG + 0x13000
FH   = [FLG + 0x3000, FLG + 0x5000]
FX3  = FLG + 0xC000
FX1  = FLG + 0x8000
ST   = [0x2440000, 0x2460000]
XS   = FLG + 0x20000
STAMPS = FLG + 0x80000
UT   = 0x0100000
QG   = 0x0380000
QS   = 0x0600000
X1   = 0x0880000
YG   = 0x0B00000
X3   = 0x0D80000
W1P  = 0x1000000
WDP  = 0x1440000
CSP  = 0x1660000
H0   = 0x16C0000
H1   = 0x1D80000
WS_USED = 0x2480000
HB = [H0, H1]
OOB = 0x80000000
LDS_BYTES = 163840

KA = dict(q=0, k=8, v=16, shk=24, ssmk=32, ssmD=40, x=48, wg=56, wu=64, wd=72, out=80, dbg=88, ws=96)
SZ = dict(q=S*D*2, k=S*D*2, v=S*D*2, shk=D*8, ssmk=D*S*2, ssmD=D*2, wg=D*F*2, wu=D*F*2, wd=D*F*2, out=S*D*2, dbg=256, ws=WS_USED)

SWS = 4
STAG = 3
SW = 59
POLL_LIMIT = 20000
WS = f's[{SWS}:{SWS+3}]'

class K(Asm):
    def __init__(self, timing=False):
        super().__init__()
        self.timing = timing
        self.nst = 0
        self.stnames = []
        self.tail = []
        self.uid = 0
    def newlab(self, p):
        self.uid += 1
        return f'L_{p}_{self.uid}'
    def st(self, name):
        if not self.timing: return
        if name in self.stnames: i = self.stnames.index(name)
        else:
            i = len(self.stnames); self.stnames.append(name)
        assert i < 64, name
        import os
        op = 's_memtime' if os.environ.get('STCYC') else 's_memrealtime'
        self(f'{op} s[60:61]\ns_waitcnt lgkmcnt(0)\nv_writelane_b32 v255, s60, {i}')
        self.lg_done = self.lg_issued
    def st_init(self):
        if not self.timing: return
        self('v_mov_b32 v255, 0')
    def st_flush(self, layer, vt='v254'):
        if not self.timing: return
        a = self
        a(f's_lshl_b32 s60, s2, 2\ns_add_u32 s60, s60, s{SW}\ns_lshl_b32 s60, s60, 9\ns_add_u32 s60, s60, {STAMPS}')
        a(f's_add_u32 s60, s60, {layer*256 if isinstance(layer, int) else layer}')
        a(f'v_mbcnt_lo_u32_b32 {vt}, -1, 0\nv_mbcnt_hi_u32_b32 {vt}, -1, {vt}\nv_lshlrev_b32 {vt}, 2, {vt}')
        a(f'buffer_store_dword v255, {vt}, {WS}, s60 offen')
    def srd_load(self, r, name):
        self(f's_load_dwordx2 s[{r}:{r+1}], s[0:1], {KA[name]}')
    def srd_fin(self, r, name):
        self(f's_mov_b32 s{r+2}, {SZ[name]}\ns_mov_b32 s{r+3}, 0x00020000')
    def flag_store(self, soff, vz, vt, rep=1, stride=0, wave=0):
        a = self
        lab = a.newlab('fs')
        a(f's_cmp_lg_u32 s{SW}, {wave}\ns_cbranch_scc1 {lab}')
        if rep == 1:
            a(f'v_mov_b32 {vz}, 0')
        else:
            a(f'v_mbcnt_lo_u32_b32 {vz}, -1, 0\nv_mul_u32_u24 {vz}, {stride}, {vz}')
        a(f'v_mov_b32 {vt}, s{STAG}\ns_mov_b64 exec, {(1 << rep) - 1}')
        a(f'buffer_store_dword {vt}, {vz}, {WS}, {soff} offen sc1')
        a.vm_issued -= 1
        a('s_mov_b64 exec, -1')
        a.label(lab)
    def poll_w0(self, nd, vaddr, soff, vd, wave=1, **kw):
        a = self
        lab = a.newlab('pw')
        sv = (a.vm_issued, a.vm_done)
        a(f's_cmp_lg_u32 s{SW}, {wave}\ns_cbranch_scc1 {lab}')
        a.poll(nd, vaddr, soff, vd, **kw)
        a.label(lab)
        a.vm_issued, a.vm_done = sv
        a('s_barrier')
    def poll1_issue(self, nd, vaddr, soff, vd, wave=1, off=0):
        a = self
        lab = a.newlab('p1')
        a(f's_cmp_lg_u32 s{SW}, {wave}\ns_cbranch_scc1 {lab}')
        a.poll_issue(nd, vaddr, soff, vd, off)
        a.vm_issued -= 1
        a.label(lab)
        return a.vm_issued
    def poll1_check(self, mark, nd, vaddr, soff, vd, wave=1, barrier=True, **kw):
        a = self
        lab = a.newlab('p1c')
        sv = (a.vm_issued, a.vm_done)
        a(f's_cmp_lg_u32 s{SW}, {wave}\ns_cbranch_scc1 {lab}')
        n = min(a.vm_issued - mark, 63)
        a(f's_waitcnt vmcnt({n})')
        a.vm_done = sv[1]
        a.poll_check(None, nd, vaddr, soff, vd, **kw)
        a.label(lab)
        a.vm_issued, a.vm_done = sv
        if barrier: a('s_barrier')
    def _cmp(self, nd, vd):
        a = self
        if nd == 1:
            a(f'v_cmp_ne_u32 vcc, s{STAG}, v{vd}')
        else:
            for i in range(nd): a(f'v_xor_b32 v{vd+i}, s{STAG}, v{vd+i}')
            if nd == 2: a(f'v_or_b32 v{vd}, v{vd}, v{vd+1}')
            else: a(f'v_or3_b32 v{vd}, v{vd}, v{vd+1}, v{vd+2}\nv_or_b32 v{vd}, v{vd}, v{vd+3}')
            a(f'v_cmp_ne_u32 vcc, 0, v{vd}')
    def poll_issue(self, nd, vaddr, soff, vd, off=0):
        op = {1: 'buffer_load_dword', 2: 'buffer_load_dwordx2', 4: 'buffer_load_dwordx4'}[nd]
        reg = f'v{vd}' if nd == 1 else f'v[{vd}:{vd+nd-1}]'
        o = f' offset:{off}' if off else ''
        return self(f'{op} {reg}, {vaddr}, {WS}, {soff} offen{o} sc1')
    def poll_check(self, tok, nd, vaddr, soff, vd, scnt='s57', off=0, cmp=None):
        a = self
        cmp = cmp or (lambda: a._cmp(nd, vd))
        lspin = a.newlab('spin'); lback = a.newlab('back')
        a.wait_vm(tok)
        cmp()
        a(f's_cbranch_vccnz {lspin}')
        a.label(lback)
        def tail():
            a.label(lspin)
            a(f's_mov_b32 {scnt}, {POLL_LIMIT}')
            lp = a.newlab('lp')
            a.label(lp)
            sv = (a.vm_issued, a.vm_done, a.lg_issued, a.lg_done)
            a.poll_issue(nd, vaddr, soff, vd, off)
            a('s_waitcnt vmcnt(0)')
            cmp()
            a(f's_cbranch_vccz {lback}')
            a(f's_sub_u32 {scnt}, {scnt}, 1\ns_cbranch_scc0 {lp}')
            a(f's_branch {lback}')
        a.tail.append(tail)
    def poll(self, nd, vaddr, soff, vd, **kw):
        t = self.poll_issue(nd, vaddr, soff, vd, kw.get('off', 0))
        self.poll_check(t, nd, vaddr, soff, vd, **kw)
    def emit_tail(self):
        for t in self.tail: t()
        self.tail = []
```

```python
from g2base import *
import os
SH = '' if os.environ.get('PLAIN') else ' sc1'

sC, sS, sU0, sW1, sTB, sCG, sROLE = 's64', 's65', 's66', 's67', 's68', 's69', 's70'
sW4K = 's71'
sYB = 's73'
L16, WA, HOFF, NM, K1, IR2, CSR, CSA, YOFF = 224, 225, 228, 229, 230, 231, 232, 248, 249
XF = 64
WB = 232
NB, AHEAD = 6, 4
CS_LDS = 159744
RED = 98304
SOUT = 8

def role_setup(a):
    a('s_and_b32 s62, s2, 7\ns_lshr_b32 s63, s2, 3')
    a(f's_lshr_b32 {sC}, s62, 1\ns_lshl_b32 {sC}, {sC}, 2\ns_lshr_b32 {sS}, s63, 3\ns_add_u32 {sC}, {sC}, {sS}')
    a(f's_lshr_b32 {sTB}, s62, 1\ns_lshl_b32 {sTB}, {sTB}, 3\ns_add_u32 {sTB}, {sTB}, {sS}')
    a(f's_and_b32 s62, s62, 1\ns_lshl_b32 {sCG}, s62, 2\ns_add_u32 {sTB}, {sTB}, {sCG}')
    a(f's_and_b32 {sCG}, s63, 7\ns_lshl_b32 {sS}, s62, 3\ns_add_u32 {sS}, {sS}, {sCG}')
    a(f's_mul_i32 {sU0}, {sS}, 7\ns_min_u32 {sU0}, {sU0}, 101\ns_mul_i32 {sW1}, {sU0}, 40960\ns_add_u32 {sW1}, {sW1}, {W1P}')
    a(f's_lshl_b32 {sW4K}, s{SW}, 12')

def l16(a):
    a(f'v_mbcnt_lo_u32_b32 v{L16}, -1, 0\nv_mbcnt_hi_u32_b32 v{L16}, -1, v{L16}\nv_lshlrev_b32 v{L16}, 4, v{L16}')

def quad_src(g):
    return (g % 3)*40960 + (g//3)*4096 if g < 30 else 122880 + (g-30)*4096

def quad_dma_dyn(sg, vl, t=('s74', 's75', 's76')):
    x, y, z = t
    L = [f's_mul_i32 {x}, {sg}, 21846', f's_lshr_b32 {x}, {x}, 16', f's_mul_i32 {y}, {x}, 3', f's_sub_u32 {y}, {sg}, {y}',
         f's_mul_i32 {y}, {y}, 40960', f's_lshl_b32 {x}, {x}, 12', f's_add_u32 {x}, {x}, {y}',
         f's_lshl_b32 {z}, {sg}, 12',
         f's_cmp_lt_u32 {sg}, 30', f's_cselect_b32 {x}, {x}, {z}', f's_add_u32 {x}, {x}, {sW1}', f's_mov_b32 m0, {z}']
    for i in range(4):
        L.append(f'buffer_load_dwordx4 {vl}, {WS}, {x} offen offset:{1024*i}{SH} lds')
    return L

CSV = 240
CSA0 = 232
def cs_issue_list(vl16):
    vt = CSV
    L = []
    def a(t): L.extend(x for x in t.split('\n') if x)
    a(f'v_lshrrev_b32 v{vt}, 4, {vl16}')
    a(f'v_bfe_u32 v{vt+1}, v{vt}, 3, 1\ns_lshl_b32 s74, s{SW}, 1\nv_add_u32 v{vt+1}, s74, v{vt+1}\nv_min_u32 v{vt+1}, 6, v{vt+1}')
    a(f'v_and_b32 v{vt+2}, 7, v{vt}\nv_lshlrev_b32 v{vt+2}, 4, v{vt+2}')
    a(f'v_lshl_add_u32 v{vt+3}, v{vt+1}, 7, v{vt+2}')
    a(f'v_lshrrev_b32 v{vt}, 4, v{vt}\nv_mul_u32_u24 v{vt}, {5*13824}, v{vt}\nv_add_u32 v{vt}, v{vt}, v{vt+3}')
    a(f's_lshl_b32 s74, {sU0}, 7\ns_add_u32 s74, s74, {CSP}')
    for i in range(5):
        a(f'buffer_load_dwordx4 a[{CSA0+4*i}:{CSA0+4*i+3}], v{vt}, {WS}, s74 offen sc1')
        if i < 4: a('s_add_u32 s74, s74, 13824')
    a(f'v_bfe_u32 v{vt+3}, v{vt+2}, 6, 1\nv_lshlrev_b32 v{vt+3}, 4, v{vt+3}\nv_lshl_add_u32 v{vt+3}, v{vt+1}, 7, v{vt+3}')
    a(f'v_bfe_u32 v{vt+2}, v{vt+2}, 4, 2\nv_lshl_add_u32 v{vt+3}, v{vt+2}, 2, v{vt+3}\nv_add_u32 v{vt+3}, {CS_LDS}, v{vt+3}')
    return L

def cs_finish(a):
    vt = CSV
    for i in range(20): a(f'v_accvgpr_read_b32 v{64+i}, a{CSA0+i}')
    for i in range(1, 5):
        for e in range(4): a(f'v_add_f32 v{64+e}, v{64+e}, v{64+4*i+e}')
    for r in range(64, 68):
        a(f'v_mov_b32 v{vt}, v{r}\nv_permlane16_swap_b32 v{vt}, v{r}\nv_add_f32 v{r}, v{r}, v{vt}')
    for r in range(64, 68):
        a(f'v_mov_b32 v{vt}, v{r}\nv_permlane32_swap_b32 v{vt}, v{r}\nv_add_f32 v{r}, v{r}, v{vt}')
    for q3 in range(4):
        a(f'ds_write_b32 v{vt+3}, v{64+q3} offset:{(q3&1)*64 + (q3>>1)*32}')

def g1_consts(a):
    t = 250
    a(f'v_lshrrev_b32 v{t}, 4, v{L16}')
    a(f'v_bfe_u32 v{t+1}, v{t}, 2, 1\nv_bfe_u32 v{t+2}, v{t}, 4, 1\nv_lshl_add_u32 v{t+1}, v{t+2}, 1, v{t+1}')
    a(f'v_bfe_u32 v{t+2}, v{t}, 1, 1\nv_lshrrev_b32 v{t+3}, 5, v{t}\nv_xor_b32 v{t+3}, v{t+3}, v{t+2}\nv_lshl_add_u32 v{t+1}, v{t+3}, 2, v{t+1}')
    a(f'v_lshl_add_u32 v{t+1}, v{t+2}, 4, v{t+1}\nv_and_b32 v{t+2}, 1, v{t}\nv_lshl_add_u32 v{t+1}, v{t+2}, 3, v{t+1}')
    a(f'v_bfe_u32 v{t+2}, v{t}, 3, 1\nv_lshl_add_u32 v{t+1}, v{t+2}, 5, v{t+1}')
    a(f'v_lshlrev_b32 v{WA}, 4, v{t+1}\nv_add_u32 v{WA+1}, 0x10000, v{WA}\nv_add_u32 v{WA+2}, 0x20000, v{WA}')
    a(f'v_and_b32 v{t+1}, 7, v{t}\nv_bfe_u32 v{t+2}, v{t}, 4, 1\nv_lshl_add_u32 v{t+1}, v{t+1}, 1, v{t+2}\nv_lshlrev_b32 v{t+1}, 4, v{t+1}')
    a(f'v_bfe_u32 v{t+2}, v{t}, 3, 1\nv_mul_u32_u24 v{t+2}, 55296, v{t+2}\nv_add_u32 v{t+1}, v{t+1}, v{t+2}')
    a(f'v_lshrrev_b32 v{t+2}, 5, v{t}\nv_lshl_add_u32 v{HOFF}, v{t+2}, 8, v{t+1}')
    a(f'v_lshlrev_b32 v{CSA}, 6, v{t+2}\nv_add_u32 v{CSA}, {CS_LDS}, v{CSA}')

def g1_seq():
    seq = []
    for ks in range(40):
        for u in range(3): seq.append((u, ks, 3*(ks >> 2) + u))
    for u in range(3, 7):
        for ks in range(40): seq.append((u, ks, 30 + 10*(u-3) + (ks >> 2)))
    return seq

def lds_addr(off):
    return (f'v{WA + (off >> 16)}', off & 0xffff)

def guarded(a, cond_reg, fn):
    lab = a.newlab('gd')
    a(f's_cmp_eq_u32 {cond_reg}, 0\ns_cbranch_scc1 {lab}')
    sv = a.vm_issued
    fn()
    a.vm_issued = sv
    a.label(lab)

def poll2(a, toks, regs, issue, cmp):
    lspin = a.newlab('spin'); lback = a.newlab('back')
    a.wait_vm(toks)
    cmp()
    a(f's_cbranch_vccnz {lspin}')
    a.label(lback)
    def tail():
        a.label(lspin)
        a(f's_mov_b32 s57, {POLL_LIMIT}')
        lp = a.newlab('lp'); a.label(lp)
        issue()
        a('s_waitcnt vmcnt(0)')
        cmp()
        a(f's_cbranch_vccz {lback}')
        a(f's_sub_u32 s57, s57, 1\ns_cbranch_scc0 {lp}')
        a(f's_branch {lback}')
    a.tail.append(tail)

NXUP = int(os.environ.get('NXUP', 16))
NWDG1 = int(os.environ.get('NWDG1', 50))
EPB = int(os.environ.get('EPB', 3))

def wd_list():
    return [(k, cb) for k in range(14) for cb in range(5)]
def wd_reg(k, cb):
    i = 5*k + cb
    return f'a[{4*i}:{4*i+3}]' if i < 58 else f'v[{4*(i-58)}:{4*(i-58)+3}]'
sWD = ['s84', 's85', 's86', 's87', 's88']
def wd_bases(a):
    a(f's_mul_i32 s79, s{SW}, 14\ns_cmp_eq_u32 s{SW}, 3\ns_cselect_b32 s74, 1, 0\ns_sub_u32 s79, s79, s74\ns_lshl_b32 s79, s79, 10')
    a(f's_mul_i32 s74, {sCG}, {5*55296}\ns_add_u32 s79, s79, s74\ns_add_u32 {sWD[0]}, s79, {WDP}')
    for cb in range(1, 5): a(f's_add_u32 {sWD[cb]}, {sWD[cb-1]}, 55296')
def wd_load(k, cb, vo=None):
    L = []
    L.append(f'buffer_load_dwordx4 {wd_reg(k, cb)}, {vo or "v%d" % L16}, {WS}, {sWD[cb]} offen offset:{1024*(k&3)}{SH}')
    if k & 3 == 3: L.append(f's_add_u32 {sWD[cb]}, {sWD[cb]}, 4096')
    return L

def G1(a, layer):
    X = X1 if layer == 0 else X3
    H = HB[layer]
    seq = g1_seq()
    tg = f'G1{layer}_'
    a.st(tg + 'go')
    a(f's_lshl_b32 s72, {sC}, 2\ns_add_u32 s72, s72, s{SW}\ns_mul_i32 s72, s72, 40960\ns_add_u32 s72, s72, {X}')
    xt = []
    def xload():
        ks = len(xt)
        if ks % 4 == 0 and ks > 0: a('s_add_u32 s72, s72, 4096')
        xt.append(a(f'buffer_load_dwordx4 v[{XF+4*ks}:{XF+4*ks+3}], v{L16}, {WS}, s72 offen offset:{1024*(ks&3)}{SH}'))
    NX0 = 4
    for ks in range(NX0): xload()
    SR = CSR
    a(f'v_lshrrev_b32 v250, 6, v{L16}\nv_lshlrev_b32 v250, 8, v250\nv_and_b32 v251, 0x30, v{L16}\nv_or_b32 v250, v250, v251')
    a(f'v_mov_b32 v252, {(OOB)}\nv_cmp_le_u32 vcc, 0x200, v{L16}\nv_cndmask_b32 v251, 0, v252, vcc\nv_or_b32 v251, v251, v250')
    a(f's_lshr_b32 s74, {sS}, 2\ns_lshl_b32 s75, {sC}, 2\ns_add_u32 s74, s74, s75\ns_mul_i32 s74, s74, 40960')
    a(f's_and_b32 s75, {sS}, 3\ns_lshl_b32 s75, s75, 6\ns_add_u32 s74, s74, s75\ns_mul_i32 s75, s{SW}, 10240\ns_add_u32 s74, s74, s75\ns_add_u32 s74, s74, {X}')
    stt = []
    for i in range(3):
        stt.append(a(f'buffer_load_dwordx4 v[{SR+4*i}:{SR+4*i+3}], v{251 if i == 2 else 250}, {WS}, s74 offen{SH}'))
        if i < 2: a('s_add_u32 s74, s74, 4096')
    for ks in range(NX0, NXUP): xload()
    rd_tok = {}
    def rd(s):
        if s >= len(seq): return
        u, ks, g = seq[s]
        reg, off = lds_addr((g % 39)*4096 + (ks & 3)*1024)
        b = WB + 4*(s % NB)
        rd_tok[s] = a(f'ds_read_b128 a[{b}:{b+3}], {reg} offset:{off}')
    for s in range(AHEAD): rd(s)
    a(f's_lshl_b32 s75, {sC}, 2\ns_add_u32 s75, s75, s{SW}\ns_mul_i32 s75, s75, 110592\ns_lshl_b32 s76, {sU0}, 9\ns_add_u32 s75, s75, s76\ns_add_u32 s77, s75, {H}')
    a(f's_mov_b32 s82, {sW4K}\ns_add_u32 s83, {sW4K}, {quad_src(39)}\ns_add_u32 s83, s83, {sW1}')
    if layer == 0: wd_bases(a)
    def swaps(ks):
        r = XF + 4*ks
        return [f'v_permlane16_swap_b32 v{r}, v{r+2}', f'v_permlane16_swap_b32 v{r+1}, v{r+3}']
    Q = []
    def push(at, items):
        for it in items: Q.append([at, it])
    S0 = CSR + 12
    st = [lambda: a.wait_vm(stt[2])]
    for i in range(3):
        for h in range(4):
            r = SR + 4*i + h; s_ = S0 + 2*(h >> 1); q_ = s_ + 1
            first = (i == 0 and (h & 1) == 0)
            st += [f'v_lshlrev_b32 v250, 16, v{r}', f'v_and_b32 v251, s78, v{r}']
            if first: st += [f'v_add_f32 v{s_}, v250, v251', f'v_mul_f32 v{q_}, v250, v250']
            else: st += [f'v_add_f32 v{s_}, v{s_}, v250', f'v_fmac_f32 v{q_}, v250, v250', f'v_add_f32 v{s_}, v{s_}, v251']
            st += [f'v_fmac_f32 v{q_}, v251, v251']
    for rot in (4, 8):
        for e in range(4): st.append(f'v_add_f32_dpp v{S0+e}, v{S0+e}, v{S0+e} row_ror:{rot} row_mask:0xf bank_mask:0xf')
    for op in ('v_permlane16_swap_b32', 'v_permlane32_swap_b32'):
        for e in range(4): st += [f'v_mov_b32 v{250+e}, v{S0+e}']
        for e in range(4): st += [f'{op} v{250+e}, v{S0+e}']
        for e in range(4): st += [f'v_add_f32 v{S0+e}, v{S0+e}, v{250+e}']
    st += [f'v_and_b32 v254, 0x40, v{L16}', 'v_cmp_ne_u32 vcc, 0, v254',
           f's_lshr_b32 s74, {sS}, 2', 's_lshl_b32 s74, s74, 9',
           f'v_cndmask_b32 v250, v{S0}, v{S0+2}, vcc', f'v_cndmask_b32 v252, v{S0+1}, v{S0+3}, vcc',
           f'v_mov_b32 v251, s{STAG}', f'v_mov_b32 v253, s{STAG}',
           'v_lshlrev_b32 v254, 2, v254', f'v_and_b32 v{S0}, 0x30, v{L16}', f'v_add_u32 v254, v254, v{S0}',
           f's_and_b32 s75, {sS}, 3', 's_lshl_b32 s75, s75, 6', 's_add_u32 s74, s74, s75',
           f's_lshl_b32 s75, s{SW}, 11', 's_add_u32 s74, s74, s75', f's_lshl_b32 s75, {sC}, 13', 's_add_u32 s74, s74, s75', f's_add_u32 s74, s74, {ST[layer]}']
    def st_store():
        a(f's_mov_b64 exec, 0xff\nbuffer_store_dwordx4 v[250:253], v254, {WS}, s74 offen sc1\ns_mov_b64 exec, -1')
    st.append(st_store)
    PR_ = CSR
    ptk = []
    def sp_issue():
        ptk.append(a(f'buffer_load_dwordx4 v[{PR_}:{PR_+3}], v254, {WS}, s74 offen sc1'))
        ptk.append(a(f'buffer_load_dwordx4 v[{PR_+4}:{PR_+7}], v254, {WS}, s74 offen offset:2048 sc1'))
    def sp_cmp():
        a(f'v_xor_b32 v250, s{STAG}, v{PR_+1}\nv_xor_b32 v251, s{STAG}, v{PR_+3}\nv_xor_b32 v252, s{STAG}, v{PR_+5}\nv_xor_b32 v253, s{STAG}, v{PR_+7}')
        a('v_or3_b32 v250, v250, v251, v252\nv_or_b32 v250, v250, v253\nv_cmp_ne_u32 vcc, 0, v250')
    sp = [f'v_and_b32 v254, 0x1f0, v{L16}', f'v_lshrrev_b32 v250, 9, v{L16}', 'v_lshl_add_u32 v254, v250, 12, v254',
          f's_lshl_b32 s74, {sC}, 13', f's_lshl_b32 s75, s{SW}, 9', 's_add_u32 s74, s74, s75', f's_add_u32 s74, s74, {ST[layer]}', sp_issue]
    sf = [lambda: poll2(a, ptk[1], None, sp_issue, sp_cmp),
          f'v_add_f32 v{PR_}, v{PR_}, v{PR_+4}', f'v_add_f32 v{PR_+2}, v{PR_+2}, v{PR_+6}',
          's_mov_b32 s74, 0x3acccccd', 's_mov_b32 s75, 0x3727c5ac',
          f'v_mov_b32 v250, v{PR_}', f'v_mov_b32 v251, v{PR_+2}', 's_mov_b32 s76, 0xbfb8aa3b', 's_nop 0',
          f'v_permlane32_swap_b32 v250, v{PR_}', f'v_permlane32_swap_b32 v251, v{PR_+2}',
          f'v_add_f32 v{PR_}, v{PR_}, v250', f'v_add_f32 v{PR_+2}, v{PR_+2}, v251',
          f'v_mul_f32 v{NM}, s74, v{PR_}', f'v_mul_f32 v{IR2}, s74, v{PR_+2}',
          f'v_fma_f32 v{IR2}, -v{NM}, v{NM}, v{IR2}', f'v_max_f32 v{IR2}, 0, v{IR2}', f'v_add_f32 v{IR2}, s75, v{IR2}',
          f'v_rsq_f32 v{K1}, v{IR2}', f'v_sub_f32 v{NM}, 0, v{NM}', f'v_mul_f32 v{K1}, s76, v{K1}']
    a('s_mov_b32 s78, 0xffff0000')
    push(9, st)
    push(ST_POLL, sp)
    push(ST_CHK, sf)
    accof = {0: 0, 1: 16, 2: 32, 3: 48, 4: 0, 5: 16, 6: 32}
    def epi(u):
        A = accof[u]; L = []
        cst = {}
        def csrd(hf):
            def f():
                a(f'ds_read_b128 v[{CSR+8*hf}:{CSR+8*hf+3}], v{CSA} offset:{128*u + 32*hf}')
                cst[hf] = a(f'ds_read_b128 v[{CSR+8*hf+4}:{CSR+8*hf+7}], v{CSA} offset:{128*u + 32*hf + 16}')
            return (2, f)
        L += [csrd(0), csrd(1)]
        for hf in range(2):
            G = A + 8*hf; U = G + 4; C = CSR + 8*hf
            L.append((0, lambda hf=hf: a.wait_lg(cst[hf])))
            for r in range(4): L.append((1, f'v_fmac_f32 v{G+r}, v{NM}, v{C+r}'))
            for r in range(4): L.append((1, f'v_fmac_f32 v{U+r}, v{NM}, v{C+4+r}'))
            for r in range(4): L.append((1, f'v_mul_f32 v{C+r}, v{K1}, v{G+r}'))
            for r in range(4): L += [(2, f'v_exp_f32 v{C+r}, v{C+r}'), (1, f'v_mul_f32 v{G+r}, v{G+r}, v{U+r}')]
            for r in range(4): L.append((1, f'v_fma_f32 v{C+r}, v{C+r}, v{IR2}, v{IR2}'))
            for r in range(4): L.append((2, f'v_rcp_f32 v{C+r}, v{C+r}'))
            for r in range(4): L.append((1, f'v_mul_f32 v{G+r}, v{G+r}, v{C+r}'))
            O = A + 4 + 2*hf
            L += [(1, f'v_cvt_pk_bf16_f32 v{O}, v{G}, v{G+1}'), (1, f'v_cvt_pk_bf16_f32 v{O+1}, v{G+2}, v{G+3}')]
        L.append((1, f'buffer_store_dwordx4 v[{A+4}:{A+7}], v{HOFF}, {WS}, s77 offen offset:{512*u} sc1'))
        return L
    V = []
    dt = {}
    def refill_items(gam, at):
        for i in range(4):
            L = []
            if i == 0:
                if gam == 7:
                    L += [f's_min_u32 s74, {sW4K}, {2*4096}', f's_add_u32 s82, s74, {28*4096}', f's_add_u32 s83, s74, {quad_src(67)}', f's_add_u32 s83, s83, {sW1}']
                L.append('s_mov_b32 m0, s82')
            L.append(f'buffer_load_dwordx4 v{L16}, {WS}, s83 offen offset:{1024*i}{SH} lds')
            if i == 3 and gam < 6: L += ['s_add_u32 s82, s82, 16384', 's_add_u32 s83, s83, 16384']
            if i == 3 and gam == 6: pass
            V.append([at, L, ('dma', gam)])
    for gam in range(6): refill_items(gam, RB0)
    for gam in (6, 7): refill_items(gam, 148)
    V.sort(key=lambda x: x[0])
    WQ = []
    if layer == 0:
        for (k, cb) in wd_list()[:NWDG1]: WQ.append(wd_load(k, cb))
    BARS = {RB0: [], 148: [2], 196: [5], 244: [7]}
    last_of = {}
    for s, (u, ks, g) in enumerate(seq): last_of[u] = s
    avail = {u: last_of[u] + 3 for u in range(7)}
    nxt = 0
    cur = []
    a.wait_vm(xt[0])
    for x in swaps(0): a(x)
    a.st(tg + 'x0')
    fy = None
    lastv = -9
    for s, (u, ks, g) in enumerate(seq):
        if s in BARS:
            for gam in BARS[s]:
                assert gam in dt, (s, gam)
                a.wait_vm(dt[gam])
            if s == RB0 and layer == 0:
                a.poll1_check(fwd, 4, 'v249', 's80', 240, barrier=False)
            if s == 244 and layer == 0:
                a.poll1_check(fy, 4, 'v249', 's80', 250, barrier=False)
            a('s_barrier')
            if s == 148 and layer == 0:
                def fyf():
                    a(f's_lshl_b32 s74, s2, 2\ns_add_u32 s74, s74, {FY}')
                    a.flag_store('s74', 'v250', 'v251')
                guarded(a, sROLE, fyf)
        if s == FWD_AT and layer == 0:
            assert not any(q[0] == 9 for q in Q), 'statistics not finished'
            a(f'v_lshrrev_b32 v249, 4, v{L16}\nv_min_u32 v249, 23, v249\nv_lshlrev_b32 v249, 4, v249')
            a(f's_and_b32 s80, s2, 15\ns_lshl_b32 s80, s80, 9\ns_add_u32 s80, s80, {FWD}')
            fwd = a.poll1_issue(4, 'v249', 's80', 240)
        if s == YS_AT and layer == 0:
            def ys():
                for k in range(4):
                    a(f'buffer_store_dwordx4 v[{48+4*k}:{48+4*k+3}], v{YOFF}, {WS}, {sYB} offen sc1')
                    if k < 3: a(f's_add_u32 {sYB}, {sYB}, {4*40960}')
            guarded(a, sROLE, ys)
        if s == 232 and layer == 0:
            a(f'v_lshrrev_b32 v249, 4, v{L16}\nv_min_u32 v249, 39, v249\nv_lshlrev_b32 v249, 4, v249\ns_mov_b32 s80, {FY}')
            fy = a.poll1_issue(4, 'v249', 's80', 250)
        if s % 2 == 0: a.wait_lg(rd_tok[min(s + 1, len(seq) - 1)])
        b = WB + 4*(s % NB); A = accof[u]
        c = '0' if ks == 0 else f'v[{A}:{A+15}]'
        a(f'v_mfma_f32_32x32x16_bf16 v[{A}:{A+15}], a[{b}:{b+3}], v[{XF+4*ks}:{XF+4*ks+3}], {c}')
        rd(s + AHEAD)
        n = 1 + (1 if s % 2 == 1 else 0)
        if s < 120 and u == 1 and ks + 1 < 40:
            a.wait_vm(xt[ks+1])
            for x in swaps(ks+1): a(x)
            n += 3
        if s < 120 and u == 0 and len(xt) < 40:
            xload(); n += 1; lastv = s
        elif s - lastv >= 2:
            if V and V[0][0] <= s:
                _, L, nm = V.pop(0)
                for x in L: t = a(x)
                dt[nm[1]] = a.vm_issued
                n += len(L); lastv = s
            elif WQ and s >= WD_AT:
                L = WQ.pop(0)
                for x in L: a(x)
                n += len(L); lastv = s
        budget = 6
        while n < budget and Q and Q[0][0] <= s:
            it = Q.pop(0)[1]
            it() if callable(it) else a(it)
            n += 1
        if s >= 120:
            if not cur and nxt < 6 and avail[nxt] <= s and not Q:
                cur = epi(nxt); nxt += 1
            m = 0
            while cur and (n + cur[0][0] <= budget) and m < EPB:
                c_, it = cur.pop(0)
                it() if callable(it) else a(it)
                n += c_; m += 1 if c_ else 0
        if s in (119, 159, 199, 239): a.st(tg + f'm{s+1}')
        if s + 1 < len(seq) and seq[s+1][1] == 0 and seq[s+1][0] >= 4:
            assert nxt > seq[s+1][0] - 4 and not (nxt == seq[s+1][0] - 3 and cur), ('epilogue late', s, nxt, len(cur))
    assert not Q and not V and not WQ, (len(Q), len(V), len(WQ))
    a.st(tg + 'mend')
    for c_, it in cur: it() if callable(it) else a(it)
    while nxt < 7:
        for c_, it in epi(nxt): it() if callable(it) else a(it)
        nxt += 1
    a.st(tg + 'epi')
    a(f's_lshl_b32 s74, {sC}, 9\ns_lshl_b32 s75, {sS}, 2\ns_add_u32 s74, s74, s75\ns_add_u32 s74, s74, {FH[layer]}')
    a(f's_lshl_b32 s75, s{SW}, 2\ns_add_u32 s76, s75, 3\ns_cmp_eq_u32 s{SW}, 3\ns_cselect_b32 s80, 1, 0\ns_sub_u32 s75, s75, s80')
    a(f'v_lshrrev_b32 v249, 4, v{L16}\nv_add_u32 v249, s75, v249\nv_min_u32 v249, s76, v249\nv_lshlrev_b32 v249, 2, v249')
    a(f's_lshr_b32 s80, {sTB}, 1\ns_lshl_b32 s80, s80, 2\ns_add_u32 s80, s80, s{SW}\ns_lshl_b32 s80, s80, 7\ns_add_u32 s80, s80, {FH[layer]}')
    a('s_waitcnt vmcnt(0)\ns_barrier')
    a.reset_counts()

RB0 = 96
ST_POLL, ST_CHK = 84, 112
YS_AT = 78
FWD_AT = 82
WD_AT = 100

def pre_G1_common(a):
    a.st('J_cs')
    a(f'v_lshrrev_b32 v88, 4, v{L16}\nv_min_u32 v88, 39, v88\nv_lshlrev_b32 v88, 4, v88')
    a(f's_and_b32 s74, s2, 15\ns_lshl_b32 s74, s74, 10\ns_add_u32 s74, s74, {FX1}')
    a('s_waitcnt vmcnt(0) lgkmcnt(0)')
    a.poll_w0(4, 'v88', 's74', 84)
    a.reset_counts()

def rest(a, stages, epoch_update):
    import g2h
    pre_G1_common(a)
    epoch_update(a)
    G1(a, 0)
    if stages == 2:
        a.flag_store('s74', 'v250', 'v251', rep=4, stride=128)
        return
    g2h.G2(a, 0, last=(stages == 3))
    if stages == 3: return
    G1(a, 1)
    if stages == 4:
        a.flag_store('s74', 'v250', 'v251', rep=4, stride=128)
        return
    g2h.G2(a, 1)
```

```python
from g2base import *

CS = 4160
WLDS = 4*CS + 4608
CONV_BASE = LDS_BYTES - 4*WLDS
QBLK = 3
_nt = __import__('os').environ.get('NT', 'w,d,h').split(',')
POL = {k: (' nt' if k in _nt else '') for k in 'wkvhqsd'}
WPOL = ' nt' if 'wnt' in __import__('os').environ.get('EXP', '') else ''
FQBLK = int(__import__('os').environ.get('FQBLK', 1))
GPOL = {'': '', 'nt': ' nt', 'sc1': ' sc1', 'sc01': ' sc0 sc1', 'sc01nt': ' sc0 sc1 nt'}[__import__('os').environ.get('GPOL', '')]
EXP = __import__('os').environ.get('EXP', '')
NB1 = int(__import__('os').environ.get('NB1', 3))
import os
PBLK = int(os.environ.get('PBLK', 3))
STAGE1 = False
QDELAY = 4
CDEPTH = 3
TOUCH = True
NH0 = 3
WDRAW = 224
SWD = 48
HRAW = 192
SDQ = 's96'
SQC = 92
QRT = 128
QST_RAW = 168

def phase_T_with_tag(a):
    SK, SV, SSH, SH, SD = 8, 12, 16, 20, 24
    a('s_mul_i32 s28, s2, 205\ns_lshr_b32 s28, s28, 10')
    a('s_mul_i32 s29, s28, 5\ns_sub_u32 s29, s2, s29')
    a('v_bfe_u32 v1, v0, 4, 2\nv_lshrrev_b32 v2, 7, v0\nv_lshl_add_u32 v1, v2, 2, v1')
    a('v_and_b32 v2, 15, v0\nv_bfe_u32 v3, v0, 6, 1\nv_lshl_add_u32 v2, v3, 4, v2')
    a('s_mul_i32 s30, s28, 81920\ns_lshl_b32 s31, s29, 8\ns_add_u32 s30, s30, s31')
    a('v_mul_u32_u24 v3, 10240, v1\nv_lshl_add_u32 v3, v2, 3, v3\nv_add_u32 v3, s30, v3')
    a('v_add_u32 v4, 5120, v3\nv_subrev_u32 v5, 3840, v3')
    a('s_lshl_b32 s31, s29, 10\nv_lshlrev_b32 v6, 5, v2\nv_add_u32 v6, s31, v6')
    KR, VR, WR = 10, 32, 48
    for r in range(3):
        a(f'buffer_load_dwordx2 v[{KR+2*r}:{KR+2*r+1}], v5, s[{SK}:{SK+3}], 0 offen offset:{1280*r}{POL["k"]}')
    for r in range(8):
        a(f'buffer_load_dwordx2 v[{KR+6+2*r}:{KR+7+2*r}], v{3+(r>>2)}, s[{SK}:{SK+3}], 0 offen offset:{1280*(r&3)}{POL["k"]}')
    a(f'buffer_load_dwordx4 v[{WR}:{WR+3}], v6, s[{SSH}:{SSH+3}], 0 offen')
    tw = a(f'buffer_load_dwordx4 v[{WR+4}:{WR+7}], v6, s[{SSH}:{SSH+3}], 0 offen offset:16')
    tv = []
    for r in range(8):
        tv.append(a(f'buffer_load_dwordx2 v[{VR+2*r}:{VR+2*r+1}], v{3+(r>>2)}, s[{SV}:{SV+3}], 0 offen offset:{1280*(r&3)}{POL["v"]}'))
    a('v_and_b32 v8, 7, v2\nv_xor_b32 v8, v8, v1\nv_lshlrev_b32 v8, 4, v8\nv_lshl_add_u32 v8, v2, 9, v8')
    a('v_lshrrev_b32 v9, 5, v0\nv_and_b32 v7, 7, v0\nv_xor_b32 v9, v9, v7\nv_lshlrev_b32 v9, 4, v9\nv_lshrrev_b32 v148, 3, v0\nv_lshl_add_u32 v9, v148, 7, v9')
    a('s_lshl_b32 s30, s29, 19\ns_lshl_b32 s31, s28, 7\ns_add_u32 s30, s30, s31')
    a('v_lshlrev_b32 v7, 4, v7\nv_lshl_add_u32 v7, v148, 12, v7\nv_add_u32 v7, s30, v7')
    for c in range(4): a(f's_mov_b32 s{36+c}, {UT + c*131072}')
    a('s_mov_b32 s40, 0xffff0000')
    KF, WF, U = 56, 100, 116
    a.st('T_issued')
    a.wait_vm(tw)
    if 'kgate' in EXP:
        a('s_waitcnt lgkmcnt(0)')
        tag_from_epoch(a)
        a(f's_lshl_b32 s41, s2, 7\ns_add_u32 s41, s41, {FK}')
        a.flag_store('s41', 'v150', 'v151')
    a.st('T_kret')
    a(f's_and_b32 {SDQ}, s2, 7\ns_mul_i32 {SDQ}, {SDQ}, 20\ns_lshr_b32 s32, s2, 3\ns_add_u32 {SDQ}, {SDQ}, s32')
    a(f's_lshl_b32 s32, {SDQ}, 2\ns_add_u32 s32, s32, s{SW}')
    a('s_lshl_b32 s33, s32, 12')
    a(f's_add_u32 s{SH}, s{SH}, s33\ns_addc_u32 s{SH+1}, s{SH+1}, 0\ns_mov_b32 s{SH+2}, 4096')
    a('v_and_b32 v160, 63, v0\nv_lshlrev_b32 v161, 4, v160')
    a('v_subrev_u32 v162, 32, v161\nv_add_u32 v163, 16, v162\nv_add_u32 v164, 0x1000, v162\nv_add_u32 v165, 0x1000, v163')
    HR = HRAW
    for i in range(4):
        if i == 0:
            a(f'buffer_load_dwordx4 v[{HR}:{HR+3}], v162, s[{SH}:{SH+3}], 0 offen{POL["h"]}')
            a(f'buffer_load_dwordx2 v[{HR+4}:{HR+5}], v163, s[{SH}:{SH+3}], 0 offen{POL["h"]}')
        else:
            a(f'buffer_load_dwordx4 v[{HR+6*i}:{HR+6*i+3}], v161, s[{SH}:{SH+3}], 0 offen offset:{1024*i-32}{POL["h"]}')
            a(f'buffer_load_dwordx2 v[{HR+6*i+4}:{HR+6*i+5}], v161, s[{SH}:{SH+3}], 0 offen offset:{1024*i-16}{POL["h"]}')
    a(f'buffer_load_dwordx4 v[{HR+24}:{HR+27}], v164, s[{SH}:{SH+3}], 0 offen{POL["h"]}')
    th = a(f'buffer_load_dwordx2 v[{HR+28}:{HR+29}], v165, s[{SH}:{SH+3}], 0 offen{POL["h"]}')
    a('s_lshl_b32 s34, s32, 1\nv_mov_b32 v166, s34')
    tD = a(f'buffer_load_ushort v153, v166, s[{SD}:{SD+3}], 0 offen')
    for r in range(11):
        for p in range(2):
            a(f'v_lshlrev_b32 v{KF+4*r+2*p}, 16, v{KR+2*r+p}\nv_and_b32 v{KF+4*r+2*p+1}, s40, v{KR+2*r+p}')
    for c in range(4):
        for h in range(2):
            a(f'v_lshlrev_b32 v{WF+4*(2*h)+c}, 16, v{WR+2*c+h}\nv_and_b32 v{WF+4*(2*h+1)+c}, s40, v{WR+2*c+h}')
    for t in range(8):
        for p in range(2):
            d = U+4*t+2*p
            for j in range(4):
                k = KF+4*(t+3-j)+2*p; w = WF+4*j+2*p
                if j == 0: a(f'v_pk_mul_f32 v[{d}:{d+1}], v[{k}:{k+1}], v[{w}:{w+1}]')
                else: a(f'v_pk_fma_f32 v[{d}:{d+1}], v[{k}:{k+1}], v[{w}:{w+1}], v[{d}:{d+1}]')
    for t in range(8):
        a.wait_vm(tv[t])
        for p in range(2):
            x = KF+4*t+2*p
            a(f'v_lshlrev_b32 v{x}, 16, v{VR+2*t+p}\nv_and_b32 v{x+1}, s40, v{VR+2*t+p}')
            d = U+4*t+2*p
            a(f'v_pk_mul_f32 v[{d}:{d+1}], v[{d}:{d+1}], v[{x}:{x+1}]')
    O = 12
    for c in range(4):
        for q in range(4):
            a(f'v_cvt_pk_bf16_f32 v{O+4*c+q}, v{U+4*(7-2*q)+c}, v{U+4*(6-2*q)+c}')
        a(f'ds_write_b128 v8, v[{O+4*c}:{O+4*c+3}] offset:{128*c}')
    a('s_waitcnt lgkmcnt(0)\ns_barrier')
    tr = [a(f'ds_read_b128 v[{O+4*c}:{O+4*c+3}], v9 offset:{4096*c}') for c in range(4)]
    for c in range(4):
        a.wait_lg(tr[c])
        tst = a(f'buffer_store_dwordx4 v[{O+4*c}:{O+4*c+3}], v7, {WS}, s{36+c} offen sc1')
    a.st('T_stored')
    for r in range(8):
        a(f'buffer_load_dwordx2 v[{QRT+2*r}:{QRT+2*r+1}], v{3+(r>>2)}, s[{SQC}:{SQC+3}], 0 offen offset:{1280*(r&3)}{POL["q"]}')
    a(f's_lshl_b32 s98, s2, 2\ns_add_u32 s98, s98, s{SW}')
    a(f's_cmp_lt_u32 s2, 128\ns_cselect_b32 s99, 0, {OOB}\ns_mul_i32 s97, s98, 5120')
    a('v_bfe_u32 v150, v0, 4, 2\nv_mul_u32_u24 v150, 1280, v150\nv_and_b32 v151, 15, v0\nv_lshl_add_u32 v150, v151, 4, v150\nv_or_b32 v150, s99, v150')
    for i in range(5):
        tq = a(f'buffer_load_dwordx4 v[{QST_RAW+4*i}:{QST_RAW+4*i+3}], v150, s[{SQC}:{SQC+3}], s97 offen offset:{256*i}{POL["s"]}')
    a(f's_lshl_b32 s41, s29, 7\ns_add_u32 s41, s41, s28\ns_lshl_b32 s41, s41, 2\ns_add_u32 s41, s41, {FT}')
    return dict(th=th, tD=tD, tst=tst, tq=tq)

def q_retile(a, tk):
    a(f's_lshl_b32 s97, s{SW}, 12')
    a('v_lshlrev_b32 v24, 2, v16\nv_lshl_add_u32 v25, v15, 8, s97')
    a.wait_vm(tk['tq'])
    for j in range(4):
        a(f'v_add_u32 v27, {j}, v24\nv_xor_b32 v27, v27, v15\nv_lshl_add_u32 v27, v27, 4, v25')
        a(f'ds_write_b128 v27, v[{QRT+4*j}:{QRT+4*j+3}]')
    S0 = 188
    for i in range(5):
        for e in range(4):
            r = QST_RAW + 4*i + e
            h = e & 1
            first = (i == 0 and e < 2)
            a(f'v_dot2_f32_bf16 v{S0+2*h}, v{r}, s39, {"0" if first else f"v{S0+2*h}"}')
            a(f'v_dot2_f32_bf16 v{S0+2*h+1}, v{r}, v{r}, {"0" if first else f"v{S0+2*h+1}"}')
    a('s_waitcnt lgkmcnt(0)')
    for i in range(4):
        a(f'v_add_u32 v27, {4*i}, v16\nv_xor_b32 v26, v27, v15\nv_lshlrev_b32 v26, 4, v26\nv_lshl_add_u32 v26, v27, 8, v26\nv_add_u32 v26, s97, v26')
        tr = a(f'ds_read_b128 v[{QRT+4*i}:{QRT+4*i+3}], v26')
    a(f'v_add_f32 v{S0}, v{S0}, v{S0+2}\nv_add_f32 v{S0+1}, v{S0+1}, v{S0+3}')
    for rot in (8, 4, 2, 1):
        for e in range(2): a(f'v_add_f32_dpp v{S0+e}, v{S0+e}, v{S0+e} row_ror:{rot} row_mask:0xf bank_mask:0xf')
    a(f's_lshr_b32 s97, s{SW}, 1\ns_lshl_b32 s99, s28, 1\ns_add_u32 s97, s97, s99\ns_mul_i32 s97, s97, 40960')
    a(f's_and_b32 s99, s{SW}, 1\ns_lshl_b32 s99, s99, 12\ns_add_u32 s97, s97, s99\ns_lshl_b32 s99, s29, 13\ns_add_u32 s97, s97, s99\ns_add_u32 s97, s97, {QG}')
    a('s_mov_b32 s33, 0x3acccccd\ns_mov_b32 s34, 0x3727c5ac')
    m, q_ = S0, S0+1
    a(f'v_mul_f32 v{m}, s33, v{m}\nv_mul_f32 v{q_}, s33, v{q_}\nv_fma_f32 v{q_}, -v{m}, v{m}, v{q_}\nv_max_f32 v{q_}, 0, v{q_}\nv_add_f32 v{q_}, s34, v{q_}\nv_rsq_f32 v{q_}, v{q_}')
    a.wait_lg(tr)
    for i in range(4):
        a(f'buffer_store_dwordx4 v[{QRT+4*i}:{QRT+4*i+3}], v3, {WS}, s97 offen offset:{1024*i} sc1')
    a(f'v_mul_f32 v{m}, v{m}, v{q_}\nv_sub_f32 v{m}, 0, v{m}')
    a(f's_lshl_b32 s97, s98, 5\ns_add_u32 s97, s97, {QS}')
    a(f's_cmp_lt_u32 s2, 128\ns_cselect_b32 s99, 0, {OOB}\nv_lshlrev_b32 v26, 3, v16\nv_or_b32 v26, s99, v26')
    a('s_mov_b32 exec_lo, 0x00010001\ns_mov_b32 exec_hi, 0x00010001')
    t = a(f'buffer_store_dwordx2 v[{S0}:{S0+1}], v26, {WS}, s97 offen sc1')
    a('s_mov_b64 exec, -1')
    return t

def conv_pre(a, tk):
    HR = HRAW
    a('v_and_b32 v2, 63, v0\nv_lshlrev_b32 v3, 4, v2')
    a(f's_mul_i32 s35, s{SW}, {WLDS}\ns_add_u32 s35, s35, {CONV_BASE}')
    a('v_add_u32 v14, s35, v3')
    a('v_and_b32 v15, 15, v2\nv_lshrrev_b32 v16, 4, v2')
    a('v_add_u32 v17, 1, v15\nv_and_b32 v18, 3, v17\nv_lshrrev_b32 v17, 2, v17')
    a(f'v_mul_u32_u24 v18, {CS}, v18\nv_lshl_add_u32 v18, v17, 3, v18\nv_lshl_add_u32 v18, v16, 4, v18\nv_add_u32 v18, s35, v18')
    a(f'v_lshlrev_b32 v19, 5, v15\nv_lshlrev_b32 v20, 4, v16\nv_sub_u32 v19, v19, v20\nv_add_u32 v19, s35, v19\nv_add_u32 v19, {4*CS+528}, v19')
    a('v_mov_b32 v28, 0\nv_mov_b32 v29, 0\nv_mov_b32 v30, 0\nv_mov_b32 v31, 0')
    a('s_mov_b64 exec, 0xffffffff')
    a(f'ds_write_b128 v14, v[28:31] offset:{4*CS}')
    a('s_mov_b64 exec, -1')
    T0 = 96
    def hround(i):
        h = HR+6*i
        if i == 4: a('s_mov_b64 exec, 3')
        off = 1024*i
        a(f'ds_write_b128 v14, v[{h}:{h+3}] offset:{off}')
        for q in range(4): a(f'v_alignbit_b32 v{T0+q}, v{h+q+1}, v{h+q}, 16')
        a(f'ds_write_b128 v14, v[{T0}:{T0+3}] offset:{CS+off}')
        a(f'v_mov_b32 v{T0+4}, v{h+1}\nv_mov_b32 v{T0+5}, v{h+2}\nv_mov_b32 v{T0+6}, v{h+3}\nv_mov_b32 v{T0+7}, v{h+4}')
        a(f'ds_write_b128 v14, v[{T0+4}:{T0+7}] offset:{2*CS+off}')
        for q in range(4): a(f'v_alignbit_b32 v{T0+8+q}, v{h+q+2}, v{h+q+1}, 16')
        a(f'ds_write_b128 v14, v[{T0+8}:{T0+11}] offset:{3*CS+off}')
        if i == 4: a('s_mov_b64 exec, -1')
    a.wait_vm(tk['tst'])
    a('s_waitcnt lgkmcnt(0)')
    if 'kgate' not in EXP: tag_from_epoch(a)
    a('s_barrier')
    a.flag_store('s41', 'v4', 'v5', rep=4, stride=128)
    a.st('C_tflag')
    a.wait_vm(tk['tD'])
    a.st('C_hret')
    a(f's_lshr_b32 s42, {SDQ}, 5\ns_lshl_b32 s42, s42, 2\ns_and_b32 s43, s2, 3\ns_add_u32 s42, s42, s43\ns_lshl_b32 s42, s42, 7\ns_add_u32 s42, s42, {FT}')
    a('v_and_b32 v4, 31, v2\nv_lshlrev_b32 v4, 2, v4')
    tk['tp'] = a.poll1_issue(1, 'v4', 's42', 5)
    for i in range(5): hround(i)
    AD = 28
    a('v_lshl_add_u32 v21, v16, 3, v15\nv_sub_u32 v21, 15, v21')
    a('v_and_b32 v22, 1, v21\nv_lshlrev_b32 v22, 4, v22\nv_lshlrev_b32 v22, v22, v153\nv_ashrrev_i32 v21, 1, v21')
    a('s_waitcnt lgkmcnt(0)')
    for wd in range(4):
        a(f'v_cmp_eq_u32 vcc, {wd}, v21\nv_cndmask_b32 v{AD+wd}, 0, v22, vcc')
    a.st('C_hcopy')

def conv_main(a, tk):
    a.poll1_check(tk['tp'], 1, 'v4', 's42', 5, alt=(5, 6, 7))
    a.st('C_tpoll')
    a(f's_add_u32 s43, s33, {UT}\ns_add_u32 s44, s35, {4*CS+512}')
    a('s_mov_b32 m0, s44')
    for i in range(4):
        tu = a(f'buffer_load_dwordx4 v3, {WS}, s43 offen offset:{1024*i} sc1 lds')
    a('s_mov_b32 s39, 0x3f803f80')
    tqs = q_retile(a, tk)
    a.wait_vm(tu)
    a.st('C_uret')
    a('v_min_u32 v7, 23, v2\nv_lshlrev_b32 v7, 4, v7\nv_min_u32 v6, 39, v2\nv_lshlrev_b32 v6, 4, v6')
    a(f's_and_b32 s45, s2, 15\ns_lshl_b32 s52, s45, 9\ns_add_u32 s52, s52, {FW}\ns_lshl_b32 s45, s45, 10\ns_add_u32 s45, s45, {FQ}')
    tfw = []
    AD = 28
    A = [64, 128]; B = [96, 160]; ACC = 32
    def loads(buf):
        L = []
        for x in range(8):
            L.append(f'ds_read_b128 v[{B[buf]+4*x}:{B[buf]+4*x+3}], v19 offset:{512*x}')
            L.append(f'ds_read_b64 v[{A[buf]+4*x}:{A[buf]+4*x+1}], v18 offset:{512*x}')
            L.append(f'ds_read_b64 v[{A[buf]+4*x+2}:{A[buf]+4*x+3}], v18 offset:{512*x+8}')
        return L
    for s in loads(0): a(s)
    a('v_add_u32 v18, 64, v18\nv_subrev_u32 v19, 64, v19')
    a('s_waitcnt lgkmcnt(0)')
    for t in range(8):
        a(f'v_mfma_f32_16x16x32_bf16 v[{ACC+4*t}:{ACC+4*t+3}], v[{AD}:{AD+3}], v[{B[0]+4*t}:{B[0]+4*t+3}], 0')
    QR = 192; QLO = 208; QST = 224; LNQ = 96
    extra = {}
    q_tok = []; s_tok = []
    def fq_publish():
        a.wait_vm(tqs)
        a('s_barrier')
        a(f's_lshl_b32 s53, s2, 2\ns_add_u32 s53, s53, {FQ}')
        a.flag_store('s53', 'v26', 'v27', rep=16, stride=1024)
        a.st('C_fqpub')
    def fw_issue():
        a.st('C_b3')
        tfw.append(a.poll1_issue(4, 'v6', 's45', 20))
        tfw.append(a.poll1_issue(4, 'v7', 's52', 8))
    def fw_check():
        a.st('C_b4')
        a.poll1_check(tfw[1], 4, 'v6', 's45', 20, barrier=False)
        a.st('C_fq')
        a.poll1_check(tfw[1], 4, 'v7', 's52', 8)
        a.st('C_fw')
    def ql_addr():
        a('v_mul_u32_u24 v24, 40960, v16\nv_lshl_add_u32 v24, v15, 4, v24')
        a(f's_mul_i32 s48, s{SW}, {16*40960}\ns_lshl_b32 s49, {SDQ}, 8\ns_add_u32 s48, s48, s49')
        a(f's_add_u32 s46, s48, {QG}\ns_add_u32 s49, s48, {YG}\ns_add_u32 s48, s48, {X1}')
        a(f's_lshl_b32 s47, s{SW}, 12\ns_add_u32 s47, s47, {QS}')
    def q_load(k):
        def f():
            if k > 0: a(f's_add_u32 s46, s46, {4*40960}')
            q_tok.append(a(f'buffer_load_dwordx4 v[{QR+4*k}:{QR+4*k+3}], v24, {WS}, s46 offen sc1'))
            s_tok.append(a(f'buffer_load_dwordx4 v[{QST+4*k}:{QST+4*k+3}], v3, {WS}, s47 offen offset:{1024*k} sc1'))
        return f
    extra[FQBLK] = [fq_publish]
    extra.setdefault(2, []).append(ql_addr)
    extra.setdefault(PBLK, []).append(fw_issue)
    unp = []
    for k in range(4):
        unp.append(lambda k=k: a.wait_vm(s_tok[k]))
        for i in range(4*k, 4*k+4):
            unp.append(f'v_lshlrev_b32 v{QLO+i}, 16, v{QR+i}')
            unp.append(f'v_and_b32 v{QR+i}, s40, v{QR+i}')
        for tok in range(2):
            for c in range(4):
                iq = 4*k + 2*tok + (c >> 1)
                rq = (QLO+iq) if (c & 1) == 0 else (QR+iq)
                unp.append(f'v_fma_f32 v{LNQ+8*k+4*tok+c}, v{rq}, v{QST+4*k+2*tok+1}, v{QST+4*k+2*tok}')
    extra[7] = unp
    import g2g
    b0 = PBLK + 1
    extra[b0] = [fw_check] + [q_load(k) for k in range(4)]
    for i in range(5):
        L = [f's_add_u32 s81, s{SW}, {4*i}', 's_min_u32 s81, s81, 18'] + g2g.quad_dma_dyn('s81', 'v3')
        extra.setdefault(min(b0 + (i+1)//2, 6), []).extend(L)
    cs_tok = []
    extra.setdefault(6, []).extend(g2g.cs_issue_list('v3'))
    extra[6].append(lambda: cs_tok.append(a.vm_issued))
    for blk in range(8):
        if blk == 7: a.st('C_b7')
        buf = blk & 1
        L = loads(buf ^ 1) if blk < 7 else []
        X = list(extra.get(blk, []))
        n = 0
        for q in range(8):
            for dl in range(8 - q):
                t = q + dl
                a(f'v_mfma_f32_16x16x32_bf16 v[{ACC+4*t}:{ACC+4*t+3}], v[{A[buf]+4*q}:{A[buf]+4*q+3}], v[{B[buf]+4*dl}:{B[buf]+4*dl+3}], v[{ACC+4*t}:{ACC+4*t+3}]')
                if n < len(L): a(L[n])
                if X and (n >= len(L) or n % 2 == 0 or len(X) > 36 - n):
                    x = X.pop(0)
                    x() if callable(x) else a(x)
                n += 1
        for x in X: x() if callable(x) else a(x)
        if blk < 7:
            a('v_add_u32 v18, 64, v18\nv_subrev_u32 v19, 64, v19')
            a('s_waitcnt lgkmcnt(0)')
    a.st('C_loop')
    a('v_lshlrev_b32 v21, 6, v15\nv_lshl_add_u32 v21, v16, 4, v21\nv_add_u32 v21, s35, v21')
    for t in range(8):
        r = ACC+4*t
        a(f'ds_write_b128 v21, v[{r}:{r+3}] offset:{1024*t}')
    a(f's_lshl_b32 s47, s{SW}, 11\ns_add_u32 s47, s47, {CONV_BASE}\nv_lshl_add_u32 v22, v2, 3, s47')
    a(f'v_add_u32 v23, {2*WLDS}, v22')
    a('s_waitcnt lgkmcnt(0)\ns_barrier')
    YV = 64
    tk = []
    for k in range(4):
        for c in range(4):
            base = 'v22' if c < 2 else 'v23'
            t = a(f'ds_read_b64 v[{YV+8*k+2*c}:{YV+8*k+2*c+1}], {base} offset:{(c&1)*WLDS + 512*k}')
        tk.append(t)
    O = 128
    for k in range(4):
        a.wait_lg(tk[k])
        for tok in range(2):
            for c in range(4):
                iq = 4*k + 2*tok + (c >> 1)
                rq = (QLO+iq) if (c & 1) == 0 else (QR+iq)
                a(f'v_fma_f32 v{rq}, v{LNQ+8*k+4*tok+c}, v{YV+8*k+2*c+tok}, v{rq}')
        o = O + 4*k
        for tok in range(2):
            for h in range(2):
                iq = 4*k + 2*tok + h
                a(f'v_cvt_pk_bf16_f32 v{o+2*tok+h}, v{QLO+iq}, v{QR+iq}')
        a(f'buffer_store_dwordx4 v[{o}:{o+3}], v24, {WS}, s48 offen sc1')
        if k < 3: a(f's_add_u32 s48, s48, {4*40960}')
    a.st('C_x1st')
    OY = 48
    for k in range(4):
        o = OY + 4*k
        for tok in range(2):
            for h in range(2):
                a(f'v_cvt_pk_bf16_f32 v{o+2*tok+h}, v{YV+8*k+4*h+tok}, v{YV+8*k+4*h+2+tok}')
    if not STAGE1:
        a.wait_vm(cs_tok[0])
        g2g.cs_finish(a)
    a('s_waitcnt vmcnt(0)\ns_barrier')
    a(f's_lshl_b32 s50, s2, 2\ns_add_u32 s51, s50, {FY}\ns_add_u32 s50, s50, {FX1}')
    a.flag_store('s50', 'v4', 'v5', rep=16, stride=1024)
    a.st('C_x1flag')
    if STAGE1:
        for k in range(4):
            o = OY + 4*k
            a(f'buffer_store_dwordx4 v[{o}:{o+3}], v24, {WS}, s49 offen sc1')
            if k < 3: a(f's_add_u32 s49, s49, {4*40960}')
        return
    a(f'v_mov_b32 v{g2g.YOFF}, v24\ns_mov_b32 {g2g.sYB}, s49\ns_mov_b32 {g2g.sROLE}, 1')
    g2g.l16(a)
    lab = a.newlab('nd')
    a(f's_cmp_eq_u32 s{SW}, 1\ns_cbranch_scc1 {lab}')
    a(f's_min_u32 s82, s{SW}, 1\ns_sub_u32 s82, s{SW}, s82\ns_add_u32 s82, s82, 19')
    sv = a.vm_issued
    for i in range(7):
        a('s_min_u32 s81, s82, 38')
        for x in g2g.quad_dma_dyn('s81', f'v{g2g.L16}'): a(x)
        a('s_add_u32 s82, s82, 3')
    a.vm_issued = sv
    a.label(lab)
    g2g.g1_consts(a)

def allred_rows(a, regs, tmp):
    for r in regs:
        a(f'v_mov_b32 {tmp}, {r}\nv_permlane16_swap_b32 {tmp}, {r}\nv_add_f32 {r}, {r}, {tmp}')
    for r in regs:
        a(f'v_mov_b32 {tmp}, {r}\nv_permlane32_swap_b32 {tmp}, {r}\nv_add_f32 {r}, {r}, {tmp}')

QR0 = 164
QS_LDS = 0x15000
PR, PO, PCS, PONE = 20, 116, 208, 204
SG, SU, SDN, SQ = 8, 12, 16, 20

QRAW = 164
def qs_issue(a):
    a('s_mul_i32 s29, s50, 10240')
    a('v_mul_u32_u24 v13, 2560, v4\nv_lshl_add_u32 v13, v3, 4, v13')
    tk = []
    for g in range(2):
        for i in range(5):
            r = QRAW + 20*g + 4*i
            tk.append(a(f'buffer_load_dwordx4 v[{r}:{r+3}], v13, s[{SQ}:{SQ+3}], s29 offen offset:{1280*g + 256*i}'))
    return tk

def qs_finish(a, tk):
    S0 = 208
    for i in range(5):
        for g in range(2): a.wait_vm(tk[5*g+i]) if i == 0 or g == 1 else None
        for e in range(4):
            for g in range(2):
                r = QRAW + 20*g + 4*i + e
                s_, q_ = S0+2*g, S0+1+2*g
                first = (i == 0 and e == 0)
                a(f'v_dot2_f32_bf16 v{s_}, v{r}, s38, {"0" if first else f"v{s_}"}')
                a(f'v_dot2_f32_bf16 v{q_}, v{r}, v{r}, {"0" if first else f"v{q_}"}')
    for rot in (8, 4, 2, 1):
        for e in range(4): a(f'v_add_f32_dpp v{S0+e}, v{S0+e}, v{S0+e} row_ror:{rot} row_mask:0xf bank_mask:0xf')
    a('s_mov_b32 s33, 0x3acccccd\ns_mov_b32 s34, 0x3727c5ac')
    for tok in range(2):
        m, q_ = S0+2*tok, S0+1+2*tok
        a(f'v_mul_f32 v{m}, s33, v{m}\nv_mul_f32 v{q_}, s33, v{q_}\nv_fma_f32 v{q_}, -v{m}, v{m}, v{q_}\nv_max_f32 v{q_}, 0, v{q_}\nv_add_f32 v{q_}, s34, v{q_}\nv_rsq_f32 v{q_}, v{q_}')
        a(f's_nop 0\nv_mul_f32 v{m}, v{m}, v{q_}\nv_sub_f32 v{m}, 0, v{m}')
    a(f's_lshl_b32 s31, s50, 6\ns_add_u32 s31, s31, {QS}\nv_lshlrev_b32 v16, 4, v4')
    a('s_mov_b32 exec_lo, 0x00010001\ns_mov_b32 exec_hi, 0x00010001')
    t = a(f'buffer_store_dwordx4 v[{S0}:{S0+3}], v16, {WS}, s31 offen sc1')
    a('s_mov_b64 exec, -1')
    return t

def p_perms(a, t, ob):
    r = PR+16*t; O = PO+16*ob
    for c in range(4):
        for p in range(4):
            sel = 's36' if (c & 1) == 0 else 's37'
            a(f'v_perm_b32 v{O+4*c+p}, v{r+2*(2*p+1)+(c>>1)}, v{r+2*(2*p)+(c>>1)}, {sel}')

def w1_issue(a, t, T, masked=False):
    if 'oldtask' in EXP:
        a(f's_mul_i32 s24, {T}, 3277\ns_lshr_b32 s24, s24, 16\ns_mul_i32 s26, s24, 20\ns_sub_u32 s26, {T}, s26')
    else:
        a(f's_mul_i32 s26, {T}, 1214\ns_lshr_b32 s26, s26, 16\ns_mul_i32 s24, s26, 54\ns_sub_u32 s24, {T}, s24')
    a(f's_cmp_ge_u32 s24, 27\ns_cselect_b32 s{SG}, s{SU}, s{SGS}\ns_cselect_b32 s{SG+1}, s{SU+1}, s{SGS+1}')
    a('s_cselect_b32 s29, 27, 0\ns_cselect_b32 s30, 512, 0\ns_sub_u32 s24, s24, s29')
    a(f's_mul_i32 s31, s26, {32*3456}\ns_lshl_b32 s32, s24, 7\ns_add_u32 s31, s31, s32')
    v0 = PMSK if masked else 5
    for e in range(8):
        tk = a(f'buffer_load_dwordx2 v[{PR+16*t+2*e}:{PR+16*t+2*e+1}], v{v0+(e>>1)}, s[{SG}:{SG+3}], s31 offen offset:{3456*(e&1)}{POL["w"]}')
    a(f's_mul_i32 s31, s24, {4*40960}\ns_lshl_b32 s32, s26, 11\ns_add_u32 s31, s31, s32\ns_add_u32 s31, s31, s30\ns_add_u32 s{41+t}, s31, {W1P}')
    a(f's_mul_i32 s31, s26, 13824\ns_lshl_b32 s32, s24, 9\ns_add_u32 s31, s31, s32\ns_lshr_b32 s30, s30, 3\ns_add_u32 s31, s31, s30\ns_add_u32 s{47+t}, s31, {CSP}')
    return tk

def w1_finish(a, t, tk, ob, masked=False):
    a.wait_vm(tk)
    p_perms(a, t, ob)
    O = PO+16*ob; C = PCS + 16*ob
    vd = PMSK+4 if masked else 9
    vc = PMSK+5 if masked else 19
    vd2 = PMSK+6 if masked else 10
    for c in range(4):
        a(f'v_mfma_f32_16x16x32_bf16 v[{C+4*c}:{C+4*c+3}], v[{O+4*c}:{O+4*c+3}], v[{PONE}:{PONE+3}], 0')
        a(f'buffer_store_dwordx4 v[{O+4*c}:{O+4*c+3}], v{vd if c < 2 else vd2}, {WS}, s{41+t} offen offset:{128*(c&1)+256*(c>>1)} sc1')
    a('s_mov_b32 exec_lo, 0x00010001\ns_mov_b32 exec_hi, 0x00010001')
    for c in range(4):
        a(f'buffer_store_dwordx4 v[{C+4*c}:{C+4*c+3}], v{vc}, {WS}, s{47+t} offen offset:{16*c} sc1')
    a('s_mov_b64 exec, -1')

def wd_addr(a, vl_quad, vl_grp, vsa, vsb, vd, vt):
    a(f'v_lshrrev_b32 v{vsa}, 1, v{vl_grp}\nv_lshlrev_b32 v{vsa}, 4, v{vsa}\nv_and_b32 v{vt}, 1, v{vl_grp}\nv_lshl_add_u32 v{vsa}, v{vt}, 2, v{vsa}')
    a(f'v_mul_u32_u24 v{vsa}, 1280, v{vsa}\nv_lshl_add_u32 v{vsa}, v{vl_quad}, 3, v{vsa}\nv_add_u32 v{vsb}, 10240, v{vsa}')
    a(f'v_and_b32 v{vd}, 3, v{vl_quad}\nv_lshlrev_b32 v{vd}, 4, v{vd}\nv_lshl_add_u32 v{vd}, v{vl_grp}, 8, v{vd}')
    a(f'v_lshrrev_b32 v{vt}, 2, v{vl_quad}\nv_mul_u32_u24 v{vt}, 55296, v{vt}\nv_add_u32 v{vd}, v{vt}, v{vd}')

def wd_issue(a, raw, T, sdst, srd, vsa, vsb, st=('s29', 's30', 's31', 's32')):
    x, y, z, u = st
    a(f's_min_u32 {x}, {T}, 539\ns_mul_i32 {y}, {x}, 6554\ns_lshr_b32 {y}, {y}, 16')
    a(f's_mul_i32 {z}, {y}, 10\ns_sub_u32 {x}, {x}, {z}')
    a(f's_mul_i32 {z}, {y}, {32*1280}\ns_lshl_b32 {u}, {x}, 7\ns_add_u32 {z}, {z}, {u}')
    for e in range(8):
        tk = a(f'buffer_load_dwordx2 v[{raw+2*e}:{raw+2*e+1}], v{(vsa, vsb)[e>>2]}, s[{srd}:{srd+3}], {z} offen offset:{1280*(e&3)}{POL["d"]}')
    a(f's_mul_i32 {z}, {x}, {4*55296}\ns_lshl_b32 {u}, {y}, 10\ns_add_u32 {z}, {z}, {u}\ns_add_u32 {sdst}, {z}, {WDP}')
    return tk

def wd_finish(a, raw, O, tk, sdst, vd, sel0, sel1):
    a.wait_vm(tk)
    for c in range(4):
        for p in range(4):
            sel = sel0 if (c & 1) == 0 else sel1
            a(f'v_perm_b32 v{O+4*c+p}, v{raw+2*(2*p+1)+(c>>1)}, v{raw+2*(2*p)+(c>>1)}, {sel}')
    for c in range(4):
        t = a(f'buffer_store_dwordx4 v[{O+4*c}:{O+4*c+3}], v{vd}, {WS}, {sdst} offen offset:{64*c} sc1')
    return t

SGS = 52
WDA = 240
def p_flag(a, base, stride, sreg='s56'):
    a(f's_lshl_b32 {sreg}, s28, 2\ns_add_u32 {sreg}, {sreg}, {base}')
    a.flag_store(sreg, 'v16', 'v17', rep=16, stride=stride)

def phase_P(a):
    global tag_from_epoch
    if 'kgate' in EXP:
        a('s_waitcnt lgkmcnt(0)')
        tag_from_epoch(a)
        tag_from_epoch = lambda a: None
        a(f'v_mov_b32 v4, 0\ns_sub_u32 s42, s2, 96\ns_lshl_b32 s42, s42, 7\ns_add_u32 s42, s42, {FK}')
        a.poll_w0(1, 'v4', 's42', 5)
        a.st('P_gate')
    if 'pwait' in EXP:
        a('s_waitcnt lgkmcnt(0)')
        tag_from_epoch(a)
        tag_from_epoch = lambda a: None
        a(f'v_and_b32 v4, 31, v0\nv_lshlrev_b32 v4, 2, v4\ns_mov_b32 s42, {FT}')
        a.poll_w0(1, 'v4', 's42', 5)
    a(f's_mov_b32 s{SGS}, s{SG}\ns_mov_b32 s{SGS+1}, s{SG+1}')
    a('s_sub_u32 s28, s2, 160')
    a('v_and_b32 v2, 63, v0\nv_and_b32 v3, 15, v2\nv_lshrrev_b32 v4, 4, v2')
    a('s_mov_b32 s36, 0x05040100\ns_mov_b32 s37, 0x07060302\ns_mov_b32 s38, 0x3f803f80')
    a(f's_lshl_b32 s50, s28, 2\ns_add_u32 s50, s50, s{SW}')
    a('s_mul_i32 s25, s50, 3')
    def w1_addr():
        a('v_mul_u32_u24 v5, 27648, v4\nv_lshl_add_u32 v5, v3, 3, v5')
        a('v_add_u32 v6, 6912, v5\nv_add_u32 v7, 13824, v5\nv_add_u32 v8, 20736, v5')
        a('v_and_b32 v12, 3, v3\nv_lshlrev_b32 v12, 4, v12\nv_and_b32 v19, 1, v4\nv_lshl_add_u32 v12, v19, 6, v12')
        a('v_lshrrev_b32 v19, 1, v4\nv_lshl_add_u32 v12, v19, 10, v12')
        a('v_lshrrev_b32 v19, 2, v3\nv_mul_u32_u24 v9, 40960, v19\nv_add_u32 v9, v9, v12\nv_xor_b32 v10, 64, v9')
        a('v_lshlrev_b32 v19, 7, v4')
        for i in range(4): a(f'v_mov_b32 v{PONE+i}, s38')
        a(f's_cmp_lt_u32 s25, 1080\ns_cselect_b32 s35, 0, {OOB}')
        for r in (5, 6, 7, 8, 9, 10, 19): a(f'v_or_b32 v{r}, s35, v{r}')
        wd_addr(a, 3, 4, WDA, WDA+1, WDA+2, WDA+3)
    def w1_task(t):
        a(f's_add_u32 s33, s25, {t}\ns_min_u32 s33, s33, 1079')
        return w1_issue(a, t, 's33')
    def first_batch():
        if 'tagw' in EXP: a('s_waitcnt lgkmcnt(0)')
        tk = [w1_task(t) for t in range(NB1)]
        if NB1 > 0 and NB1 < 3: a.wait_vm(tk[0])
        a.st('P_b1')
        tk += [w1_task(t) for t in range(NB1, 3)]
        return tk
    WDS = ('s29', 's30', 's31', 's32')
    w1_addr()
    tA = first_batch()
    a.st('P_issued')
    for t in range(3): w1_finish(a, t, tA[t], t & 1)
    tw = a.vm_issued
    a.st('P_w1st')
    td = wd_issue(a, PR+48, 's50', 's44', SDN, WDA, WDA+1, st=WDS)
    a('s_add_u32 s54, s50, 384\ns_cmp_lt_u32 s50, 156\ns_cselect_b32 s51, 1, 0')
    a('s_waitcnt lgkmcnt(0)')
    tag_from_epoch(a)
    a.wait_vm(tw)
    a('s_barrier')
    p_flag(a, FW, 512)
    a.st('P_w1')
    g2g_guarded(a, 's51', lambda: wd_issue(a, PR+64, 's54', 's45', SDN, WDA, WDA+1, st=WDS))
    wd_finish(a, PR+48, PO, td, 's44', WDA+2, 's36', 's37')
    def second():
        a('s_waitcnt vmcnt(0)')
        wd_finish(a, PR+64, PO+16, None, 's45', WDA+2, 's36', 's37')
    g2g_guarded(a, 's51', second)
    a.label('L_pp_end')
    a('s_waitcnt vmcnt(0)\ns_barrier')
    a.reset_counts()
    p_flag(a, FWD, 512)
    a.st('P_done')
    if STAGE1: return
    import g2g
    a(f's_mov_b32 {g2g.sROLE}, 0')
    g2g.l16(a)
    a(f'v_lshrrev_b32 v88, 4, v{g2g.L16}\nv_min_u32 v88, 23, v88\nv_lshlrev_b32 v88, 4, v88')
    a(f's_and_b32 s45, s2, 15\ns_lshl_b32 s45, s45, 9\ns_add_u32 s45, s45, {FW}')
    a.poll_w0(4, 'v88', 's45', 84)
    a.st('P_fw')
    for i in range(10):
        a(f's_add_u32 s81, s{SW}, {4*i}\ns_min_u32 s81, s81, 38')
        for x in g2g.quad_dma_dyn('s81', f'v{g2g.L16}'): a(x)
    for x in g2g.cs_issue_list(f'v{g2g.L16}'): a(x)
    g2g.g1_consts(a)
    a('s_waitcnt vmcnt(0)')
    g2g.cs_finish(a)

def g2g_guarded(a, reg, fn):
    import g2g
    g2g.guarded(a, reg, fn)
```

```python
from asmlib import Asm

S, D, F = 2048, 640, 1728
FLG  = 0x0000000
E_OFF = FLG + 0x0
FT   = FLG + 0x1000
FQ   = FLG + 0x1B000
FW   = FLG + 0x11000
FK   = FLG + 0x16000
FY   = FLG + 0x2400
FWD  = FLG + 0x13000
FH   = [FLG + 0x3000, FLG + 0x5000]
FX3  = FLG + 0xC000
FX1  = FLG + 0x8000
ST   = [0x2440000, 0x2460000]
XS   = FLG + 0x20000
STAMPS = FLG + 0x80000
UT   = 0x0100000
QG   = 0x0380000
QS   = 0x0600000
X1   = 0x0880000
YG   = 0x0B00000
X3   = 0x0D80000
W1P  = 0x1000000
WDP  = 0x1440000
CSP  = 0x1660000
H0   = 0x16C0000
H1   = 0x1D80000
WS_USED = 0x2480000
HB = [H0, H1]
OOB = 0x80000000
LDS_BYTES = 163840

KA = dict(q=0, k=8, v=16, shk=24, ssmk=32, ssmD=40, x=48, wg=56, wu=64, wd=72, out=80, dbg=88, ws=96)
SZ = dict(q=S*D*2, k=S*D*2, v=S*D*2, shk=D*8, ssmk=D*S*2, ssmD=D*2, wg=D*F*2, wu=D*F*2, wd=D*F*2, out=S*D*2, dbg=256, ws=WS_USED)

SWS = 4
STAG = 3
SW = 59
POLL_LIMIT = 20000
PIPE = int(__import__('os').environ.get('PIPE', 0))
BACKOFF = int(__import__('os').environ.get('BACKOFF', 0))
MASKP = int(__import__('os').environ.get('MASKP', 0))
WS = f's[{SWS}:{SWS+3}]'

class K(Asm):
    def __init__(self, timing=False):
        super().__init__()
        self.timing = timing
        self.nst = 0
        self.stnames = []
        self.tail = []
        self.uid = 0
    def newlab(self, p):
        self.uid += 1
        return f'L_{p}_{self.uid}'
    def st(self, name):
        if not self.timing: return
        if name in self.stnames: i = self.stnames.index(name)
        else:
            i = len(self.stnames); self.stnames.append(name)
        assert i < 64, name
        import os
        op = 's_memtime' if os.environ.get('STCYC') else 's_memrealtime'
        self(f'{op} s[60:61]\ns_waitcnt lgkmcnt(0)\nv_writelane_b32 v255, s60, {i}')
        self.lg_done = self.lg_issued
    def st_init(self):
        if not self.timing: return
        self('v_mov_b32 v255, 0')
    def st_flush(self, layer, vt='v254'):
        if not self.timing: return
        a = self
        a(f's_lshl_b32 s60, s2, 2\ns_add_u32 s60, s60, s{SW}\ns_lshl_b32 s60, s60, 9\ns_add_u32 s60, s60, {STAMPS}')
        a(f's_add_u32 s60, s60, {layer*256 if isinstance(layer, int) else layer}')
        a(f'v_mbcnt_lo_u32_b32 {vt}, -1, 0\nv_mbcnt_hi_u32_b32 {vt}, -1, {vt}\nv_lshlrev_b32 {vt}, 2, {vt}')
        a(f'buffer_store_dword v255, {vt}, {WS}, s60 offen')
    def srd_load(self, r, name):
        self(f's_load_dwordx2 s[{r}:{r+1}], s[0:1], {KA[name]}')
    def srd_fin(self, r, name):
        self(f's_mov_b32 s{r+2}, {SZ[name]}\ns_mov_b32 s{r+3}, 0x00020000')
    def flag_store(self, soff, vz, vt, rep=1, stride=0, wave=0):
        a = self
        lab = a.newlab('fs')
        a(f's_cmp_lg_u32 s{SW}, {wave}\ns_cbranch_scc1 {lab}')
        if rep == 1:
            a(f'v_mov_b32 {vz}, 0')
        else:
            a(f'v_mbcnt_lo_u32_b32 {vz}, -1, 0\nv_mul_u32_u24 {vz}, {stride}, {vz}')
        a(f'v_mov_b32 {vt}, s{STAG}\ns_mov_b64 exec, {(1 << rep) - 1}')
        a(f'buffer_store_dword {vt}, {vz}, {WS}, {soff} offen sc1')
        a.vm_issued -= 1
        a('s_mov_b64 exec, -1')
        a.label(lab)
    def poll_w0(self, nd, vaddr, soff, vd, wave=1, **kw):
        a = self
        lab = a.newlab('pw')
        sv = (a.vm_issued, a.vm_done)
        a(f's_cmp_lg_u32 s{SW}, {wave}\ns_cbranch_scc1 {lab}')
        a.poll(nd, vaddr, soff, vd, **kw)
        a.label(lab)
        a.vm_issued, a.vm_done = sv
        a('s_barrier')
    def poll1_issue(self, nd, vaddr, soff, vd, wave=1, off=0):
        a = self
        lab = a.newlab('p1')
        a(f's_cmp_lg_u32 s{SW}, {wave}\ns_cbranch_scc1 {lab}')
        a.poll_issue(nd, vaddr, soff, vd, off)
        a.vm_issued -= 1
        a.label(lab)
        return a.vm_issued
    def poll1_check(self, mark, nd, vaddr, soff, vd, wave=1, barrier=True, **kw):
        a = self
        lab = a.newlab('p1c')
        sv = (a.vm_issued, a.vm_done)
        a(f's_cmp_lg_u32 s{SW}, {wave}\ns_cbranch_scc1 {lab}')
        n = min(a.vm_issued - mark, 63)
        a(f's_waitcnt vmcnt({n})')
        a.vm_done = sv[1]
        a.poll_check(None, nd, vaddr, soff, vd, **kw)
        a.label(lab)
        a.vm_issued, a.vm_done = sv
        if barrier: a('s_barrier')
    def _cmp(self, nd, vd):
        a = self
        if nd == 1:
            a(f'v_cmp_ne_u32 vcc, s{STAG}, v{vd}')
        else:
            for i in range(nd): a(f'v_xor_b32 v{vd+i}, s{STAG}, v{vd+i}')
            if nd == 2: a(f'v_or_b32 v{vd}, v{vd}, v{vd+1}')
            else: a(f'v_or3_b32 v{vd}, v{vd}, v{vd+1}, v{vd+2}\nv_or_b32 v{vd}, v{vd}, v{vd+3}')
            a(f'v_cmp_ne_u32 vcc, 0, v{vd}')
    def poll_issue(self, nd, vaddr, soff, vd, off=0):
        op = {1: 'buffer_load_dword', 2: 'buffer_load_dwordx2', 4: 'buffer_load_dwordx4'}[nd]
        reg = f'v{vd}' if nd == 1 else f'v[{vd}:{vd+nd-1}]'
        o = f' offset:{off}' if off else ''
        return self(f'{op} {reg}, {vaddr}, {WS}, {soff} offen{o} sc1')
    def poll_check(self, tok, nd, vaddr, soff, vd, scnt='s57', off=0, cmp=None, alt=None):
        a = self
        cmp0 = cmp or (lambda: a._cmp(nd, vd))
        lspin = a.newlab('spin'); lback = a.newlab('back')
        a.wait_vm(tok)
        cmp0()
        a(f's_cbranch_vccnz {lspin}')
        a.label(lback)
        def tail():
            a.label(lspin)
            a(f's_mov_b32 {scnt}, {POLL_LIMIT}')
            lp = a.newlab('lp')
            if alt and PIPE:
                for i, r in enumerate(alt):
                    a.poll_issue(nd, vaddr, soff, r, off)
                    if i < len(alt) - 1: a(f's_sleep {PIPE}')
                a.label(lp)
                for r in alt:
                    a(f's_waitcnt vmcnt({len(alt) - 1})')
                    a._cmp(nd, r)
                    a(f's_cbranch_vccz {lback}')
                    a.poll_issue(nd, vaddr, soff, r, off)
            else:
                a.label(lp)
                if MASKP: a('s_mov_b64 exec, vcc')
                if BACKOFF: a(f's_sleep {BACKOFF}')
                a.poll_issue(nd, vaddr, soff, vd, off)
                a('s_waitcnt vmcnt(0)')
                cmp0()
                if MASKP:
                    lx = a.newlab('px')
                    a(f's_cbranch_vccz {lx}')
                else:
                    a(f's_cbranch_vccz {lback}')
            a(f's_sub_u32 {scnt}, {scnt}, 1\ns_cbranch_scc0 {lp}')
            if MASKP and not (alt and PIPE):
                a.label(lx)
                a('s_mov_b64 exec, -1')
            a(f's_branch {lback}')
        a.tail.append(tail)
    def poll(self, nd, vaddr, soff, vd, **kw):
        t = self.poll_issue(nd, vaddr, soff, vd, kw.get('off', 0))
        self.poll_check(t, nd, vaddr, soff, vd, **kw)
    def emit_tail(self):
        for t in self.tail: t()
        self.tail = []
```

```python
from g2base import *
import os
SH = '' if os.environ.get('PLAIN') else ' sc1'

sC, sS, sU0, sW1, sTB, sCG, sROLE = 's64', 's65', 's66', 's67', 's68', 's69', 's70'
sW4K = 's71'
sYB = 's73'
L16, WA, HOFF, NM, K1, IR2, CSR, CSA, YOFF = 224, 225, 228, 229, 230, 231, 232, 248, 249
XF = 64
WB = 232
NB, AHEAD = 6, 4
CS_LDS = 159744
RED = 98304
SOUT = 8

def role_setup(a):
    a('s_and_b32 s62, s2, 7\ns_lshr_b32 s63, s2, 3')
    a(f's_lshr_b32 {sC}, s62, 1\ns_lshl_b32 {sC}, {sC}, 2\ns_lshr_b32 {sS}, s63, 3\ns_add_u32 {sC}, {sC}, {sS}')
    a(f's_lshr_b32 {sTB}, s62, 1\ns_lshl_b32 {sTB}, {sTB}, 3\ns_add_u32 {sTB}, {sTB}, {sS}')
    a(f's_and_b32 s62, s62, 1\ns_lshl_b32 {sCG}, s62, 2\ns_add_u32 {sTB}, {sTB}, {sCG}')
    a(f's_and_b32 {sCG}, s63, 7\ns_lshl_b32 {sS}, s62, 3\ns_add_u32 {sS}, {sS}, {sCG}')
    a(f's_mul_i32 {sU0}, {sS}, 7\ns_min_u32 {sU0}, {sU0}, 101\ns_mul_i32 {sW1}, {sU0}, 40960\ns_add_u32 {sW1}, {sW1}, {W1P}')
    a(f's_lshl_b32 {sW4K}, s{SW}, 12')

def l16(a):
    a(f'v_mbcnt_lo_u32_b32 v{L16}, -1, 0\nv_mbcnt_hi_u32_b32 v{L16}, -1, v{L16}\nv_lshlrev_b32 v{L16}, 4, v{L16}')

def quad_src(g):
    return (g % 3)*40960 + (g//3)*4096 if g < 30 else 122880 + (g-30)*4096

def quad_dma_dyn(sg, vl, t=('s74', 's75', 's76')):
    x, y, z = t
    L = [f's_mul_i32 {x}, {sg}, 21846', f's_lshr_b32 {x}, {x}, 16', f's_mul_i32 {y}, {x}, 3', f's_sub_u32 {y}, {sg}, {y}',
         f's_mul_i32 {y}, {y}, 40960', f's_lshl_b32 {x}, {x}, 12', f's_add_u32 {x}, {x}, {y}',
         f's_lshl_b32 {z}, {sg}, 12',
         f's_cmp_lt_u32 {sg}, 30', f's_cselect_b32 {x}, {x}, {z}', f's_add_u32 {x}, {x}, {sW1}', f's_mov_b32 m0, {z}']
    for i in range(4):
        L.append(f'buffer_load_dwordx4 {vl}, {WS}, {x} offen offset:{1024*i}{SH} lds')
    return L

CSV = 240
CSA0 = 232
def cs_issue_list(vl16):
    vt = CSV
    L = []
    def a(t): L.extend(x for x in t.split('\n') if x)
    a(f'v_lshrrev_b32 v{vt}, 4, {vl16}')
    a(f'v_bfe_u32 v{vt+1}, v{vt}, 3, 1\ns_lshl_b32 s74, s{SW}, 1\nv_add_u32 v{vt+1}, s74, v{vt+1}\nv_min_u32 v{vt+1}, 6, v{vt+1}')
    a(f'v_and_b32 v{vt+2}, 7, v{vt}\nv_lshlrev_b32 v{vt+2}, 4, v{vt+2}')
    a(f'v_lshl_add_u32 v{vt+3}, v{vt+1}, 7, v{vt+2}')
    a(f'v_lshrrev_b32 v{vt}, 4, v{vt}\nv_mul_u32_u24 v{vt}, {5*13824}, v{vt}\nv_add_u32 v{vt}, v{vt}, v{vt+3}')
    a(f's_lshl_b32 s74, {sU0}, 7\ns_add_u32 s74, s74, {CSP}')
    for i in range(5):
        a(f'buffer_load_dwordx4 a[{CSA0+4*i}:{CSA0+4*i+3}], v{vt}, {WS}, s74 offen sc1')
        if i < 4: a('s_add_u32 s74, s74, 13824')
    a(f'v_bfe_u32 v{vt+3}, v{vt+2}, 6, 1\nv_lshlrev_b32 v{vt+3}, 4, v{vt+3}\nv_lshl_add_u32 v{vt+3}, v{vt+1}, 7, v{vt+3}')
    a(f'v_bfe_u32 v{vt+2}, v{vt+2}, 4, 2\nv_lshl_add_u32 v{vt+3}, v{vt+2}, 2, v{vt+3}\nv_add_u32 v{vt+3}, {CS_LDS}, v{vt+3}')
    return L

def cs_finish(a):
    vt = CSV
    for i in range(20): a(f'v_accvgpr_read_b32 v{64+i}, a{CSA0+i}')
    for i in range(1, 5):
        for e in range(4): a(f'v_add_f32 v{64+e}, v{64+e}, v{64+4*i+e}')
    for r in range(64, 68):
        a(f'v_mov_b32 v{vt}, v{r}\nv_permlane16_swap_b32 v{vt}, v{r}\nv_add_f32 v{r}, v{r}, v{vt}')
    for r in range(64, 68):
        a(f'v_mov_b32 v{vt}, v{r}\nv_permlane32_swap_b32 v{vt}, v{r}\nv_add_f32 v{r}, v{r}, v{vt}')
    for q3 in range(4):
        a(f'ds_write_b32 v{vt+3}, v{64+q3} offset:{(q3&1)*64 + (q3>>1)*32}')

def g1_consts(a):
    t = 250
    a(f'v_lshrrev_b32 v{t}, 4, v{L16}')
    a(f'v_bfe_u32 v{t+1}, v{t}, 2, 1\nv_bfe_u32 v{t+2}, v{t}, 4, 1\nv_lshl_add_u32 v{t+1}, v{t+2}, 1, v{t+1}')
    a(f'v_bfe_u32 v{t+2}, v{t}, 1, 1\nv_lshrrev_b32 v{t+3}, 5, v{t}\nv_xor_b32 v{t+3}, v{t+3}, v{t+2}\nv_lshl_add_u32 v{t+1}, v{t+3}, 2, v{t+1}')
    a(f'v_lshl_add_u32 v{t+1}, v{t+2}, 4, v{t+1}\nv_and_b32 v{t+2}, 1, v{t}\nv_lshl_add_u32 v{t+1}, v{t+2}, 3, v{t+1}')
    a(f'v_bfe_u32 v{t+2}, v{t}, 3, 1\nv_lshl_add_u32 v{t+1}, v{t+2}, 5, v{t+1}')
    a(f'v_lshlrev_b32 v{WA}, 4, v{t+1}\nv_add_u32 v{WA+1}, 0x10000, v{WA}\nv_add_u32 v{WA+2}, 0x20000, v{WA}')
    a(f'v_and_b32 v{t+1}, 7, v{t}\nv_bfe_u32 v{t+2}, v{t}, 4, 1\nv_lshl_add_u32 v{t+1}, v{t+1}, 1, v{t+2}\nv_lshlrev_b32 v{t+1}, 4, v{t+1}')
    a(f'v_bfe_u32 v{t+2}, v{t}, 3, 1\nv_mul_u32_u24 v{t+2}, 55296, v{t+2}\nv_add_u32 v{t+1}, v{t+1}, v{t+2}')
    a(f'v_lshrrev_b32 v{t+2}, 5, v{t}\nv_lshl_add_u32 v{HOFF}, v{t+2}, 8, v{t+1}')
    a(f'v_lshlrev_b32 v{CSA}, 6, v{t+2}\nv_add_u32 v{CSA}, {CS_LDS}, v{CSA}')

def g1_seq():
    seq = []
    for ks in range(40):
        for u in range(3): seq.append((u, ks, 3*(ks >> 2) + u))
    for u in range(3, 7):
        for ks in range(40): seq.append((u, ks, 30 + 10*(u-3) + (ks >> 2)))
    return seq

def lds_addr(off):
    return (f'v{WA + (off >> 16)}', off & 0xffff)

def guarded(a, cond_reg, fn):
    lab = a.newlab('gd')
    a(f's_cmp_eq_u32 {cond_reg}, 0\ns_cbranch_scc1 {lab}')
    sv = a.vm_issued
    fn()
    a.vm_issued = sv
    a.label(lab)

def poll2(a, toks, regs, issue, cmp, alt=None, final=None):
    lspin = a.newlab('spin'); lback = a.newlab('back')
    a.wait_vm(toks)
    cmp(None)
    a(f's_cbranch_vccnz {lspin}')
    a.label(lback)
    def tail():
        a.label(lspin)
        a(f's_mov_b32 s57, {POLL_LIMIT}')
        lp = a.newlab('lp')
        if alt and PIPE:
            n0 = a.vm_issued; issue(alt[0]); n = a.vm_issued - n0
            for r in alt[1:]:
                a(f's_sleep {PIPE}'); issue(r)
            a.label(lp)
            oks = []
            for r in alt:
                a(f's_waitcnt vmcnt({n*(len(alt) - 1)})')
                cmp(r)
                lok = a.newlab('ok'); oks.append((lok, r))
                a(f's_cbranch_vccz {lok}')
                issue(r)
            a(f's_sub_u32 s57, s57, 1\ns_cbranch_scc0 {lp}')
            a(f's_branch {lback}')
            for lok, r in oks:
                a.label(lok); final(r); a(f's_branch {lback}')
        else:
            a.label(lp)
            if MASKP: a('s_mov_b64 exec, vcc')
            if BACKOFF: a(f's_sleep {BACKOFF}')
            issue(None)
            a('s_waitcnt vmcnt(0)')
            cmp(None)
            lx = a.newlab('px')
            a(f's_cbranch_vccz {lx}')
            a(f's_sub_u32 s57, s57, 1\ns_cbranch_scc0 {lp}')
            a.label(lx)
            if MASKP: a('s_mov_b64 exec, -1')
            a(f's_branch {lback}')
    a.tail.append(tail)

NXUP = int(os.environ.get('NXUP', 16))
NWDG1 = int(os.environ.get('NWDG1', 50))
EPB = int(os.environ.get('EPB', 3))

def wd_list():
    return [(k, cb) for k in range(14) for cb in range(5)]
def wd_reg(k, cb):
    i = 5*k + cb
    return f'a[{4*i}:{4*i+3}]' if i < 58 else f'v[{4*(i-58)}:{4*(i-58)+3}]'
sWD = ['s84', 's85', 's86', 's87', 's88']
def wd_bases(a):
    a(f's_mul_i32 s79, s{SW}, 14\ns_cmp_eq_u32 s{SW}, 3\ns_cselect_b32 s74, 1, 0\ns_sub_u32 s79, s79, s74\ns_lshl_b32 s79, s79, 10')
    a(f's_mul_i32 s74, {sCG}, {5*55296}\ns_add_u32 s79, s79, s74\ns_add_u32 {sWD[0]}, s79, {WDP}')
    for cb in range(1, 5): a(f's_add_u32 {sWD[cb]}, {sWD[cb-1]}, 55296')
def wd_load(k, cb, vo=None):
    L = []
    L.append(f'buffer_load_dwordx4 {wd_reg(k, cb)}, {vo or "v%d" % L16}, {WS}, {sWD[cb]} offen offset:{1024*(k&3)}{SH}')
    if k & 3 == 3: L.append(f's_add_u32 {sWD[cb]}, {sWD[cb]}, 4096')
    return L

def G1(a, layer):
    X = X1 if layer == 0 else X3
    H = HB[layer]
    seq = g1_seq()
    tg = f'G1{layer}_'
    a.st(tg + 'go')
    a(f's_lshl_b32 s72, {sC}, 2\ns_add_u32 s72, s72, s{SW}\ns_mul_i32 s72, s72, 40960\ns_add_u32 s72, s72, {X}')
    xt = []
    def xload():
        ks = len(xt)
        if ks % 4 == 0 and ks > 0: a('s_add_u32 s72, s72, 4096')
        xt.append(a(f'buffer_load_dwordx4 v[{XF+4*ks}:{XF+4*ks+3}], v{L16}, {WS}, s72 offen offset:{1024*(ks&3)}{SH}'))
    NX0 = 4
    for ks in range(NX0): xload()
    SR = CSR
    a(f'v_lshrrev_b32 v250, 6, v{L16}\nv_lshlrev_b32 v250, 8, v250\nv_and_b32 v251, 0x30, v{L16}\nv_or_b32 v250, v250, v251')
    a(f'v_mov_b32 v252, {(OOB)}\nv_cmp_le_u32 vcc, 0x200, v{L16}\nv_cndmask_b32 v251, 0, v252, vcc\nv_or_b32 v251, v251, v250')
    a(f's_lshr_b32 s74, {sS}, 2\ns_lshl_b32 s75, {sC}, 2\ns_add_u32 s74, s74, s75\ns_mul_i32 s74, s74, 40960')
    a(f's_and_b32 s75, {sS}, 3\ns_lshl_b32 s75, s75, 6\ns_add_u32 s74, s74, s75\ns_mul_i32 s75, s{SW}, 10240\ns_add_u32 s74, s74, s75\ns_add_u32 s74, s74, {X}')
    stt = []
    for i in range(3):
        stt.append(a(f'buffer_load_dwordx4 v[{SR+4*i}:{SR+4*i+3}], v{251 if i == 2 else 250}, {WS}, s74 offen{SH}'))
        if i < 2: a('s_add_u32 s74, s74, 4096')
    for ks in range(NX0, NXUP): xload()
    rd_tok = {}
    def rd(s):
        if s >= len(seq): return
        u, ks, g = seq[s]
        reg, off = lds_addr((g % 39)*4096 + (ks & 3)*1024)
        b = WB + 4*(s % NB)
        rd_tok[s] = a(f'ds_read_b128 a[{b}:{b+3}], {reg} offset:{off}')
    for s in range(AHEAD): rd(s)
    a(f's_lshl_b32 s75, {sC}, 2\ns_add_u32 s75, s75, s{SW}\ns_mul_i32 s75, s75, 110592\ns_lshl_b32 s76, {sU0}, 9\ns_add_u32 s75, s75, s76\ns_add_u32 s77, s75, {H}')
    a(f's_mov_b32 s82, {sW4K}\ns_add_u32 s83, {sW4K}, {quad_src(39)}\ns_add_u32 s83, s83, {sW1}')
    if layer == 0: wd_bases(a)
    def swaps(ks):
        r = XF + 4*ks
        return [f'v_permlane16_swap_b32 v{r}, v{r+2}', f'v_permlane16_swap_b32 v{r+1}, v{r+3}']
    Q = []
    def push(at, items):
        for it in items: Q.append([at, it])
    S0 = CSR + 12
    st = [lambda: a.wait_vm(stt[2])]
    for i in range(3):
        for h in range(4):
            r = SR + 4*i + h; s_ = S0 + 2*(h >> 1); q_ = s_ + 1
            first = (i == 0 and (h & 1) == 0)
            st += [f'v_lshlrev_b32 v250, 16, v{r}', f'v_and_b32 v251, s78, v{r}']
            if first: st += [f'v_add_f32 v{s_}, v250, v251', f'v_mul_f32 v{q_}, v250, v250']
            else: st += [f'v_add_f32 v{s_}, v{s_}, v250', f'v_fmac_f32 v{q_}, v250, v250', f'v_add_f32 v{s_}, v{s_}, v251']
            st += [f'v_fmac_f32 v{q_}, v251, v251']
    for rot in (4, 8):
        for e in range(4): st.append(f'v_add_f32_dpp v{S0+e}, v{S0+e}, v{S0+e} row_ror:{rot} row_mask:0xf bank_mask:0xf')
    for op in ('v_permlane16_swap_b32', 'v_permlane32_swap_b32'):
        for e in range(4): st += [f'v_mov_b32 v{250+e}, v{S0+e}']
        for e in range(4): st += [f'{op} v{250+e}, v{S0+e}']
        for e in range(4): st += [f'v_add_f32 v{S0+e}, v{S0+e}, v{250+e}']
    st += [f'v_and_b32 v254, 0x40, v{L16}', 'v_cmp_ne_u32 vcc, 0, v254',
           f's_lshr_b32 s74, {sS}, 2', 's_lshl_b32 s74, s74, 9',
           f'v_cndmask_b32 v250, v{S0}, v{S0+2}, vcc', f'v_cndmask_b32 v252, v{S0+1}, v{S0+3}, vcc',
           f'v_mov_b32 v251, s{STAG}', f'v_mov_b32 v253, s{STAG}',
           'v_lshlrev_b32 v254, 2, v254', f'v_and_b32 v{S0}, 0x30, v{L16}', f'v_add_u32 v254, v254, v{S0}',
           f's_and_b32 s75, {sS}, 3', 's_lshl_b32 s75, s75, 6', 's_add_u32 s74, s74, s75',
           f's_lshl_b32 s75, s{SW}, 11', 's_add_u32 s74, s74, s75', f's_lshl_b32 s75, {sC}, 13', 's_add_u32 s74, s74, s75', f's_add_u32 s74, s74, {ST[layer]}']
    def st_store():
        a(f's_mov_b64 exec, 0xff\nbuffer_store_dwordx4 v[250:253], v254, {WS}, s74 offen sc1\ns_mov_b64 exec, -1')
    st.append(st_store)
    PR_ = CSR
    ptk = []
    def sp_issue(_=None):
        ptk.append(a(f'buffer_load_dwordx4 v[{PR_}:{PR_+3}], v254, {WS}, s74 offen sc1'))
        ptk.append(a(f'buffer_load_dwordx4 v[{PR_+4}:{PR_+7}], v254, {WS}, s74 offen offset:2048 sc1'))
    def sp_cmp(_=None):
        a(f'v_xor_b32 v250, s{STAG}, v{PR_+1}\nv_xor_b32 v251, s{STAG}, v{PR_+3}\nv_xor_b32 v252, s{STAG}, v{PR_+5}\nv_xor_b32 v253, s{STAG}, v{PR_+7}')
        a('v_or3_b32 v250, v250, v251, v252\nv_or_b32 v250, v250, v253\nv_cmp_ne_u32 vcc, 0, v250')
    sp = [f'v_and_b32 v254, 0x1f0, v{L16}', f'v_lshrrev_b32 v250, 9, v{L16}', 'v_lshl_add_u32 v254, v250, 12, v254',
          f's_lshl_b32 s74, {sC}, 13', f's_lshl_b32 s75, s{SW}, 9', 's_add_u32 s74, s74, s75', f's_add_u32 s74, s74, {ST[layer]}', sp_issue]
    sf = [lambda: poll2(a, ptk[1], None, sp_issue, sp_cmp),
          f'v_add_f32 v{PR_}, v{PR_}, v{PR_+4}', f'v_add_f32 v{PR_+2}, v{PR_+2}, v{PR_+6}',
          's_mov_b32 s74, 0x3acccccd', 's_mov_b32 s75, 0x3727c5ac',
          f'v_mov_b32 v250, v{PR_}', f'v_mov_b32 v251, v{PR_+2}', 's_mov_b32 s76, 0xbfb8aa3b', 's_nop 0',
          f'v_permlane32_swap_b32 v250, v{PR_}', f'v_permlane32_swap_b32 v251, v{PR_+2}',
          f'v_add_f32 v{PR_}, v{PR_}, v250', f'v_add_f32 v{PR_+2}, v{PR_+2}, v251',
          f'v_mul_f32 v{NM}, s74, v{PR_}', f'v_mul_f32 v{IR2}, s74, v{PR_+2}',
          f'v_fma_f32 v{IR2}, -v{NM}, v{NM}, v{IR2}', f'v_max_f32 v{IR2}, 0, v{IR2}', f'v_add_f32 v{IR2}, s75, v{IR2}',
          f'v_rsq_f32 v{K1}, v{IR2}', f'v_sub_f32 v{NM}, 0, v{NM}', f'v_mul_f32 v{K1}, s76, v{K1}']
    a('s_mov_b32 s78, 0xffff0000')
    push(9, st)
    push(ST_POLL, sp)
    push(ST_CHK, sf)
    accof = {0: 0, 1: 16, 2: 32, 3: 48, 4: 0, 5: 16, 6: 32}
    def epi(u):
        A = accof[u]; L = []
        cst = {}
        def csrd(hf):
            def f():
                a(f'ds_read_b128 v[{CSR+8*hf}:{CSR+8*hf+3}], v{CSA} offset:{128*u + 32*hf}')
                cst[hf] = a(f'ds_read_b128 v[{CSR+8*hf+4}:{CSR+8*hf+7}], v{CSA} offset:{128*u + 32*hf + 16}')
            return (2, f)
        L += [csrd(0), csrd(1)]
        for hf in range(2):
            G = A + 8*hf; U = G + 4; C = CSR + 8*hf
            L.append((0, lambda hf=hf: a.wait_lg(cst[hf])))
            for r in range(4): L.append((1, f'v_fmac_f32 v{G+r}, v{NM}, v{C+r}'))
            for r in range(4): L.append((1, f'v_fmac_f32 v{U+r}, v{NM}, v{C+4+r}'))
            for r in range(4): L.append((1, f'v_mul_f32 v{C+r}, v{K1}, v{G+r}'))
            for r in range(4): L += [(2, f'v_exp_f32 v{C+r}, v{C+r}'), (1, f'v_mul_f32 v{G+r}, v{G+r}, v{U+r}')]
            for r in range(4): L.append((1, f'v_fma_f32 v{C+r}, v{C+r}, v{IR2}, v{IR2}'))
            for r in range(4): L.append((2, f'v_rcp_f32 v{C+r}, v{C+r}'))
            for r in range(4): L.append((1, f'v_mul_f32 v{G+r}, v{G+r}, v{C+r}'))
            O = A + 4 + 2*hf
            L += [(1, f'v_cvt_pk_bf16_f32 v{O}, v{G}, v{G+1}'), (1, f'v_cvt_pk_bf16_f32 v{O+1}, v{G+2}, v{G+3}')]
        L.append((1, f'buffer_store_dwordx4 v[{A+4}:{A+7}], v{HOFF}, {WS}, s77 offen offset:{512*u} sc1'))
        return L
    V = []
    dt = {}
    def refill_items(gam, at):
        for i in range(4):
            L = []
            if i == 0:
                if gam == 7:
                    L += [f's_min_u32 s74, {sW4K}, {2*4096}', f's_add_u32 s82, s74, {28*4096}', f's_add_u32 s83, s74, {quad_src(67)}', f's_add_u32 s83, s83, {sW1}']
                L.append('s_mov_b32 m0, s82')
            L.append(f'buffer_load_dwordx4 v{L16}, {WS}, s83 offen offset:{1024*i}{SH} lds')
            if i == 3 and gam < 6: L += ['s_add_u32 s82, s82, 16384', 's_add_u32 s83, s83, 16384']
            if i == 3 and gam == 6: pass
            V.append([at, L, ('dma', gam)])
    for gam in range(6): refill_items(gam, RB0)
    for gam in (6, 7): refill_items(gam, 148)
    V.sort(key=lambda x: x[0])
    WQ = []
    if layer == 0:
        for (k, cb) in wd_list()[:NWDG1]: WQ.append(wd_load(k, cb))
    BARS = {RB0: [], 148: [2], 196: [5], 244: [7]}
    last_of = {}
    for s, (u, ks, g) in enumerate(seq): last_of[u] = s
    avail = {u: last_of[u] + 3 for u in range(7)}
    nxt = 0
    cur = []
    a.wait_vm(xt[0])
    for x in swaps(0): a(x)
    a.st(tg + 'x0')
    fy = None
    lastv = -9
    for s, (u, ks, g) in enumerate(seq):
        if s in BARS:
            for gam in BARS[s]:
                assert gam in dt, (s, gam)
                a.wait_vm(dt[gam])
            if s == RB0 and layer == 0:
                a.poll1_check(fwd, 4, 'v249', 's80', 240, barrier=False)
            if s == 244 and layer == 0:
                a.poll1_check(fy, 4, 'v249', 's80', 250, barrier=False)
            a('s_barrier')
            if s == 148 and layer == 0:
                def fyf():
                    a(f's_lshl_b32 s74, s2, 2\ns_add_u32 s74, s74, {FY}')
                    a.flag_store('s74', 'v250', 'v251')
                guarded(a, sROLE, fyf)
        if s == FWD_AT and layer == 0:
            assert not any(q[0] == 9 for q in Q), 'statistics not finished'
            a(f'v_lshrrev_b32 v249, 4, v{L16}\nv_min_u32 v249, 23, v249\nv_lshlrev_b32 v249, 4, v249')
            a(f's_and_b32 s80, s2, 15\ns_lshl_b32 s80, s80, 9\ns_add_u32 s80, s80, {FWD}')
            fwd = a.poll1_issue(4, 'v249', 's80', 240)
        if s == YS_AT and layer == 0:
            def ys():
                for k in range(4):
                    a(f'buffer_store_dwordx4 v[{48+4*k}:{48+4*k+3}], v{YOFF}, {WS}, {sYB} offen sc1')
                    if k < 3: a(f's_add_u32 {sYB}, {sYB}, {4*40960}')
            guarded(a, sROLE, ys)
        if s == 232 and layer == 0:
            a(f'v_lshrrev_b32 v249, 4, v{L16}\nv_min_u32 v249, 39, v249\nv_lshlrev_b32 v249, 4, v249\ns_mov_b32 s80, {FY}')
            fy = a.poll1_issue(4, 'v249', 's80', 250)
        if s % 2 == 0: a.wait_lg(rd_tok[min(s + 1, len(seq) - 1)])
        b = WB + 4*(s % NB); A = accof[u]
        c = '0' if ks == 0 else f'v[{A}:{A+15}]'
        a(f'v_mfma_f32_32x32x16_bf16 v[{A}:{A+15}], a[{b}:{b+3}], v[{XF+4*ks}:{XF+4*ks+3}], {c}')
        rd(s + AHEAD)
        n = 1 + (1 if s % 2 == 1 else 0)
        if s < 120 and u == 1 and ks + 1 < 40:
            a.wait_vm(xt[ks+1])
            for x in swaps(ks+1): a(x)
            n += 3
        if s < 120 and u == 0 and len(xt) < 40:
            xload(); n += 1; lastv = s
        elif s - lastv >= 2:
            if V and V[0][0] <= s:
                _, L, nm = V.pop(0)
                for x in L: t = a(x)
                dt[nm[1]] = a.vm_issued
                n += len(L); lastv = s
            elif WQ and s >= WD_AT:
                L = WQ.pop(0)
                for x in L: a(x)
                n += len(L); lastv = s
        budget = 6
        while n < budget and Q and Q[0][0] <= s:
            it = Q.pop(0)[1]
            it() if callable(it) else a(it)
            n += 1
        if s >= 120:
            if not cur and nxt < 6 and avail[nxt] <= s and not Q:
                cur = epi(nxt); nxt += 1
            m = 0
            while cur and (n + cur[0][0] <= budget) and m < EPB:
                c_, it = cur.pop(0)
                it() if callable(it) else a(it)
                n += c_; m += 1 if c_ else 0
        if s in (119, 159, 199, 239): a.st(tg + f'm{s+1}')
        if s + 1 < len(seq) and seq[s+1][1] == 0 and seq[s+1][0] >= 4:
            assert nxt > seq[s+1][0] - 4 and not (nxt == seq[s+1][0] - 3 and cur), ('epilogue late', s, nxt, len(cur))
    assert not Q and not V and not WQ, (len(Q), len(V), len(WQ))
    a.st(tg + 'mend')
    for c_, it in cur: it() if callable(it) else a(it)
    while nxt < 7:
        for c_, it in epi(nxt): it() if callable(it) else a(it)
        nxt += 1
    a.st(tg + 'epi')
    a(f's_lshl_b32 s74, {sC}, 9\ns_lshl_b32 s75, {sS}, 2\ns_add_u32 s74, s74, s75\ns_add_u32 s74, s74, {FH[layer]}')
    a(f's_lshl_b32 s75, s{SW}, 2\ns_add_u32 s76, s75, 3\ns_cmp_eq_u32 s{SW}, 3\ns_cselect_b32 s80, 1, 0\ns_sub_u32 s75, s75, s80')
    a(f'v_lshrrev_b32 v249, 4, v{L16}\nv_add_u32 v249, s75, v249\nv_min_u32 v249, s76, v249\nv_lshlrev_b32 v249, 2, v249')
    a(f's_lshr_b32 s80, {sTB}, 1\ns_lshl_b32 s80, s80, 2\ns_add_u32 s80, s80, s{SW}\ns_lshl_b32 s80, s80, 7\ns_add_u32 s80, s80, {FH[layer]}')
    a('s_waitcnt vmcnt(0)\ns_barrier')
    a.reset_counts()

RB0 = 96
ST_POLL, ST_CHK = 84, 112
YS_AT = 78
FWD_AT = 82
WD_AT = 100

def pre_G1_common(a):
    a.st('J_cs')
    a(f'v_lshrrev_b32 v88, 4, v{L16}\nv_min_u32 v88, 39, v88\nv_lshlrev_b32 v88, 4, v88')
    a(f's_and_b32 s74, s2, 15\ns_lshl_b32 s74, s74, 10\ns_add_u32 s74, s74, {FX1}')
    a('s_waitcnt vmcnt(0) lgkmcnt(0)')
    a.poll_w0(4, 'v88', 's74', 84, alt=(92, 96, 100))
    a.reset_counts()

def rest(a, stages, epoch_update):
    import g2h
    pre_G1_common(a)
    epoch_update(a)
    G1(a, 0)
    if stages == 2:
        a.flag_store('s74', 'v250', 'v251', rep=4, stride=128)
        return
    g2h.G2(a, 0, last=(stages == 3))
    if stages == 3: return
    G1(a, 1)
    if stages == 4:
        a.flag_store('s74', 'v250', 'v251', rep=4, stride=128)
        return
    g2h.G2(a, 1)
```

```python
from g2base import *
from g2g import *
import g2g

OPOL = {'': '', 'nt': ' nt', 'sc1': ' sc1', 'sc01': ' sc0 sc1', 'sc1nt': ' sc1 nt', 'sc01nt': ' sc0 sc1 nt'}[os.environ.get('OPOL', '')]
ACC = 64
HBUF = 144
NHB = 5
RX = 232
RY = 48
sHB = ['s90', 's91', 's92', 's93']
VM, VR, VT = 242, 243, 244
VE = 58
def acc(tb, cb): return ACC + 20*tb + 4*cb
def hb(k, tb): return HBUF + 16*(k % NHB) + 4*tb

def G2(a, layer, last=False):
    H = HB[layer]; X = X1 if layer == 0 else X3
    tg = f'G2{layer}_'
    if layer == 1: a.srd_load(SOUT, 'out'); a.srd_fin(SOUT, 'out')
    tp = a.poll_issue(1, 'v249', 's80', 250)
    a.flag_store('s74', 'v251', 'v252', rep=4, stride=128)
    a.st(tg + 'flag')
    a(f'v_mov_b32 v{VM}, {OOB}\ns_cmp_ge_u32 s{SW}, 2\ns_cselect_b32 s74, -1, 0\nv_and_b32 v{VM}, s74, v{VM}\nv_or_b32 v{VM}, v{VM}, v{L16}')
    wl = wd_list()
    tw = {}
    if layer == 0:
        for (k, cb) in wl[g2g.NWDG1:]:
            for x in wd_load(k, cb, vo=(f'v{VM}' if k == 13 else None)): t = a(x); tw[(k, cb)] = t or tw.get((k, cb))
            tw[(k, cb)] = a.vm_issued
    else:
        for (k, cb) in wl[58:]:
            if k == 11:
                a(f's_sub_u32 s74, {sWD[cb]}, 4096')
                a(f'buffer_load_dwordx4 {wd_reg(k, cb)}, v{L16}, {WS}, s74 offen offset:3072{SH}')
            else:
                a(f'buffer_load_dwordx4 {wd_reg(k, cb)}, v{VM if k == 13 else L16}, {WS}, {sWD[cb]} offen offset:{1024*(k&3)}{SH}')
            tw[(k, cb)] = a.vm_issued
    a(f'v_lshrrev_b32 v{VT}, 8, v{L16}\nv_lshlrev_b32 v{VT}, 8, v{VT}\nv_bfe_u32 v{VR}, v{L16}, 4, 4\nv_lshl_add_u32 v{VR}, v{VR}, 3, v{VT}')
    a(f's_lshl_b32 s75, {sTB}, 1\ns_lshr_b32 s76, s{SW}, 1\ns_add_u32 s75, s75, s76\ns_mul_i32 s75, s75, 40960\ns_mul_i32 s76, {sCG}, 5120\ns_add_u32 s75, s75, s76')
    a(f's_and_b32 s76, s{SW}, 1\ns_lshl_b32 s76, s76, 7\ns_add_u32 s94, s75, s76')
    def gran_loads(base, reg):
        a(f's_add_u32 s75, s94, {base}\ns_add_u32 s76, s75, 4096')
        for cb in range(5):
            t = a(f'buffer_load_dwordx2 v[{reg+2*cb}:{reg+2*cb+1}], v{VR}, {WS}, {"s75" if cb < 4 else "s76"} offen offset:{1024*(cb&3)}{SH}')
        return t
    tx = gran_loads(X, RX)
    ty = gran_loads(YG, RY) if layer == 0 else None
    a(f's_mul_i32 s79, s{SW}, 14\ns_cmp_eq_u32 s{SW}, 3\ns_cselect_b32 s74, 1, 0\ns_sub_u32 s79, s79, s74\ns_lshl_b32 s79, s79, 10\ns_add_u32 s79, s79, {H}')
    for tb in range(4):
        a(f's_add_u32 s74, s{SW}, {tb}\ns_and_b32 s74, s74, 3\ns_lshl_b32 s75, {sTB}, 2\ns_add_u32 s74, s74, s75\ns_mul_i32 s74, s74, 55296\ns_add_u32 {sHB[tb]}, s74, s79')
    a.poll_check(tp, 1, 'v249', 's80', 250, alt=(144, 148, 152))
    a.st(tg + 'go')
    th = {}
    def hload(k, tb):
        if k >= 14: return
        r = hb(k, tb)
        th[(k, tb)] = a(f'buffer_load_dwordx4 v[{r}:{r+3}], v{VM if k == 13 else L16}, {WS}, {sHB[tb]} offen offset:{1024*(k&3)}{SH}')
        if k & 3 == 3: a(f's_add_u32 {sHB[tb]}, {sHB[tb]}, 4096')
    PF = NHB - 1
    for k in range(PF):
        for tb in range(4): hload(k, tb)
    for tb in range(1, 4):
        a(f's_add_u32 s74, s{SW}, {tb}\ns_and_b32 s74, s74, 3\ns_mul_i32 s74, s74, 15360\ns_add_u32 s74, s74, {RED + (tb-1)*5120}\nv_add_u32 v{VT+tb-1}, s74, v{L16}')
    a(f's_mul_i32 s74, s{SW}, 15360\ns_add_u32 s74, s74, {RED}\nv_add_u32 v{VT+3}, s74, v{L16}')
    DQ = []
    if layer == 0 and not last:
        for i in range(6):
            L = [f's_add_u32 s81, s{SW}, {4*i}'] + quad_dma_dyn('s81', f'v{L16}', t=('s74', 's75', 's76'))
            DQ.append(L[:-3]); DQ += [[x] for x in L[-3:]]
    lskip = a.newlab('g2skip')
    first = True
    for k in range(14):
        if k == 13:
            a(f's_cmp_ge_u32 s{SW}, 2\ns_cbranch_scc1 {lskip}')
            sv = (a.vm_issued, a.vm_done)
        order = [0, 1, 2, 3] if k < 13 else [1, 2, 3, 0]
        for j, tb in enumerate(order):
            toks = [th[(k, tb)]] + [tw[(k, cb)] for cb in range(5) if (k, cb) in tw]
            a.wait_vm(max(toks))
            if first: a.st(tg + 'h0'); first = False
            for cb in range(5):
                A = acc(tb, cb); b = hb(k, tb)
                c = '0' if k == 0 else f'v[{A}:{A+3}]'
                a(f'v_mfma_f32_16x16x32_bf16 v[{A}:{A+3}], {wd_reg(k, cb)}, v[{b}:{b+3}], {c}')
                if cb == 0 and k + PF < 14: hload(k + PF, tb)
                elif k >= 14 - PF and k < 13 and cb == 0 and DQ:
                    for x in DQ.pop(0): a(x)
    a.label(lskip)
    a.vm_done = sv[1]
    a.wait_vm(th[(13, 3)])
    a.st(tg + 'mend')
    for tb in (1, 2, 3):
        for cb in range(5):
            A = acc(tb, cb)
            a(f'ds_write_b128 v{VT+tb-1}, v[{A}:{A+3}] offset:{1024*cb}')
    for _ in range(4):
        if DQ:
            for x in DQ.pop(0): a(x)
    a('s_waitcnt lgkmcnt(0)\ns_barrier')
    RB = HBUF
    tr = []
    for cb in range(5):
        for j in range(3):
            r = RB + 12*cb + 4*j
            t = a(f'ds_read_b128 v[{r}:{r+3}], v{VT+3} offset:{5120*j + 1024*cb}')
        tr.append(t)
    a.wait_vm(tx)
    PK = 204
    U = 84
    a('s_mov_b32 s78, 0xffff0000')
    for cb in range(5):
        A = acc(0, cb); r = RB + 12*cb
        a.wait_lg(tr[cb])
        for e in range(4): a(f'v_add_f32 v{r+e}, v{r+e}, v{r+4+e}')
        if DQ:
            for x in DQ.pop(0): a(x)
        for e in range(4): a(f'v_add_f32 v{A+e}, v{A+e}, v{r+8+e}')
        for e in range(4): a(f'v_add_f32 v{A+e}, v{A+e}, v{r+e}')
        a(f'v_permlane32_swap_b32 v{A}, v{A+2}\nv_permlane32_swap_b32 v{A+1}, v{A+3}')
        a(f'v_permlane16_swap_b32 v{A}, v{A+1}\nv_permlane16_swap_b32 v{A+2}, v{A+3}')
        x = RX + 2*cb
        if DQ:
            for x_ in DQ.pop(0): a(x_)
        a(f'v_lshlrev_b32 v{r}, 16, v{x}\nv_and_b32 v{r+1}, s78, v{x}\nv_lshlrev_b32 v{r+2}, 16, v{x+1}\nv_and_b32 v{r+3}, s78, v{x+1}')
        for e in range(4): a(f'v_add_f32 v{A+e}, v{A+e}, v{r+e}')
        a(f'v_cvt_pk_bf16_f32 v{PK+2*cb}, v{A}, v{A+1}\nv_cvt_pk_bf16_f32 v{PK+2*cb+1}, v{A+2}, v{A+3}')
    assert not DQ
    a.st(tg + 'red')
    if layer == 1:
        a(f'v_bfe_u32 v{VT}, v{L16}, 4, 4\nv_mul_u32_u24 v{VT}, 1280, v{VT}\nv_bfe_u32 v{VT+1}, v{L16}, 8, 1\nv_lshl_add_u32 v{VT}, v{VT+1}, 5, v{VT}')
        a(f'v_bfe_u32 v{VT+1}, v{L16}, 9, 1\nv_lshl_add_u32 v{VT}, v{VT+1}, 4, v{VT}')
        a(f's_lshl_b32 s74, {sTB}, 2\ns_add_u32 s74, s74, s{SW}\ns_mul_i32 s74, s74, {16*1280}\ns_mul_i32 s75, {sCG}, 160\ns_add_u32 s74, s74, s75')
        for p in range(3):
            R = PK + 4*p
            a(f'v_permlane16_swap_b32 v{R}, v{R+2}\nv_permlane16_swap_b32 v{R+1}, v{R+3}')
        for p in range(3):
            R = PK + 4*p
            if p == 2: a('s_mov_b32 exec_lo, 0x0000ffff\ns_mov_b32 exec_hi, 0x0000ffff')
            a(f'buffer_store_dwordx4 v[{R}:{R+3}], v{VT}, s[{SOUT}:{SOUT+3}], s74 offen offset:{64*p}{OPOL}')
        a('s_mov_b64 exec, -1')
        a.st(tg + 'end')
        return
    S_, Q_ = VT, VT+2
    a('s_mov_b32 s75, 0x3f803f80')
    for i in range(10):
        a(f'v_dot2_f32_bf16 v{S_}, v{PK+i}, s75, {"0" if i == 0 else f"v{S_}"}')
        a(f'v_dot2_f32_bf16 v{Q_}, v{PK+i}, v{PK+i}, {"0" if i == 0 else f"v{Q_}"}')
    for op in ('v_permlane16_swap_b32', 'v_permlane32_swap_b32'):
        a(f'v_mov_b32 v{VE}, v{S_}\nv_mov_b32 v{VE+1}, v{Q_}\n{op} v{VE}, v{S_}\n{op} v{VE+1}, v{Q_}')
        a(f'v_add_f32 v{S_}, v{S_}, v{VE}\nv_add_f32 v{Q_}, v{Q_}, v{VE+1}')
    a(f'v_mov_b32 v{VT+1}, s{STAG}\nv_mov_b32 v{VT+3}, s{STAG}')
    a(f'v_and_b32 v{VE}, 0xf0, v{L16}')
    a(f's_lshl_b32 s74, {sTB}, 13\ns_lshl_b32 s75, s{SW}, 8\ns_add_u32 s74, s74, s75\ns_add_u32 s79, s74, {XS}\ns_lshl_b32 s75, {sCG}, 10\ns_add_u32 s74, s79, s75')
    a(f's_mov_b64 exec, 0xffff\nbuffer_store_dwordx4 v[{VT}:{VT+3}], v{VE}, {WS}, s74 offen sc1\ns_mov_b64 exec, -1')
    a(f'v_lshrrev_b32 v{VE+1}, 8, v{L16}\nv_lshl_add_u32 v{VE}, v{VE+1}, 11, v{VE}')
    PR_ = RB
    ptk = []
    def xs_issue(b=None):
        b = PR_ if b is None else b
        ptk.append(a(f'buffer_load_dwordx4 v[{b}:{b+3}], v{VE}, {WS}, s79 offen sc1'))
        ptk.append(a(f'buffer_load_dwordx4 v[{b+4}:{b+7}], v{VE}, {WS}, s79 offen offset:1024 sc1'))
    def xs_cmp(b=None):
        b = PR_ if b is None else b
        a(f'v_xor_b32 v250, s{STAG}, v{b+1}\nv_xor_b32 v251, s{STAG}, v{b+3}\nv_xor_b32 v252, s{STAG}, v{b+5}\nv_xor_b32 v253, s{STAG}, v{b+7}')
        a('v_or3_b32 v250, v250, v251, v252\nv_or_b32 v250, v250, v253\nv_cmp_ne_u32 vcc, 0, v250')
    def xs_final(b):
        for e in (0, 2, 4, 6): a(f'v_mov_b32 v{PR_+e}, v{b+e}')
    xs_issue()
    a.st(tg + 'xs')
    a.wait_vm(ty)
    YU = 104
    for i in range(10):
        a(f'v_lshlrev_b32 v{U+2*i}, 16, v{PK+i}\nv_and_b32 v{U+2*i+1}, s78, v{PK+i}')
        a(f'v_lshlrev_b32 v{YU+2*i}, 16, v{RY+i}\nv_and_b32 v{YU+2*i+1}, s78, v{RY+i}')
    a(f'v_bfe_u32 v{VE+2}, v{L16}, 4, 1')
    a(f'v_lshlrev_b32 v{VE+3}, 3, v{VE+2}\nv_sub_u32 v{VE+3}, v{VR}, v{VE+3}\nv_lshl_add_u32 v{VE+3}, v{VE+2}, 10, v{VE+3}')
    poll2(a, ptk[1], None, xs_issue, xs_cmp, alt=(152, 160, 168), final=xs_final)
    a.st(tg + 'xsok')
    a(f'v_add_f32 v{PR_}, v{PR_}, v{PR_+4}\nv_add_f32 v{PR_+2}, v{PR_+2}, v{PR_+6}')
    for op in ('v_permlane16_swap_b32', 'v_permlane32_swap_b32'):
        a(f'v_mov_b32 v250, v{PR_}\nv_mov_b32 v251, v{PR_+2}\n{op} v250, v{PR_}\n{op} v251, v{PR_+2}')
        a(f'v_add_f32 v{PR_}, v{PR_}, v250\nv_add_f32 v{PR_+2}, v{PR_+2}, v251')
    m_, q_ = PR_, PR_+2
    a('s_mov_b32 s74, 0x3acccccd\ns_mov_b32 s75, 0x3727c5ac')
    a(f'v_mul_f32 v{m_}, s74, v{m_}\nv_mul_f32 v{q_}, s74, v{q_}\nv_fma_f32 v{q_}, -v{m_}, v{m_}, v{q_}\nv_max_f32 v{q_}, 0, v{q_}\nv_add_f32 v{q_}, s75, v{q_}\nv_rsq_f32 v{q_}, v{q_}')
    a(f's_nop 0\nv_mul_f32 v{m_}, v{m_}, v{q_}\nv_sub_f32 v{m_}, 0, v{m_}')
    for i in range(20):
        a(f'v_fma_f32 v250, v{U+i}, v{q_}, v{m_}\nv_fma_f32 v{U+i}, v250, v{YU+i}, v{U+i}') if False else None
    T = 124
    for i in range(20): a(f'v_fma_f32 v{T+i}, v{U+i}, v{q_}, v{m_}')
    for i in range(20): a(f'v_fma_f32 v{U+i}, v{T+i}, v{YU+i}, v{U+i}')
    for i in range(10): a(f'v_cvt_pk_bf16_f32 v{PK+i}, v{U+2*i}, v{U+2*i+1}')
    O = 216
    a(f'v_cmp_eq_u32 vcc, 0, v{VE+2}')
    a(f's_add_u32 s75, s94, {X3}\ns_add_u32 s76, s75, 4096')
    for p in range(2):
        R = PK + 4*p; o = O + 4*p
        a(f'v_cndmask_b32 v250, v{R}, v{R+2}, vcc\nv_cndmask_b32 v251, v{R+1}, v{R+3}, vcc')
        a(f'v_cndmask_b32_dpp v{o}, v250, v{R}, vcc quad_perm:[1,0,3,2] row_mask:0xf bank_mask:0xf')
        a(f'v_cndmask_b32_dpp v{o+1}, v251, v{R+1}, vcc quad_perm:[1,0,3,2] row_mask:0xf bank_mask:0xf')
        a('s_not_b64 vcc, vcc\ns_nop 1')
        a(f'v_cndmask_b32_dpp v{o+2}, v250, v{R+2}, vcc quad_perm:[1,0,3,2] row_mask:0xf bank_mask:0xf')
        a(f'v_cndmask_b32_dpp v{o+3}, v251, v{R+3}, vcc quad_perm:[1,0,3,2] row_mask:0xf bank_mask:0xf')
        a('s_not_b64 vcc, vcc\ns_nop 1')
        a(f'buffer_store_dwordx4 v[{o}:{o+3}], v{VE+3}, {WS}, s75 offen offset:{2048*p} sc1')
    R = PK + 8
    a(f'v_mov_b32_dpp v{R+2}, v{R} quad_perm:[1,0,3,2] row_mask:0xf bank_mask:0xf\nv_mov_b32_dpp v{R+3}, v{R+1} quad_perm:[1,0,3,2] row_mask:0xf bank_mask:0xf')
    a('s_mov_b32 exec_lo, 0x55555555\ns_mov_b32 exec_hi, 0x55555555')
    a(f'buffer_store_dwordx4 v[{R}:{R+3}], v{VE+3}, {WS}, s76 offen sc1')
    a('s_mov_b64 exec, -1')
    a.st(tg + 'x3st')
    a(f's_lshr_b32 s74, {sTB}, 1\ns_lshl_b32 s74, s74, 9\ns_and_b32 s75, {sTB}, 1\ns_lshl_b32 s75, s75, 3\ns_add_u32 s75, s75, {sCG}\ns_lshl_b32 s75, s75, 2\ns_add_u32 s74, s74, s75\ns_add_u32 s79, s74, {FX3}')
    a(f's_lshl_b32 s80, {sC}, 2\ns_and_b32 s75, {sS}, 3\ns_add_u32 s80, s80, s75\ns_lshl_b32 s80, s80, 7\ns_add_u32 s80, s80, {FX3}')
    a(f'v_lshrrev_b32 v249, 4, v{L16}\nv_min_u32 v249, 15, v249\nv_lshlrev_b32 v249, 2, v249')
    a('s_waitcnt vmcnt(0)\ns_barrier')
    a.reset_counts()
    a.flag_store('s79', 'v250', 'v251', rep=4, stride=128)
    a.st(tg + 'x3flag')
    if last: return
    lab = a.newlab('nd')
    a(f's_cmp_eq_u32 s{SW}, 1\ns_cbranch_scc1 {lab}')
    a(f's_min_u32 s82, s{SW}, 1\ns_sub_u32 s82, s{SW}, s82\ns_add_u32 s82, s82, 24')
    sv = a.vm_issued
    for i in range(5):
        for x in quad_dma_dyn('s82', f'v{L16}'): a(x)
        if i < 4: a('s_add_u32 s82, s82, 3')
    a.vm_issued = sv
    a('s_waitcnt vmcnt(0)')
    a.label(lab)
    a.poll_w0(1, 'v249', 's80', 250, alt=(100, 104, 108))
    a.reset_counts()
```

```python
from g2base import *

CS = 4160
WLDS = 4*CS + 4608
CONV_BASE = LDS_BYTES - 4*WLDS
QBLK = 3
_nt = __import__('os').environ.get('NT', 'w,d,h').split(',')
POL = {k: (' nt' if k in _nt else '') for k in 'wkvhqsd'}
WPOL = ' nt' if 'wnt' in __import__('os').environ.get('EXP', '') else ''
FQBLK = int(__import__('os').environ.get('FQBLK', 1))
GPOL = {'': '', 'nt': ' nt', 'sc1': ' sc1', 'sc01': ' sc0 sc1', 'sc01nt': ' sc0 sc1 nt'}[__import__('os').environ.get('GPOL', '')]
EXP = __import__('os').environ.get('EXP', '')
NB1 = int(__import__('os').environ.get('NB1', 3))
import os
PBLK = int(os.environ.get('PBLK', 3))
STAGE1 = False
QDELAY = 4
CDEPTH = 3
TOUCH = True
NH0 = 3
WDRAW = 224
SWD = 48
HRAW = 192
SDQ = 's96'
SQC = 92
QRT = 128
QST_RAW = 168

def phase_T_with_tag(a):
    SK, SV, SSH, SH, SD = 8, 12, 16, 20, 24
    a('s_mul_i32 s28, s2, 205\ns_lshr_b32 s28, s28, 10')
    a('s_mul_i32 s29, s28, 5\ns_sub_u32 s29, s2, s29')
    a('v_bfe_u32 v1, v0, 4, 2\nv_lshrrev_b32 v2, 7, v0\nv_lshl_add_u32 v1, v2, 2, v1')
    a('v_and_b32 v2, 15, v0\nv_bfe_u32 v3, v0, 6, 1\nv_lshl_add_u32 v2, v3, 4, v2')
    a('s_mul_i32 s30, s28, 81920\ns_lshl_b32 s31, s29, 8\ns_add_u32 s30, s30, s31')
    a('v_mul_u32_u24 v3, 10240, v1\nv_lshl_add_u32 v3, v2, 3, v3\nv_add_u32 v3, s30, v3')
    a('v_add_u32 v4, 5120, v3\nv_subrev_u32 v5, 3840, v3')
    a('s_lshl_b32 s31, s29, 10\nv_lshlrev_b32 v6, 5, v2\nv_add_u32 v6, s31, v6')
    KR, VR, WR = 10, 32, 48
    for r in range(3):
        a(f'buffer_load_dwordx2 v[{KR+2*r}:{KR+2*r+1}], v5, s[{SK}:{SK+3}], 0 offen offset:{1280*r}{POL["k"]}')
    for r in range(8):
        a(f'buffer_load_dwordx2 v[{KR+6+2*r}:{KR+7+2*r}], v{3+(r>>2)}, s[{SK}:{SK+3}], 0 offen offset:{1280*(r&3)}{POL["k"]}')
    a(f'buffer_load_dwordx4 v[{WR}:{WR+3}], v6, s[{SSH}:{SSH+3}], 0 offen')
    tw = a(f'buffer_load_dwordx4 v[{WR+4}:{WR+7}], v6, s[{SSH}:{SSH+3}], 0 offen offset:16')
    tv = []
    for r in range(8):
        tv.append(a(f'buffer_load_dwordx2 v[{VR+2*r}:{VR+2*r+1}], v{3+(r>>2)}, s[{SV}:{SV+3}], 0 offen offset:{1280*(r&3)}{POL["v"]}'))
    a('v_and_b32 v8, 7, v2\nv_xor_b32 v8, v8, v1\nv_lshlrev_b32 v8, 4, v8\nv_lshl_add_u32 v8, v2, 9, v8')
    a('v_lshrrev_b32 v9, 5, v0\nv_and_b32 v7, 7, v0\nv_xor_b32 v9, v9, v7\nv_lshlrev_b32 v9, 4, v9\nv_lshrrev_b32 v148, 3, v0\nv_lshl_add_u32 v9, v148, 7, v9')
    a('s_lshl_b32 s30, s29, 19\ns_lshl_b32 s31, s28, 7\ns_add_u32 s30, s30, s31')
    a('v_lshlrev_b32 v7, 4, v7\nv_lshl_add_u32 v7, v148, 12, v7\nv_add_u32 v7, s30, v7')
    for c in range(4): a(f's_mov_b32 s{36+c}, {UT + c*131072}')
    a('s_mov_b32 s40, 0xffff0000')
    KF, WF, U = 56, 100, 116
    a.st('T_issued')
    a.wait_vm(tw)
    if 'kgate' in EXP:
        a('s_waitcnt lgkmcnt(0)')
        tag_from_epoch(a)
        a(f's_lshl_b32 s41, s2, 7\ns_add_u32 s41, s41, {FK}')
        a.flag_store('s41', 'v150', 'v151')
    a.st('T_kret')
    a(f's_and_b32 {SDQ}, s2, 7\ns_mul_i32 {SDQ}, {SDQ}, 20\ns_lshr_b32 s32, s2, 3\ns_add_u32 {SDQ}, {SDQ}, s32')
    a(f's_lshl_b32 s32, {SDQ}, 2\ns_add_u32 s32, s32, s{SW}')
    a('s_lshl_b32 s33, s32, 12')
    a(f's_add_u32 s{SH}, s{SH}, s33\ns_addc_u32 s{SH+1}, s{SH+1}, 0\ns_mov_b32 s{SH+2}, 4096')
    a('v_and_b32 v160, 63, v0\nv_lshlrev_b32 v161, 4, v160')
    a('v_subrev_u32 v162, 32, v161\nv_add_u32 v163, 16, v162\nv_add_u32 v164, 0x1000, v162\nv_add_u32 v165, 0x1000, v163')
    HR = HRAW
    for i in range(4):
        if i == 0:
            a(f'buffer_load_dwordx4 v[{HR}:{HR+3}], v162, s[{SH}:{SH+3}], 0 offen{POL["h"]}')
            a(f'buffer_load_dwordx2 v[{HR+4}:{HR+5}], v163, s[{SH}:{SH+3}], 0 offen{POL["h"]}')
        else:
            a(f'buffer_load_dwordx4 v[{HR+6*i}:{HR+6*i+3}], v161, s[{SH}:{SH+3}], 0 offen offset:{1024*i-32}{POL["h"]}')
            a(f'buffer_load_dwordx2 v[{HR+6*i+4}:{HR+6*i+5}], v161, s[{SH}:{SH+3}], 0 offen offset:{1024*i-16}{POL["h"]}')
    a(f'buffer_load_dwordx4 v[{HR+24}:{HR+27}], v164, s[{SH}:{SH+3}], 0 offen{POL["h"]}')
    th = a(f'buffer_load_dwordx2 v[{HR+28}:{HR+29}], v165, s[{SH}:{SH+3}], 0 offen{POL["h"]}')
    a('s_lshl_b32 s34, s32, 1\nv_mov_b32 v166, s34')
    tD = a(f'buffer_load_ushort v153, v166, s[{SD}:{SD+3}], 0 offen')
    for r in range(11):
        for p in range(2):
            a(f'v_lshlrev_b32 v{KF+4*r+2*p}, 16, v{KR+2*r+p}\nv_and_b32 v{KF+4*r+2*p+1}, s40, v{KR+2*r+p}')
    for c in range(4):
        for h in range(2):
            a(f'v_lshlrev_b32 v{WF+4*(2*h)+c}, 16, v{WR+2*c+h}\nv_and_b32 v{WF+4*(2*h+1)+c}, s40, v{WR+2*c+h}')
    for t in range(8):
        for p in range(2):
            d = U+4*t+2*p
            for j in range(4):
                k = KF+4*(t+3-j)+2*p; w = WF+4*j+2*p
                if j == 0: a(f'v_pk_mul_f32 v[{d}:{d+1}], v[{k}:{k+1}], v[{w}:{w+1}]')
                else: a(f'v_pk_fma_f32 v[{d}:{d+1}], v[{k}:{k+1}], v[{w}:{w+1}], v[{d}:{d+1}]')
    for t in range(8):
        a.wait_vm(tv[t])
        for p in range(2):
            x = KF+4*t+2*p
            a(f'v_lshlrev_b32 v{x}, 16, v{VR+2*t+p}\nv_and_b32 v{x+1}, s40, v{VR+2*t+p}')
            d = U+4*t+2*p
            a(f'v_pk_mul_f32 v[{d}:{d+1}], v[{d}:{d+1}], v[{x}:{x+1}]')
    O = 12
    for c in range(4):
        for q in range(4):
            a(f'v_cvt_pk_bf16_f32 v{O+4*c+q}, v{U+4*(7-2*q)+c}, v{U+4*(6-2*q)+c}')
        a(f'ds_write_b128 v8, v[{O+4*c}:{O+4*c+3}] offset:{128*c}')
    a('s_waitcnt lgkmcnt(0)\ns_barrier')
    tr = [a(f'ds_read_b128 v[{O+4*c}:{O+4*c+3}], v9 offset:{4096*c}') for c in range(4)]
    for c in range(4):
        a.wait_lg(tr[c])
        tst = a(f'buffer_store_dwordx4 v[{O+4*c}:{O+4*c+3}], v7, {WS}, s{36+c} offen sc1')
    a.st('T_stored')
    for r in range(8):
        a(f'buffer_load_dwordx2 v[{QRT+2*r}:{QRT+2*r+1}], v{3+(r>>2)}, s[{SQC}:{SQC+3}], 0 offen offset:{1280*(r&3)}{POL["q"]}')
    a(f's_lshl_b32 s98, s2, 2\ns_add_u32 s98, s98, s{SW}')
    a(f's_cmp_lt_u32 s2, 128\ns_cselect_b32 s99, 0, {OOB}\ns_mul_i32 s97, s98, 5120')
    a('v_bfe_u32 v150, v0, 4, 2\nv_mul_u32_u24 v150, 1280, v150\nv_and_b32 v151, 15, v0\nv_lshl_add_u32 v150, v151, 4, v150\nv_or_b32 v150, s99, v150')
    for i in range(5):
        tq = a(f'buffer_load_dwordx4 v[{QST_RAW+4*i}:{QST_RAW+4*i+3}], v150, s[{SQC}:{SQC+3}], s97 offen offset:{256*i}{POL["s"]}')
    a(f's_lshl_b32 s41, s29, 7\ns_add_u32 s41, s41, s28\ns_lshl_b32 s41, s41, 2\ns_add_u32 s41, s41, {FT}')
    return dict(th=th, tD=tD, tst=tst, tq=tq)

def q_retile(a, tk):
    a(f's_lshl_b32 s97, s{SW}, 12')
    a('v_lshlrev_b32 v24, 2, v16\nv_lshl_add_u32 v25, v15, 8, s97')
    a.wait_vm(tk['tq'])
    for j in range(4):
        a(f'v_add_u32 v27, {j}, v24\nv_xor_b32 v27, v27, v15\nv_lshl_add_u32 v27, v27, 4, v25')
        a(f'ds_write_b128 v27, v[{QRT+4*j}:{QRT+4*j+3}]')
    S0 = 188
    for i in range(5):
        for e in range(4):
            r = QST_RAW + 4*i + e
            h = e & 1
            first = (i == 0 and e < 2)
            a(f'v_dot2_f32_bf16 v{S0+2*h}, v{r}, s39, {"0" if first else f"v{S0+2*h}"}')
            a(f'v_dot2_f32_bf16 v{S0+2*h+1}, v{r}, v{r}, {"0" if first else f"v{S0+2*h+1}"}')
    a('s_waitcnt lgkmcnt(0)')
    for i in range(4):
        a(f'v_add_u32 v27, {4*i}, v16\nv_xor_b32 v26, v27, v15\nv_lshlrev_b32 v26, 4, v26\nv_lshl_add_u32 v26, v27, 8, v26\nv_add_u32 v26, s97, v26')
        tr = a(f'ds_read_b128 v[{QRT+4*i}:{QRT+4*i+3}], v26')
    a(f'v_add_f32 v{S0}, v{S0}, v{S0+2}\nv_add_f32 v{S0+1}, v{S0+1}, v{S0+3}')
    for rot in (8, 4, 2, 1):
        for e in range(2): a(f'v_add_f32_dpp v{S0+e}, v{S0+e}, v{S0+e} row_ror:{rot} row_mask:0xf bank_mask:0xf')
    a(f's_lshr_b32 s97, s{SW}, 1\ns_lshl_b32 s99, s28, 1\ns_add_u32 s97, s97, s99\ns_mul_i32 s97, s97, 40960')
    a(f's_and_b32 s99, s{SW}, 1\ns_lshl_b32 s99, s99, 12\ns_add_u32 s97, s97, s99\ns_lshl_b32 s99, s29, 13\ns_add_u32 s97, s97, s99\ns_add_u32 s97, s97, {QG}')
    a('s_mov_b32 s33, 0x3acccccd\ns_mov_b32 s34, 0x3727c5ac')
    m, q_ = S0, S0+1
    a(f'v_mul_f32 v{m}, s33, v{m}\nv_mul_f32 v{q_}, s33, v{q_}\nv_fma_f32 v{q_}, -v{m}, v{m}, v{q_}\nv_max_f32 v{q_}, 0, v{q_}\nv_add_f32 v{q_}, s34, v{q_}\nv_rsq_f32 v{q_}, v{q_}')
    a.wait_lg(tr)
    for i in range(4):
        a(f'buffer_store_dwordx4 v[{QRT+4*i}:{QRT+4*i+3}], v3, {WS}, s97 offen offset:{1024*i} sc1')
    a(f'v_mul_f32 v{m}, v{m}, v{q_}\nv_sub_f32 v{m}, 0, v{m}')
    a(f's_lshl_b32 s97, s98, 5\ns_add_u32 s97, s97, {QS}')
    a(f's_cmp_lt_u32 s2, 128\ns_cselect_b32 s99, 0, {OOB}\nv_lshlrev_b32 v26, 3, v16\nv_or_b32 v26, s99, v26')
    a('s_mov_b32 exec_lo, 0x00010001\ns_mov_b32 exec_hi, 0x00010001')
    t = a(f'buffer_store_dwordx2 v[{S0}:{S0+1}], v26, {WS}, s97 offen sc1')
    a('s_mov_b64 exec, -1')
    return t

def conv_pre(a, tk):
    HR = HRAW
    a('v_and_b32 v2, 63, v0\nv_lshlrev_b32 v3, 4, v2')
    a(f's_mul_i32 s35, s{SW}, {WLDS}\ns_add_u32 s35, s35, {CONV_BASE}')
    a('v_add_u32 v14, s35, v3')
    a('v_and_b32 v15, 15, v2\nv_lshrrev_b32 v16, 4, v2')
    a('v_add_u32 v17, 1, v15\nv_and_b32 v18, 3, v17\nv_lshrrev_b32 v17, 2, v17')
    a(f'v_mul_u32_u24 v18, {CS}, v18\nv_lshl_add_u32 v18, v17, 3, v18\nv_lshl_add_u32 v18, v16, 4, v18\nv_add_u32 v18, s35, v18')
    a(f'v_lshlrev_b32 v19, 5, v15\nv_lshlrev_b32 v20, 4, v16\nv_sub_u32 v19, v19, v20\nv_add_u32 v19, s35, v19\nv_add_u32 v19, {4*CS+528}, v19')
    a('v_mov_b32 v28, 0\nv_mov_b32 v29, 0\nv_mov_b32 v30, 0\nv_mov_b32 v31, 0')
    a('s_mov_b64 exec, 0xffffffff')
    a(f'ds_write_b128 v14, v[28:31] offset:{4*CS}')
    a('s_mov_b64 exec, -1')
    T0 = 96
    def hround(i):
        h = HR+6*i
        if i == 4: a('s_mov_b64 exec, 3')
        off = 1024*i
        a(f'ds_write_b128 v14, v[{h}:{h+3}] offset:{off}')
        for q in range(4): a(f'v_alignbit_b32 v{T0+q}, v{h+q+1}, v{h+q}, 16')
        a(f'ds_write_b128 v14, v[{T0}:{T0+3}] offset:{CS+off}')
        a(f'v_mov_b32 v{T0+4}, v{h+1}\nv_mov_b32 v{T0+5}, v{h+2}\nv_mov_b32 v{T0+6}, v{h+3}\nv_mov_b32 v{T0+7}, v{h+4}')
        a(f'ds_write_b128 v14, v[{T0+4}:{T0+7}] offset:{2*CS+off}')
        for q in range(4): a(f'v_alignbit_b32 v{T0+8+q}, v{h+q+2}, v{h+q+1}, 16')
        a(f'ds_write_b128 v14, v[{T0+8}:{T0+11}] offset:{3*CS+off}')
        if i == 4: a('s_mov_b64 exec, -1')
    a.wait_vm(tk['tst'])
    a('s_waitcnt lgkmcnt(0)')
    if 'kgate' not in EXP: tag_from_epoch(a)
    a('s_barrier')
    a.flag_store('s41', 'v4', 'v5', rep=4, stride=128)
    a.st('C_tflag')
    a.wait_vm(tk['tD'])
    a.st('C_hret')
    a(f's_lshr_b32 s42, {SDQ}, 5\ns_lshl_b32 s42, s42, 2\ns_and_b32 s43, s2, 3\ns_add_u32 s42, s42, s43\ns_lshl_b32 s42, s42, 7\ns_add_u32 s42, s42, {FT}')
    a('v_and_b32 v4, 31, v2\nv_lshlrev_b32 v4, 2, v4')
    tk['tp'] = a.poll1_issue(1, 'v4', 's42', 5)
    for i in range(5): hround(i)
    AD = 28
    a('v_lshl_add_u32 v21, v16, 3, v15\nv_sub_u32 v21, 15, v21')
    a('v_and_b32 v22, 1, v21\nv_lshlrev_b32 v22, 4, v22\nv_lshlrev_b32 v22, v22, v153\nv_ashrrev_i32 v21, 1, v21')
    a('s_waitcnt lgkmcnt(0)')
    for wd in range(4):
        a(f'v_cmp_eq_u32 vcc, {wd}, v21\nv_cndmask_b32 v{AD+wd}, 0, v22, vcc')
    a.st('C_hcopy')

def conv_main(a, tk):
    a.poll1_check(tk['tp'], 1, 'v4', 's42', 5, alt=(5, 6, 7))
    a.st('C_tpoll')
    a(f's_add_u32 s43, s33, {UT}\ns_add_u32 s44, s35, {4*CS+512}')
    a('s_mov_b32 m0, s44')
    for i in range(4):
        tu = a(f'buffer_load_dwordx4 v3, {WS}, s43 offen offset:{1024*i} sc1 lds')
    a('s_mov_b32 s39, 0x3f803f80')
    tqs = q_retile(a, tk)
    a.wait_vm(tu)
    a.st('C_uret')
    a('v_min_u32 v7, 23, v2\nv_lshlrev_b32 v7, 4, v7\nv_min_u32 v6, 39, v2\nv_lshlrev_b32 v6, 4, v6')
    a(f's_and_b32 s45, s2, 15\ns_lshl_b32 s52, s45, 9\ns_add_u32 s52, s52, {FW}\ns_lshl_b32 s45, s45, 10\ns_add_u32 s45, s45, {FQ}')
    tfw = []
    AD = 28
    A = [64, 128]; B = [96, 160]; ACC = 32
    def loads(buf):
        L = []
        for x in range(8):
            L.append(f'ds_read_b128 v[{B[buf]+4*x}:{B[buf]+4*x+3}], v19 offset:{512*x}')
            L.append(f'ds_read_b64 v[{A[buf]+4*x}:{A[buf]+4*x+1}], v18 offset:{512*x}')
            L.append(f'ds_read_b64 v[{A[buf]+4*x+2}:{A[buf]+4*x+3}], v18 offset:{512*x+8}')
        return L
    for s in loads(0): a(s)
    a('v_add_u32 v18, 64, v18\nv_subrev_u32 v19, 64, v19')
    a('s_waitcnt lgkmcnt(0)')
    for t in range(8):
        a(f'v_mfma_f32_16x16x32_bf16 v[{ACC+4*t}:{ACC+4*t+3}], v[{AD}:{AD+3}], v[{B[0]+4*t}:{B[0]+4*t+3}], 0')
    QR = 192; QLO = 208; QST = 224; LNQ = 96
    extra = {}
    q_tok = []; s_tok = []
    def fq_publish():
        a.wait_vm(tqs)
        a('s_barrier')
        a(f's_lshl_b32 s53, s2, 2\ns_add_u32 s53, s53, {FQ}')
        a.flag_store('s53', 'v26', 'v27', rep=16, stride=1024)
        a.st('C_fqpub')
    def fw_issue():
        a.st('C_b3')
        tfw.append(a.poll1_issue(4, 'v6', 's45', 20))
        tfw.append(a.poll1_issue(4, 'v7', 's52', 8))
    def fw_check():
        a.st('C_b4')
        a.poll1_check(tfw[1], 4, 'v6', 's45', 20, barrier=False)
        a.st('C_fq')
        a.poll1_check(tfw[1], 4, 'v7', 's52', 8)
        a.st('C_fw')
    def ql_addr():
        a('v_mul_u32_u24 v24, 40960, v16\nv_lshl_add_u32 v24, v15, 4, v24')
        a(f's_mul_i32 s48, s{SW}, {16*40960}\ns_lshl_b32 s49, {SDQ}, 8\ns_add_u32 s48, s48, s49')
        a(f's_add_u32 s46, s48, {QG}\ns_add_u32 s49, s48, {YG}\ns_add_u32 s48, s48, {X1}')
        a(f's_lshl_b32 s47, s{SW}, 12\ns_add_u32 s47, s47, {QS}')
    def q_load(k):
        def f():
            if k > 0: a(f's_add_u32 s46, s46, {4*40960}')
            q_tok.append(a(f'buffer_load_dwordx4 v[{QR+4*k}:{QR+4*k+3}], v24, {WS}, s46 offen sc1'))
            s_tok.append(a(f'buffer_load_dwordx4 v[{QST+4*k}:{QST+4*k+3}], v3, {WS}, s47 offen offset:{1024*k} sc1'))
        return f
    extra[FQBLK] = [fq_publish]
    extra.setdefault(2, []).append(ql_addr)
    extra.setdefault(PBLK, []).append(fw_issue)
    unp = []
    for k in range(4):
        unp.append(lambda k=k: a.wait_vm(s_tok[k]))
        for i in range(4*k, 4*k+4):
            unp.append(f'v_lshlrev_b32 v{QLO+i}, 16, v{QR+i}')
            unp.append(f'v_and_b32 v{QR+i}, s40, v{QR+i}')
        for tok in range(2):
            for c in range(4):
                iq = 4*k + 2*tok + (c >> 1)
                rq = (QLO+iq) if (c & 1) == 0 else (QR+iq)
                unp.append(f'v_fma_f32 v{LNQ+8*k+4*tok+c}, v{rq}, v{QST+4*k+2*tok+1}, v{QST+4*k+2*tok}')
    extra[7] = unp
    import g2g
    b0 = PBLK + 1
    extra[b0] = [fw_check] + [q_load(k) for k in range(4)]
    for i in range(5):
        L = [f's_add_u32 s81, s{SW}, {4*i}', 's_min_u32 s81, s81, 18'] + g2g.quad_dma_dyn('s81', 'v3')
        extra.setdefault(min(b0 + (i+1)//2, 6), []).extend(L)
    cs_tok = []
    extra.setdefault(6, []).extend(g2g.cs_issue_list('v3'))
    extra[6].append(lambda: cs_tok.append(a.vm_issued))
    for blk in range(8):
        if blk == 7: a.st('C_b7')
        buf = blk & 1
        L = loads(buf ^ 1) if blk < 7 else []
        X = list(extra.get(blk, []))
        n = 0
        for q in range(8):
            for dl in range(8 - q):
                t = q + dl
                a(f'v_mfma_f32_16x16x32_bf16 v[{ACC+4*t}:{ACC+4*t+3}], v[{A[buf]+4*q}:{A[buf]+4*q+3}], v[{B[buf]+4*dl}:{B[buf]+4*dl+3}], v[{ACC+4*t}:{ACC+4*t+3}]')
                if n < len(L): a(L[n])
                if X and (n >= len(L) or n % 2 == 0 or len(X) > 36 - n):
                    x = X.pop(0)
                    x() if callable(x) else a(x)
                n += 1
        for x in X: x() if callable(x) else a(x)
        if blk < 7:
            a('v_add_u32 v18, 64, v18\nv_subrev_u32 v19, 64, v19')
            a('s_waitcnt lgkmcnt(0)')
    a.st('C_loop')
    a('v_lshlrev_b32 v21, 6, v15\nv_lshl_add_u32 v21, v16, 4, v21\nv_add_u32 v21, s35, v21')
    for t in range(8):
        r = ACC+4*t
        a(f'ds_write_b128 v21, v[{r}:{r+3}] offset:{1024*t}')
    a(f's_lshl_b32 s47, s{SW}, 11\ns_add_u32 s47, s47, {CONV_BASE}\nv_lshl_add_u32 v22, v2, 3, s47')
    a(f'v_add_u32 v23, {2*WLDS}, v22')
    a('s_waitcnt lgkmcnt(0)\ns_barrier')
    YV = 64
    tk = []
    for k in range(4):
        for c in range(4):
            base = 'v22' if c < 2 else 'v23'
            t = a(f'ds_read_b64 v[{YV+8*k+2*c}:{YV+8*k+2*c+1}], {base} offset:{(c&1)*WLDS + 512*k}')
        tk.append(t)
    O = 128
    for k in range(4):
        a.wait_lg(tk[k])
        for tok in range(2):
            for c in range(4):
                iq = 4*k + 2*tok + (c >> 1)
                rq = (QLO+iq) if (c & 1) == 0 else (QR+iq)
                a(f'v_fma_f32 v{rq}, v{LNQ+8*k+4*tok+c}, v{YV+8*k+2*c+tok}, v{rq}')
        o = O + 4*k
        for tok in range(2):
            for h in range(2):
                iq = 4*k + 2*tok + h
                a(f'v_cvt_pk_bf16_f32 v{o+2*tok+h}, v{QLO+iq}, v{QR+iq}')
        a(f'buffer_store_dwordx4 v[{o}:{o+3}], v24, {WS}, s48 offen sc1')
        if k < 3: a(f's_add_u32 s48, s48, {4*40960}')
    a.st('C_x1st')
    OY = 48
    for k in range(4):
        o = OY + 4*k
        for tok in range(2):
            for h in range(2):
                a(f'v_cvt_pk_bf16_f32 v{o+2*tok+h}, v{YV+8*k+4*h+tok}, v{YV+8*k+4*h+2+tok}')
    if not STAGE1:
        a.wait_vm(cs_tok[0])
        g2g.cs_finish(a)
    a('s_waitcnt vmcnt(0)\ns_barrier')
    a(f's_lshl_b32 s50, s2, 2\ns_add_u32 s51, s50, {FY}\ns_add_u32 s50, s50, {FX1}')
    a.flag_store('s50', 'v4', 'v5', rep=16, stride=1024)
    a.st('C_x1flag')
    if STAGE1:
        for k in range(4):
            o = OY + 4*k
            a(f'buffer_store_dwordx4 v[{o}:{o+3}], v24, {WS}, s49 offen sc1')
            if k < 3: a(f's_add_u32 s49, s49, {4*40960}')
        return
    a(f'v_mov_b32 v{g2g.YOFF}, v24\ns_mov_b32 {g2g.sYB}, s49\ns_mov_b32 {g2g.sROLE}, 1')
    g2g.l16(a)
    lab = a.newlab('nd')
    a(f's_cmp_eq_u32 s{SW}, 1\ns_cbranch_scc1 {lab}')
    a(f's_min_u32 s82, s{SW}, 1\ns_sub_u32 s82, s{SW}, s82\ns_add_u32 s82, s82, 19')
    sv = a.vm_issued
    for i in range(7):
        a('s_min_u32 s81, s82, 38')
        for x in g2g.quad_dma_dyn('s81', f'v{g2g.L16}'): a(x)
        a('s_add_u32 s82, s82, 3')
    a.vm_issued = sv
    a.label(lab)
    g2g.g1_consts(a)

def allred_rows(a, regs, tmp):
    for r in regs:
        a(f'v_mov_b32 {tmp}, {r}\nv_permlane16_swap_b32 {tmp}, {r}\nv_add_f32 {r}, {r}, {tmp}')
    for r in regs:
        a(f'v_mov_b32 {tmp}, {r}\nv_permlane32_swap_b32 {tmp}, {r}\nv_add_f32 {r}, {r}, {tmp}')

QR0 = 164
QS_LDS = 0x15000
PR, PO, PCS, PONE = 20, 116, 208, 204
SG, SU, SDN, SQ = 8, 12, 16, 20

QRAW = 164
def qs_issue(a):
    a('s_mul_i32 s29, s50, 10240')
    a('v_mul_u32_u24 v13, 2560, v4\nv_lshl_add_u32 v13, v3, 4, v13')
    tk = []
    for g in range(2):
        for i in range(5):
            r = QRAW + 20*g + 4*i
            tk.append(a(f'buffer_load_dwordx4 v[{r}:{r+3}], v13, s[{SQ}:{SQ+3}], s29 offen offset:{1280*g + 256*i}'))
    return tk

def qs_finish(a, tk):
    S0 = 208
    for i in range(5):
        for g in range(2): a.wait_vm(tk[5*g+i]) if i == 0 or g == 1 else None
        for e in range(4):
            for g in range(2):
                r = QRAW + 20*g + 4*i + e
                s_, q_ = S0+2*g, S0+1+2*g
                first = (i == 0 and e == 0)
                a(f'v_dot2_f32_bf16 v{s_}, v{r}, s38, {"0" if first else f"v{s_}"}')
                a(f'v_dot2_f32_bf16 v{q_}, v{r}, v{r}, {"0" if first else f"v{q_}"}')
    for rot in (8, 4, 2, 1):
        for e in range(4): a(f'v_add_f32_dpp v{S0+e}, v{S0+e}, v{S0+e} row_ror:{rot} row_mask:0xf bank_mask:0xf')
    a('s_mov_b32 s33, 0x3acccccd\ns_mov_b32 s34, 0x3727c5ac')
    for tok in range(2):
        m, q_ = S0+2*tok, S0+1+2*tok
        a(f'v_mul_f32 v{m}, s33, v{m}\nv_mul_f32 v{q_}, s33, v{q_}\nv_fma_f32 v{q_}, -v{m}, v{m}, v{q_}\nv_max_f32 v{q_}, 0, v{q_}\nv_add_f32 v{q_}, s34, v{q_}\nv_rsq_f32 v{q_}, v{q_}')
        a(f's_nop 0\nv_mul_f32 v{m}, v{m}, v{q_}\nv_sub_f32 v{m}, 0, v{m}')
    a(f's_lshl_b32 s31, s50, 6\ns_add_u32 s31, s31, {QS}\nv_lshlrev_b32 v16, 4, v4')
    a('s_mov_b32 exec_lo, 0x00010001\ns_mov_b32 exec_hi, 0x00010001')
    t = a(f'buffer_store_dwordx4 v[{S0}:{S0+3}], v16, {WS}, s31 offen sc1')
    a('s_mov_b64 exec, -1')
    return t

def p_perms(a, t, ob):
    r = PR+16*t; O = PO+16*ob
    for c in range(4):
        for p in range(4):
            sel = 's36' if (c & 1) == 0 else 's37'
            a(f'v_perm_b32 v{O+4*c+p}, v{r+2*(2*p+1)+(c>>1)}, v{r+2*(2*p)+(c>>1)}, {sel}')

def w1_issue(a, t, T, masked=False):
    if 'oldtask' in EXP:
        a(f's_mul_i32 s24, {T}, 3277\ns_lshr_b32 s24, s24, 16\ns_mul_i32 s26, s24, 20\ns_sub_u32 s26, {T}, s26')
    else:
        a(f's_mul_i32 s26, {T}, 1214\ns_lshr_b32 s26, s26, 16\ns_mul_i32 s24, s26, 54\ns_sub_u32 s24, {T}, s24')
    a(f's_cmp_ge_u32 s24, 27\ns_cselect_b32 s{SG}, s{SU}, s{SGS}\ns_cselect_b32 s{SG+1}, s{SU+1}, s{SGS+1}')
    a('s_cselect_b32 s29, 27, 0\ns_cselect_b32 s30, 512, 0\ns_sub_u32 s24, s24, s29')
    a(f's_mul_i32 s31, s26, {32*3456}\ns_lshl_b32 s32, s24, 7\ns_add_u32 s31, s31, s32')
    v0 = PMSK if masked else 5
    for e in range(8):
        tk = a(f'buffer_load_dwordx2 v[{PR+16*t+2*e}:{PR+16*t+2*e+1}], v{v0+(e>>1)}, s[{SG}:{SG+3}], s31 offen offset:{3456*(e&1)}{POL["w"]}')
    a(f's_mul_i32 s31, s24, {4*40960}\ns_lshl_b32 s32, s26, 11\ns_add_u32 s31, s31, s32\ns_add_u32 s31, s31, s30\ns_add_u32 s{41+t}, s31, {W1P}')
    a(f's_mul_i32 s31, s26, 13824\ns_lshl_b32 s32, s24, 9\ns_add_u32 s31, s31, s32\ns_lshr_b32 s30, s30, 3\ns_add_u32 s31, s31, s30\ns_add_u32 s{47+t}, s31, {CSP}')
    return tk

def w1_finish(a, t, tk, ob, masked=False):
    a.wait_vm(tk)
    p_perms(a, t, ob)
    O = PO+16*ob; C = PCS + 16*ob
    vd = PMSK+4 if masked else 9
    vc = PMSK+5 if masked else 19
    vd2 = PMSK+6 if masked else 10
    for c in range(4):
        a(f'v_mfma_f32_16x16x32_bf16 v[{C+4*c}:{C+4*c+3}], v[{O+4*c}:{O+4*c+3}], v[{PONE}:{PONE+3}], 0')
        a(f'buffer_store_dwordx4 v[{O+4*c}:{O+4*c+3}], v{vd if c < 2 else vd2}, {WS}, s{41+t} offen offset:{128*(c&1)+256*(c>>1)} sc1')
    a('s_mov_b32 exec_lo, 0x00010001\ns_mov_b32 exec_hi, 0x00010001')
    for c in range(4):
        a(f'buffer_store_dwordx4 v[{C+4*c}:{C+4*c+3}], v{vc}, {WS}, s{47+t} offen offset:{16*c} sc1')
    a('s_mov_b64 exec, -1')

def wd_addr(a, vl_quad, vl_grp, vsa, vsb, vd, vt):
    a(f'v_lshrrev_b32 v{vsa}, 1, v{vl_grp}\nv_lshlrev_b32 v{vsa}, 4, v{vsa}\nv_and_b32 v{vt}, 1, v{vl_grp}\nv_lshl_add_u32 v{vsa}, v{vt}, 2, v{vsa}')
    a(f'v_mul_u32_u24 v{vsa}, 1280, v{vsa}\nv_lshl_add_u32 v{vsa}, v{vl_quad}, 3, v{vsa}\nv_add_u32 v{vsb}, 10240, v{vsa}')
    a(f'v_and_b32 v{vd}, 3, v{vl_quad}\nv_lshlrev_b32 v{vd}, 4, v{vd}\nv_lshl_add_u32 v{vd}, v{vl_grp}, 8, v{vd}')
    a(f'v_lshrrev_b32 v{vt}, 2, v{vl_quad}\nv_mul_u32_u24 v{vt}, 55296, v{vt}\nv_add_u32 v{vd}, v{vt}, v{vd}')

def wd_issue(a, raw, T, sdst, srd, vsa, vsb, st=('s29', 's30', 's31', 's32')):
    x, y, z, u = st
    a(f's_min_u32 {x}, {T}, 539\ns_mul_i32 {y}, {x}, 6554\ns_lshr_b32 {y}, {y}, 16')
    a(f's_mul_i32 {z}, {y}, 10\ns_sub_u32 {x}, {x}, {z}')
    a(f's_mul_i32 {z}, {y}, 4682\ns_lshr_b32 {z}, {z}, 16\ns_mul_i32 {u}, {z}, 14\ns_sub_u32 {u}, {y}, {u}')
    a(f's_lshr_b32 s57, {u}, 1\ns_and_b32 s58, {u}, 1\ns_lshl_b32 s58, s58, 1')
    a(f's_sub_u32 s55, {u}, 8\ns_cmp_ge_u32 {u}, 8\ns_cselect_b32 s57, s55, s57\ns_cselect_b32 s58, 4, s58')
    a(f's_sub_u32 s55, {u}, 12\ns_lshl_b32 s55, s55, 1\ns_cmp_ge_u32 {u}, 12\ns_cselect_b32 s57, s55, s57\ns_cselect_b32 s58, 6, s58\ns_cselect_b32 s55, -1, 0')
    a(f'v_and_b32 v{vsa+WDA_T}, s55, v{vsa+WDA_D}\nv_add_u32 v{vsa+WDA_T+1}, v{vsb}, v{vsa+WDA_T}\nv_add_u32 v{vsa+WDA_T}, v{vsa}, v{vsa+WDA_T}')
    a(f's_lshl_b32 {z}, {z}, 2\ns_add_u32 s57, s57, {z}')
    a(f's_mul_i32 {z}, s57, 7\ns_mul_i32 {u}, s57, 6\ns_add_u32 {u}, {u}, 12\ns_cmp_lt_u32 s57, 12\ns_cselect_b32 {z}, {z}, {u}\ns_add_u32 {z}, {z}, s58')
    a(f's_mul_i32 {z}, {z}, {16*1280}\ns_lshl_b32 {u}, {x}, 7\ns_add_u32 {z}, {z}, {u}')
    for e in range(8):
        tk = a(f'buffer_load_dwordx2 v[{raw+2*e}:{raw+2*e+1}], v{vsa+WDA_T+(e>>2)}, s[{srd}:{srd+3}], {z} offen offset:{1280*(e&3)}{POL["d"]}')
    a(f's_mul_i32 {z}, {x}, {4*55296}\ns_lshl_b32 {u}, {y}, 10\ns_add_u32 {z}, {z}, {u}\ns_add_u32 {sdst}, {z}, {WDP}')
    return tk

def wd_finish(a, raw, O, tk, sdst, vd, sel0, sel1):
    a.wait_vm(tk)
    for c in range(4):
        for p in range(4):
            sel = sel0 if (c & 1) == 0 else sel1
            a(f'v_perm_b32 v{O+4*c+p}, v{raw+2*(2*p+1)+(c>>1)}, v{raw+2*(2*p)+(c>>1)}, {sel}')
    for c in range(4):
        t = a(f'buffer_store_dwordx4 v[{O+4*c}:{O+4*c+3}], v{vd}, {WS}, {sdst} offen offset:{64*c} sc1')
    return t

SGS = 52
WDA = 240
WDA_D, WDA_T = 4, 5
def p_flag(a, base, stride, sreg='s56'):
    a(f's_lshl_b32 {sreg}, s28, 2\ns_add_u32 {sreg}, {sreg}, {base}')
    a.flag_store(sreg, 'v16', 'v17', rep=16, stride=stride)

def phase_P(a):
    global tag_from_epoch
    if 'kgate' in EXP:
        a('s_waitcnt lgkmcnt(0)')
        tag_from_epoch(a)
        tag_from_epoch = lambda a: None
        a(f'v_mov_b32 v4, 0\ns_sub_u32 s42, s2, 96\ns_lshl_b32 s42, s42, 7\ns_add_u32 s42, s42, {FK}')
        a.poll_w0(1, 'v4', 's42', 5)
        a.st('P_gate')
    if 'pwait' in EXP:
        a('s_waitcnt lgkmcnt(0)')
        tag_from_epoch(a)
        tag_from_epoch = lambda a: None
        a(f'v_and_b32 v4, 31, v0\nv_lshlrev_b32 v4, 2, v4\ns_mov_b32 s42, {FT}')
        a.poll_w0(1, 'v4', 's42', 5)
    a(f's_mov_b32 s{SGS}, s{SG}\ns_mov_b32 s{SGS+1}, s{SG+1}')
    a('s_sub_u32 s28, s2, 160')
    a('v_and_b32 v2, 63, v0\nv_and_b32 v3, 15, v2\nv_lshrrev_b32 v4, 4, v2')
    a('s_mov_b32 s36, 0x05040100\ns_mov_b32 s37, 0x07060302\ns_mov_b32 s38, 0x3f803f80')
    a(f's_lshl_b32 s50, s28, 2\ns_add_u32 s50, s50, s{SW}')
    a('s_mul_i32 s25, s50, 3')
    def w1_addr():
        a('v_mul_u32_u24 v5, 27648, v4\nv_lshl_add_u32 v5, v3, 3, v5')
        a('v_add_u32 v6, 6912, v5\nv_add_u32 v7, 13824, v5\nv_add_u32 v8, 20736, v5')
        a('v_and_b32 v12, 3, v3\nv_lshlrev_b32 v12, 4, v12\nv_and_b32 v19, 1, v4\nv_lshl_add_u32 v12, v19, 6, v12')
        a('v_lshrrev_b32 v19, 1, v4\nv_lshl_add_u32 v12, v19, 10, v12')
        a('v_lshrrev_b32 v19, 2, v3\nv_mul_u32_u24 v9, 40960, v19\nv_add_u32 v9, v9, v12\nv_xor_b32 v10, 64, v9')
        a('v_lshlrev_b32 v19, 7, v4')
        for i in range(4): a(f'v_mov_b32 v{PONE+i}, s38')
        a(f's_cmp_lt_u32 s25, 1080\ns_cselect_b32 s35, 0, {OOB}')
        for r in (5, 6, 7, 8, 9, 10, 19): a(f'v_or_b32 v{r}, s35, v{r}')
        wd_addr(a, 3, 4, WDA, WDA+1, WDA+2, WDA+3)
        a(f'v_lshrrev_b32 v{WDA+WDA_D}, 1, v4\nv_mul_u32_u24 v{WDA+WDA_D}, {6*16*1280}, v{WDA+WDA_D}')
    def w1_task(t):
        a(f's_add_u32 s33, s25, {t}\ns_min_u32 s33, s33, 1079')
        return w1_issue(a, t, 's33')
    def first_batch():
        if 'tagw' in EXP: a('s_waitcnt lgkmcnt(0)')
        tk = [w1_task(t) for t in range(NB1)]
        if NB1 > 0 and NB1 < 3: a.wait_vm(tk[0])
        a.st('P_b1')
        tk += [w1_task(t) for t in range(NB1, 3)]
        return tk
    WDS = ('s29', 's30', 's31', 's32')
    w1_addr()
    tA = first_batch()
    a.st('P_issued')
    for t in range(3): w1_finish(a, t, tA[t], t & 1)
    tw = a.vm_issued
    a.st('P_w1st')
    td = wd_issue(a, PR+48, 's50', 's44', SDN, WDA, WDA+1, st=WDS)
    a('s_add_u32 s54, s50, 384\ns_cmp_lt_u32 s50, 156\ns_cselect_b32 s51, 1, 0')
    a('s_waitcnt lgkmcnt(0)')
    tag_from_epoch(a)
    a.wait_vm(tw)
    a('s_barrier')
    p_flag(a, FW, 512)
    a.st('P_w1')
    g2g_guarded(a, 's51', lambda: wd_issue(a, PR+64, 's54', 's45', SDN, WDA, WDA+1, st=WDS))
    wd_finish(a, PR+48, PO, td, 's44', WDA+2, 's36', 's37')
    def second():
        a('s_waitcnt vmcnt(0)')
        wd_finish(a, PR+64, PO+16, None, 's45', WDA+2, 's36', 's37')
    g2g_guarded(a, 's51', second)
    a.label('L_pp_end')
    a('s_waitcnt vmcnt(0)\ns_barrier')
    a.reset_counts()
    p_flag(a, FWD, 512)
    a.st('P_done')
    if STAGE1: return
    import g2g
    a(f's_mov_b32 {g2g.sROLE}, 0')
    g2g.l16(a)
    a(f'v_lshrrev_b32 v88, 4, v{g2g.L16}\nv_min_u32 v88, 23, v88\nv_lshlrev_b32 v88, 4, v88')
    a(f's_and_b32 s45, s2, 15\ns_lshl_b32 s45, s45, 9\ns_add_u32 s45, s45, {FW}')
    a.poll_w0(4, 'v88', 's45', 84)
    a.st('P_fw')
    for i in range(10):
        a(f's_add_u32 s81, s{SW}, {4*i}\ns_min_u32 s81, s81, 38')
        for x in g2g.quad_dma_dyn('s81', f'v{g2g.L16}'): a(x)
    for x in g2g.cs_issue_list(f'v{g2g.L16}'): a(x)
    g2g.g1_consts(a)
    a('s_waitcnt vmcnt(0)')
    g2g.cs_finish(a)

def g2g_guarded(a, reg, fn):
    import g2g
    g2g.guarded(a, reg, fn)
```

```python
from g2base import *
import os
SH = '' if os.environ.get('PLAIN') else ' sc1'

sC, sS, sU0, sW1, sTB, sCG, sROLE = 's64', 's65', 's66', 's67', 's68', 's69', 's70'
sW4K = 's71'
sYB = 's73'
L16, WA, HOFF, NM, K1, IR2, CSR, CSA, YOFF = 224, 225, 228, 229, 230, 231, 232, 248, 249
XF = 64
WB = 232
NB, AHEAD = 6, 4
CS_LDS = 159744
RED = 98304
SOUT = 8

def role_setup(a):
    a('s_and_b32 s62, s2, 7\ns_lshr_b32 s63, s2, 3')
    a(f's_lshr_b32 {sC}, s62, 1\ns_lshl_b32 {sC}, {sC}, 2\ns_lshr_b32 {sS}, s63, 3\ns_add_u32 {sC}, {sC}, {sS}')
    a(f's_lshr_b32 {sTB}, s62, 1\ns_lshl_b32 {sTB}, {sTB}, 3\ns_add_u32 {sTB}, {sTB}, {sS}')
    a(f's_and_b32 s62, s62, 1\ns_lshl_b32 {sCG}, s62, 2\ns_add_u32 {sTB}, {sTB}, {sCG}')
    a(f's_and_b32 {sCG}, s63, 7\ns_lshl_b32 {sS}, s62, 3\ns_add_u32 {sS}, {sS}, {sCG}')
    a(f's_mul_i32 {sU0}, {sS}, 7\ns_mul_i32 s62, {sS}, 6\ns_add_u32 s62, s62, 12\ns_cmp_lt_u32 {sS}, 12\ns_cselect_b32 {sU0}, {sU0}, s62')
    a(f's_mul_i32 {sW1}, {sU0}, 40960\ns_add_u32 {sW1}, {sW1}, {W1P}')
    a(f's_lshl_b32 {sW4K}, s{SW}, 12')

def l16(a):
    a(f'v_mbcnt_lo_u32_b32 v{L16}, -1, 0\nv_mbcnt_hi_u32_b32 v{L16}, -1, v{L16}\nv_lshlrev_b32 v{L16}, 4, v{L16}')

def quad_src(g):
    return (g % 3)*40960 + (g//3)*4096 if g < 30 else 122880 + (g-30)*4096

def quad_dma_dyn(sg, vl, t=('s74', 's75', 's76')):
    x, y, z = t
    L = [f's_mul_i32 {x}, {sg}, 21846', f's_lshr_b32 {x}, {x}, 16', f's_mul_i32 {y}, {x}, 3', f's_sub_u32 {y}, {sg}, {y}',
         f's_mul_i32 {y}, {y}, 40960', f's_lshl_b32 {x}, {x}, 12', f's_add_u32 {x}, {x}, {y}',
         f's_lshl_b32 {z}, {sg}, 12',
         f's_cmp_lt_u32 {sg}, 30', f's_cselect_b32 {x}, {x}, {z}', f's_add_u32 {x}, {x}, {sW1}', f's_mov_b32 m0, {z}']
    for i in range(4):
        L.append(f'buffer_load_dwordx4 {vl}, {WS}, {x} offen offset:{1024*i}{SH} lds')
    return L

CSV = 240
CSA0 = 232
def cs_issue_list(vl16):
    vt = CSV
    L = []
    def a(t): L.extend(x for x in t.split('\n') if x)
    a(f'v_lshrrev_b32 v{vt}, 4, {vl16}')
    a(f'v_bfe_u32 v{vt+1}, v{vt}, 3, 1\ns_lshl_b32 s74, s{SW}, 1\nv_add_u32 v{vt+1}, s74, v{vt+1}\nv_min_u32 v{vt+1}, 6, v{vt+1}')
    a(f'v_and_b32 v{vt+2}, 7, v{vt}\nv_lshlrev_b32 v{vt+2}, 4, v{vt+2}')
    a(f'v_lshl_add_u32 v{vt+3}, v{vt+1}, 7, v{vt+2}')
    a(f'v_lshrrev_b32 v{vt}, 4, v{vt}\nv_mul_u32_u24 v{vt}, {5*13824}, v{vt}\nv_add_u32 v{vt}, v{vt}, v{vt+3}')
    a(f's_lshl_b32 s74, {sU0}, 7\ns_add_u32 s74, s74, {CSP}')
    for i in range(5):
        a(f'buffer_load_dwordx4 a[{CSA0+4*i}:{CSA0+4*i+3}], v{vt}, {WS}, s74 offen sc1')
        if i < 4: a('s_add_u32 s74, s74, 13824')
    a(f'v_bfe_u32 v{vt+3}, v{vt+2}, 6, 1\nv_lshlrev_b32 v{vt+3}, 4, v{vt+3}\nv_lshl_add_u32 v{vt+3}, v{vt+1}, 7, v{vt+3}')
    a(f'v_bfe_u32 v{vt+2}, v{vt+2}, 4, 2\nv_lshl_add_u32 v{vt+3}, v{vt+2}, 2, v{vt+3}\nv_add_u32 v{vt+3}, {CS_LDS}, v{vt+3}')
    return L

def cs_finish(a):
    vt = CSV
    for i in range(20): a(f'v_accvgpr_read_b32 v{64+i}, a{CSA0+i}')
    for i in range(1, 5):
        for e in range(4): a(f'v_add_f32 v{64+e}, v{64+e}, v{64+4*i+e}')
    for r in range(64, 68):
        a(f'v_mov_b32 v{vt}, v{r}\nv_permlane16_swap_b32 v{vt}, v{r}\nv_add_f32 v{r}, v{r}, v{vt}')
    for r in range(64, 68):
        a(f'v_mov_b32 v{vt}, v{r}\nv_permlane32_swap_b32 v{vt}, v{r}\nv_add_f32 v{r}, v{r}, v{vt}')
    for q3 in range(4):
        a(f'ds_write_b32 v{vt+3}, v{64+q3} offset:{(q3&1)*64 + (q3>>1)*32}')

def g1_consts(a):
    t = 250
    a(f'v_lshrrev_b32 v{t}, 4, v{L16}')
    a(f'v_bfe_u32 v{t+1}, v{t}, 2, 1\nv_bfe_u32 v{t+2}, v{t}, 4, 1\nv_lshl_add_u32 v{t+1}, v{t+2}, 1, v{t+1}')
    a(f'v_bfe_u32 v{t+2}, v{t}, 1, 1\nv_lshrrev_b32 v{t+3}, 5, v{t}\nv_xor_b32 v{t+3}, v{t+3}, v{t+2}\nv_lshl_add_u32 v{t+1}, v{t+3}, 2, v{t+1}')
    a(f'v_lshl_add_u32 v{t+1}, v{t+2}, 4, v{t+1}\nv_and_b32 v{t+2}, 1, v{t}\nv_lshl_add_u32 v{t+1}, v{t+2}, 3, v{t+1}')
    a(f'v_bfe_u32 v{t+2}, v{t}, 3, 1\nv_lshl_add_u32 v{t+1}, v{t+2}, 5, v{t+1}')
    a(f'v_lshlrev_b32 v{WA}, 4, v{t+1}\nv_add_u32 v{WA+1}, 0x10000, v{WA}\nv_add_u32 v{WA+2}, 0x20000, v{WA}')
    a(f'v_and_b32 v{t+1}, 7, v{t}\nv_bfe_u32 v{t+2}, v{t}, 4, 1\nv_lshl_add_u32 v{t+1}, v{t+1}, 1, v{t+2}\nv_lshlrev_b32 v{t+1}, 4, v{t+1}')
    a(f'v_bfe_u32 v{t+2}, v{t}, 3, 1\nv_mul_u32_u24 v{t+2}, 55296, v{t+2}\nv_add_u32 v{t+1}, v{t+1}, v{t+2}')
    a(f'v_lshrrev_b32 v{t+2}, 5, v{t}\nv_lshl_add_u32 v{HOFF}, v{t+2}, 8, v{t+1}')
    a(f'v_lshlrev_b32 v{CSA}, 6, v{t+2}\nv_add_u32 v{CSA}, {CS_LDS}, v{CSA}')

def g1_seq():
    seq = []
    for ks in range(40):
        for u in range(3): seq.append((u, ks, 3*(ks >> 2) + u))
    for u in range(3, 7):
        for ks in range(40): seq.append((u, ks, 30 + 10*(u-3) + (ks >> 2)))
    return seq

def lds_addr(off):
    return (f'v{WA + (off >> 16)}', off & 0xffff)

def guarded(a, cond_reg, fn):
    lab = a.newlab('gd')
    a(f's_cmp_eq_u32 {cond_reg}, 0\ns_cbranch_scc1 {lab}')
    sv = a.vm_issued
    fn()
    a.vm_issued = sv
    a.label(lab)

def poll2(a, toks, regs, issue, cmp, alt=None, final=None):
    lspin = a.newlab('spin'); lback = a.newlab('back')
    a.wait_vm(toks)
    cmp(None)
    a(f's_cbranch_vccnz {lspin}')
    a.label(lback)
    def tail():
        a.label(lspin)
        a(f's_mov_b32 s57, {POLL_LIMIT}')
        lp = a.newlab('lp')
        if alt and PIPE:
            n0 = a.vm_issued; issue(alt[0]); n = a.vm_issued - n0
            for r in alt[1:]:
                a(f's_sleep {PIPE}'); issue(r)
            a.label(lp)
            oks = []
            for r in alt:
                a(f's_waitcnt vmcnt({n*(len(alt) - 1)})')
                cmp(r)
                lok = a.newlab('ok'); oks.append((lok, r))
                a(f's_cbranch_vccz {lok}')
                issue(r)
            a(f's_sub_u32 s57, s57, 1\ns_cbranch_scc0 {lp}')
            a(f's_branch {lback}')
            for lok, r in oks:
                a.label(lok); final(r); a(f's_branch {lback}')
        else:
            a.label(lp)
            if MASKP: a('s_mov_b64 exec, vcc')
            if BACKOFF: a(f's_sleep {BACKOFF}')
            issue(None)
            a('s_waitcnt vmcnt(0)')
            cmp(None)
            lx = a.newlab('px')
            a(f's_cbranch_vccz {lx}')
            a(f's_sub_u32 s57, s57, 1\ns_cbranch_scc0 {lp}')
            a.label(lx)
            if MASKP: a('s_mov_b64 exec, -1')
            a(f's_branch {lback}')
    a.tail.append(tail)

NXUP = int(os.environ.get('NXUP', 16))
NWDG1 = int(os.environ.get('NWDG1', 58))
EPB = int(os.environ.get('EPB', 3))

def wd_list():
    return [(k, cb) for k in range(14) for cb in range(5)]
def wd_reg(k, cb):
    i = 5*k + cb
    return f'a[{4*i}:{4*i+3}]' if i < 58 else f'v[{4*(i-58)}:{4*(i-58)+3}]'
sWD = ['s84', 's85', 's86', 's87', 's88']
def wd_bases(a):
    a(f's_mul_i32 s79, s{SW}, {14*1024}')
    a(f's_mul_i32 s74, {sCG}, {5*55296}\ns_add_u32 s79, s79, s74\ns_add_u32 {sWD[0]}, s79, {WDP}')
    for cb in range(1, 5): a(f's_add_u32 {sWD[cb]}, {sWD[cb-1]}, 55296')
def wd_load(k, cb, vo=None):
    L = []
    L.append(f'buffer_load_dwordx4 {wd_reg(k, cb)}, {vo or "v%d" % L16}, {WS}, {sWD[cb]} offen offset:{1024*(k&3)}{SH}')
    if k & 3 == 3: L.append(f's_add_u32 {sWD[cb]}, {sWD[cb]}, 4096')
    return L

def G1(a, layer, stages_g2=True):
    X = X1 if layer == 0 else X3
    H = HB[layer]
    seq = g1_seq()
    tg = f'G1{layer}_'
    a.st(tg + 'go')
    a(f's_lshl_b32 s72, {sC}, 2\ns_add_u32 s72, s72, s{SW}\ns_mul_i32 s72, s72, 40960\ns_add_u32 s72, s72, {X}')
    xt = []
    def xload():
        ks = len(xt)
        if ks % 4 == 0 and ks > 0: a('s_add_u32 s72, s72, 4096')
        xt.append(a(f'buffer_load_dwordx4 v[{XF+4*ks}:{XF+4*ks+3}], v{L16}, {WS}, s72 offen offset:{1024*(ks&3)}{SH}'))
    NX0 = 4
    for ks in range(NX0): xload()
    SR = CSR
    a(f'v_lshrrev_b32 v250, 6, v{L16}\nv_lshlrev_b32 v250, 8, v250\nv_and_b32 v251, 0x30, v{L16}\nv_or_b32 v250, v250, v251')
    a(f'v_mov_b32 v252, {(OOB)}\nv_cmp_le_u32 vcc, 0x200, v{L16}\nv_cndmask_b32 v251, 0, v252, vcc\nv_or_b32 v251, v251, v250')
    a(f's_lshr_b32 s74, {sS}, 2\ns_lshl_b32 s75, {sC}, 2\ns_add_u32 s74, s74, s75\ns_mul_i32 s74, s74, 40960')
    a(f's_and_b32 s75, {sS}, 3\ns_lshl_b32 s75, s75, 6\ns_add_u32 s74, s74, s75\ns_mul_i32 s75, s{SW}, 10240\ns_add_u32 s74, s74, s75\ns_add_u32 s74, s74, {X}')
    stt = []
    for i in range(3):
        stt.append(a(f'buffer_load_dwordx4 v[{SR+4*i}:{SR+4*i+3}], v{251 if i == 2 else 250}, {WS}, s74 offen{SH}'))
        if i < 2: a('s_add_u32 s74, s74, 4096')
    for ks in range(NX0, NXUP): xload()
    rd_tok = {}
    def rd(s):
        if s >= len(seq): return
        u, ks, g = seq[s]
        reg, off = lds_addr((g % 39)*4096 + (ks & 3)*1024)
        b = WB + 4*(s % NB)
        rd_tok[s] = a(f'ds_read_b128 a[{b}:{b+3}], {reg} offset:{off}')
    for s in range(AHEAD): rd(s)
    a(f's_lshl_b32 s75, {sC}, 2\ns_add_u32 s75, s75, s{SW}\ns_mul_i32 s75, s75, 110592\ns_lshr_b32 s76, {sS}, 2\ns_mul_i32 s76, s76, {28*512}\ns_add_u32 s75, s75, s76')
    a(f's_and_b32 s76, {sS}, 3\ns_lshl_b32 s76, s76, 11\ns_add_u32 s75, s75, s76\ns_add_u32 s77, s75, {H}')
    a(f's_mov_b32 s82, {sW4K}\ns_add_u32 s83, {sW4K}, {quad_src(39)}\ns_add_u32 s83, s83, {sW1}')
    if layer == 0: wd_bases(a)
    def swaps(ks):
        r = XF + 4*ks
        return [f'v_permlane16_swap_b32 v{r}, v{r+2}', f'v_permlane16_swap_b32 v{r+1}, v{r+3}']
    Q = []
    def push(at, items):
        for it in items: Q.append([at, it])
    S0 = CSR + 12
    st = [lambda: a.wait_vm(stt[2])]
    for i in range(3):
        for h in range(4):
            r = SR + 4*i + h; s_ = S0 + 2*(h >> 1); q_ = s_ + 1
            first = (i == 0 and (h & 1) == 0)
            st += [f'v_lshlrev_b32 v250, 16, v{r}', f'v_and_b32 v251, s78, v{r}']
            if first: st += [f'v_add_f32 v{s_}, v250, v251', f'v_mul_f32 v{q_}, v250, v250']
            else: st += [f'v_add_f32 v{s_}, v{s_}, v250', f'v_fmac_f32 v{q_}, v250, v250', f'v_add_f32 v{s_}, v{s_}, v251']
            st += [f'v_fmac_f32 v{q_}, v251, v251']
    for rot in (4, 8):
        for e in range(4): st.append(f'v_add_f32_dpp v{S0+e}, v{S0+e}, v{S0+e} row_ror:{rot} row_mask:0xf bank_mask:0xf')
    for op in ('v_permlane16_swap_b32', 'v_permlane32_swap_b32'):
        for e in range(4): st += [f'v_mov_b32 v{250+e}, v{S0+e}']
        for e in range(4): st += [f'{op} v{250+e}, v{S0+e}']
        for e in range(4): st += [f'v_add_f32 v{S0+e}, v{S0+e}, v{250+e}']
    st += [f'v_and_b32 v254, 0x40, v{L16}', 'v_cmp_ne_u32 vcc, 0, v254',
           f's_lshr_b32 s74, {sS}, 2', 's_lshl_b32 s74, s74, 9',
           f'v_cndmask_b32 v250, v{S0}, v{S0+2}, vcc', f'v_cndmask_b32 v252, v{S0+1}, v{S0+3}, vcc',
           f'v_mov_b32 v251, s{STAG}', f'v_mov_b32 v253, s{STAG}',
           'v_lshlrev_b32 v254, 2, v254', f'v_and_b32 v{S0}, 0x30, v{L16}', f'v_add_u32 v254, v254, v{S0}',
           f's_and_b32 s75, {sS}, 3', 's_lshl_b32 s75, s75, 6', 's_add_u32 s74, s74, s75',
           f's_lshl_b32 s75, s{SW}, 11', 's_add_u32 s74, s74, s75', f's_lshl_b32 s75, {sC}, 13', 's_add_u32 s74, s74, s75', f's_add_u32 s74, s74, {ST[layer]}']
    def st_store():
        a(f's_mov_b64 exec, 0xff\nbuffer_store_dwordx4 v[250:253], v254, {WS}, s74 offen sc1\ns_mov_b64 exec, -1')
    st.append(st_store)
    PR_ = CSR
    ptk = []
    def sp_issue(_=None):
        ptk.append(a(f'buffer_load_dwordx4 v[{PR_}:{PR_+3}], v254, {WS}, s74 offen sc1'))
        ptk.append(a(f'buffer_load_dwordx4 v[{PR_+4}:{PR_+7}], v254, {WS}, s74 offen offset:2048 sc1'))
    def sp_cmp(_=None):
        a(f'v_xor_b32 v250, s{STAG}, v{PR_+1}\nv_xor_b32 v251, s{STAG}, v{PR_+3}\nv_xor_b32 v252, s{STAG}, v{PR_+5}\nv_xor_b32 v253, s{STAG}, v{PR_+7}')
        a('v_or3_b32 v250, v250, v251, v252\nv_or_b32 v250, v250, v253\nv_cmp_ne_u32 vcc, 0, v250')
    sp = [f'v_and_b32 v254, 0x1f0, v{L16}', f'v_lshrrev_b32 v250, 9, v{L16}', 'v_lshl_add_u32 v254, v250, 12, v254',
          f's_lshl_b32 s74, {sC}, 13', f's_lshl_b32 s75, s{SW}, 9', 's_add_u32 s74, s74, s75', f's_add_u32 s74, s74, {ST[layer]}', sp_issue]
    sf = [lambda: poll2(a, ptk[1], None, sp_issue, sp_cmp),
          f'v_add_f32 v{PR_}, v{PR_}, v{PR_+4}', f'v_add_f32 v{PR_+2}, v{PR_+2}, v{PR_+6}',
          's_mov_b32 s74, 0x3acccccd', 's_mov_b32 s75, 0x3727c5ac',
          f'v_mov_b32 v250, v{PR_}', f'v_mov_b32 v251, v{PR_+2}', 's_mov_b32 s76, 0xbfb8aa3b', 's_nop 0',
          f'v_permlane32_swap_b32 v250, v{PR_}', f'v_permlane32_swap_b32 v251, v{PR_+2}',
          f'v_add_f32 v{PR_}, v{PR_}, v250', f'v_add_f32 v{PR_+2}, v{PR_+2}, v251',
          f'v_mul_f32 v{NM}, s74, v{PR_}', f'v_mul_f32 v{IR2}, s74, v{PR_+2}',
          f'v_fma_f32 v{IR2}, -v{NM}, v{NM}, v{IR2}', f'v_max_f32 v{IR2}, 0, v{IR2}', f'v_add_f32 v{IR2}, s75, v{IR2}',
          f'v_rsq_f32 v{K1}, v{IR2}', f'v_sub_f32 v{NM}, 0, v{NM}', f'v_mul_f32 v{K1}, s76, v{K1}']
    a('s_mov_b32 s78, 0xffff0000')
    push(9, st)
    push(ST_POLL, sp)
    push(ST_CHK, sf)
    accof = {0: 0, 1: 16, 2: 32, 3: 48, 4: 0, 5: 16, 6: 32}
    def epi(u):
        A = accof[u]; L = []
        cst = {}
        def csrd(hf):
            def f():
                a(f'ds_read_b128 v[{CSR+8*hf}:{CSR+8*hf+3}], v{CSA} offset:{128*u + 32*hf}')
                cst[hf] = a(f'ds_read_b128 v[{CSR+8*hf+4}:{CSR+8*hf+7}], v{CSA} offset:{128*u + 32*hf + 16}')
            return (2, f)
        L += [csrd(0), csrd(1)]
        for hf in range(2):
            G = A + 8*hf; U = G + 4; C = CSR + 8*hf
            L.append((0, lambda hf=hf: a.wait_lg(cst[hf])))
            for r in range(4): L.append((1, f'v_fmac_f32 v{G+r}, v{NM}, v{C+r}'))
            for r in range(4): L.append((1, f'v_fmac_f32 v{U+r}, v{NM}, v{C+4+r}'))
            for r in range(4): L.append((1, f'v_mul_f32 v{C+r}, v{K1}, v{G+r}'))
            for r in range(4): L += [(2, f'v_exp_f32 v{C+r}, v{C+r}'), (1, f'v_mul_f32 v{G+r}, v{G+r}, v{U+r}')]
            for r in range(4): L.append((1, f'v_fma_f32 v{C+r}, v{C+r}, v{IR2}, v{IR2}'))
            for r in range(4): L.append((2, f'v_rcp_f32 v{C+r}, v{C+r}'))
            for r in range(4): L.append((1, f'v_mul_f32 v{G+r}, v{G+r}, v{C+r}'))
            O = A + 4 + 2*hf
            L += [(1, f'v_cvt_pk_bf16_f32 v{O}, v{G}, v{G+1}'), (1, f'v_cvt_pk_bf16_f32 v{O+1}, v{G+2}, v{G+3}')]
        def store():
            vo = HOFF
            if u == 4: a(f's_and_b32 s74, {sS}, 3\ns_lshl_b32 s74, s74, 10\ns_sub_u32 s77, s77, s74\ns_add_u32 s77, s77, {12*512}')
            if u == 6:
                a(f's_and_b32 s74, {sS}, 3\ns_lshl_b32 s74, s74, 9\ns_sub_u32 s77, s77, s74\ns_add_u32 s77, s77, {6*512}')
                a(f's_cmp_ge_u32 {sS}, 12\ns_cselect_b32 s74, {OOB}, 0\nv_or_b32 v254, s74, v{HOFF}')
                vo = 254
            hst[u] = a(f'buffer_store_dwordx4 v[{A+4}:{A+7}], v{vo}, {WS}, s77 offen offset:{512*u} sc1')
        L.append((1, store))
        return L
    hst = {}
    V = []
    dt = {}
    def refill_items(gam, at):
        for i in range(4):
            L = []
            if i == 0:
                if gam == 7:
                    L += [f's_min_u32 s74, {sW4K}, {2*4096}', f's_add_u32 s82, s74, {28*4096}', f's_add_u32 s83, s74, {quad_src(67)}', f's_add_u32 s83, s83, {sW1}']
                L.append('s_mov_b32 m0, s82')
            L.append(f'buffer_load_dwordx4 v{L16}, {WS}, s83 offen offset:{1024*i}{SH} lds')
            if i == 3 and gam < 6: L += ['s_add_u32 s82, s82, 16384', 's_add_u32 s83, s83, 16384']
            if i == 3 and gam == 6: pass
            V.append([at, L, ('dma', gam)])
    for gam in range(6): refill_items(gam, RB0)
    for gam in (6, 7): refill_items(gam, 148)
    V.sort(key=lambda x: x[0])
    WQ = []
    if layer == 0:
        for (k, cb) in wd_list()[:NWDG1]:
            L = wd_load(k, cb)
            if os.environ.get('NOWD'): L = L[1:] or ['s_nop 0']
            WQ.append(L)
    BARS = {RB0: [], 148: [2], 196: [5], 244: [7]}
    last_of = {}
    for s, (u, ks, g) in enumerate(seq): last_of[u] = s
    avail = {u: last_of[u] + 3 for u in range(7)}
    nxt = 0
    cur = []
    a.wait_vm(xt[0])
    for x in swaps(0): a(x)
    a.st(tg + 'x0')
    fy = None
    lastv = -9
    for s, (u, ks, g) in enumerate(seq):
        if s in BARS:
            for gam in BARS[s]:
                assert gam in dt, (s, gam)
                a.wait_vm(dt[gam])
            if s == RB0 and layer == 0:
                a.poll1_check(fwd, 4, 'v249', 's80', 240, barrier=False)
            if s == 244 and layer == 0:
                a.poll1_check(fy, 4, 'v249', 's80', 250, barrier=False)
            if s == 244: a.wait_vm(hst[3])
            a('s_barrier')
            if s == 244:
                a(f's_lshl_b32 s74, {sC}, 9\ns_lshl_b32 s75, {sS}, 2\ns_add_u32 s74, s74, s75\ns_add_u32 s74, s74, {FH[layer]}')
                a.flag_store('s74', 'v250', 'v251', rep=4, stride=128)
            if s == 148 and layer == 0:
                def fyf():
                    a(f's_lshl_b32 s74, s2, 2\ns_add_u32 s74, s74, {FY}')
                    a.flag_store('s74', 'v250', 'v251')
                guarded(a, sROLE, fyf)
        if s == FWD_AT and layer == 0:
            assert not any(q[0] == 9 for q in Q), 'statistics not finished'
            a(f'v_lshrrev_b32 v249, 4, v{L16}\nv_min_u32 v249, 23, v249\nv_lshlrev_b32 v249, 4, v249')
            a(f's_and_b32 s80, s2, 15\ns_lshl_b32 s80, s80, 9\ns_add_u32 s80, s80, {FWD}')
            fwd = a.poll1_issue(4, 'v249', 's80', 240)
        if s == YS_AT and layer == 0:
            def ys():
                for k in range(4):
                    a(f'buffer_store_dwordx4 v[{48+4*k}:{48+4*k+3}], v{YOFF}, {WS}, {sYB} offen sc1')
                    if k < 3: a(f's_add_u32 {sYB}, {sYB}, {4*40960}')
            guarded(a, sROLE, ys)
        if s == 232 and layer == 0:
            a(f'v_lshrrev_b32 v249, 4, v{L16}\nv_min_u32 v249, 39, v249\nv_lshlrev_b32 v249, 4, v249\ns_mov_b32 s80, {FY}')
            fy = a.poll1_issue(4, 'v249', 's80', 250)
        if s % 2 == 0: a.wait_lg(rd_tok[min(s + 1, len(seq) - 1)])
        b = WB + 4*(s % NB); A = accof[u]
        c = '0' if ks == 0 else f'v[{A}:{A+15}]'
        a(f'v_mfma_f32_32x32x16_bf16 v[{A}:{A+15}], a[{b}:{b+3}], v[{XF+4*ks}:{XF+4*ks+3}], {c}')
        rd(s + AHEAD)
        n = 1 + (1 if s % 2 == 1 else 0)
        if s < 120 and u == 1 and ks + 1 < 40:
            a.wait_vm(xt[ks+1])
            for x in swaps(ks+1): a(x)
            n += 3
        if s < 120 and u == 0 and len(xt) < 40:
            xload(); n += 1; lastv = s
        elif s - lastv >= 2:
            if V and V[0][0] <= s:
                _, L, nm = V.pop(0)
                for x in L: t = a(x)
                dt[nm[1]] = a.vm_issued
                n += len(L); lastv = s
            elif WQ and s >= WD_AT:
                L = WQ.pop(0)
                for x in L: a(x)
                n += len(L); lastv = s
        budget = 6
        while n < budget and Q and Q[0][0] <= s:
            it = Q.pop(0)[1]
            it() if callable(it) else a(it)
            n += 1
        if s >= 120:
            if not cur and nxt < 6 and avail[nxt] <= s and not Q:
                cur = epi(nxt); nxt += 1
            m = 0
            while cur and (n + cur[0][0] <= budget) and m < EPB:
                c_, it = cur.pop(0)
                it() if callable(it) else a(it)
                n += c_; m += 1 if c_ else 0
        if s in (119, 159, 199, 239): a.st(tg + f'm{s+1}')
        if s + 1 < len(seq) and seq[s+1][1] == 0 and seq[s+1][0] >= 4:
            assert nxt > seq[s+1][0] - 4 and not (nxt == seq[s+1][0] - 3 and cur), ('epilogue late', s, nxt, len(cur))
    assert not Q and not V and not WQ, (len(Q), len(V), len(WQ))
    a.st(tg + 'mend')
    a(f'v_lshrrev_b32 v249, 4, v{L16}\nv_min_u32 v249, 3, v249\ns_lshl_b32 s75, s{SW}, 2\nv_add_u32 v249, s75, v249\nv_lshlrev_b32 v249, 2, v249')
    a(f's_lshr_b32 s80, {sTB}, 1\ns_lshl_b32 s80, s80, 2\ns_add_u32 s80, s80, s{SW}\ns_lshl_b32 s80, s80, 7\ns_add_u32 s80, s80, {FH[layer]}')
    tA = a.poll_issue(1, 'v249', 's80', 250) if stages_g2 else None
    for c_, it in cur: it() if callable(it) else a(it)
    while nxt < 7:
        for c_, it in epi(nxt): it() if callable(it) else a(it)
        nxt += 1
    a.st(tg + 'epi')
    a(f's_lshl_b32 s79, {sC}, 9\ns_lshl_b32 s75, {sS}, 2\ns_add_u32 s79, s79, s75\ns_add_u32 s79, s79, {FH[layer] + 64}')
    return dict(tA=tA, tS=hst[6])

RB0 = 96
ST_POLL, ST_CHK = 84, 112
YS_AT = 78
FWD_AT = 82
WD_AT = 100

def pre_G1_common(a):
    a.st('J_cs')
    a(f'v_lshrrev_b32 v88, 4, v{L16}\nv_min_u32 v88, 39, v88\nv_lshlrev_b32 v88, 4, v88')
    a(f's_and_b32 s74, s2, 15\ns_lshl_b32 s74, s74, 10\ns_add_u32 s74, s74, {FX1}')
    a('s_waitcnt vmcnt(0) lgkmcnt(0)')
    a.poll_w0(4, 'v88', 's74', 84, alt=(92, 96, 100))
    a.reset_counts()

def rest(a, stages, epoch_update):
    import g2h
    pre_G1_common(a)
    epoch_update(a)
    tk = G1(a, 0, stages > 2)
    if stages == 2: return
    g2h.G2(a, 0, tk, last=(stages == 3))
    if stages == 3: return
    tk = G1(a, 1, stages > 4)
    if stages == 4: return
    g2h.G2(a, 1, tk)
```

```python
from g2base import *
from g2g import *
import g2g

OPOL = {'': '', 'nt': ' nt', 'sc1': ' sc1', 'sc01': ' sc0 sc1', 'sc1nt': ' sc1 nt', 'sc01nt': ' sc0 sc1 nt'}[os.environ.get('OPOL', '')]
ACC = 144
HBUF = 64
NHB = 5
RX = 232
RY = 48
sHB = ['s90', 's91', 's92', 's93']
VM, VR, VT = 242, 243, 244
VE = 58
def acc(tb, cb): return ACC + 20*tb + 4*cb
def hb(k, tb): return HBUF + 16*(k % NHB) + 4*tb

BP = int(os.environ.get('BP', 4))
BC = int(os.environ.get('BC', 6))
NH1 = int(os.environ.get('NH1', 2))
XQ0 = int(os.environ.get('XQ0', 4))
XQN = int(os.environ.get('XQN', 3))
GQ0 = int(os.environ.get('GQ0', 10))
DQ0 = int(os.environ.get('DQ0', 5))
NDL = int(os.environ.get('NDL', 16))
NDR = int(os.environ.get('NDR', 14))
KE = 8
def G2(a, layer, tk, last=False):
    H = HB[layer]; X = X1 if layer == 0 else X3
    tg = f'G2{layer}_'
    if layer == 1: a.srd_load(SOUT, 'out'); a.srd_fin(SOUT, 'out')
    a(f'v_mov_b32 v{VM}, {OOB}\ns_cmp_eq_u32 s{SW}, 3\ns_cselect_b32 s74, -1, 0\nv_and_b32 v{VM}, s74, v{VM}\nv_or_b32 v{VM}, v{VM}, v{L16}')
    a(f's_mul_i32 s78, s{SW}, {14*1024}\ns_add_u32 s78, s78, {H}')
    for tb in range(4):
        a(f's_add_u32 s74, s{SW}, {tb}\ns_and_b32 s74, s74, 3\ns_lshl_b32 s75, {sTB}, 2\ns_add_u32 s74, s74, s75\ns_mul_i32 s74, s74, 55296\ns_add_u32 {sHB[tb]}, s74, s78')
    a(f'v_lshrrev_b32 v{VT}, 8, v{L16}\nv_lshlrev_b32 v{VT}, 8, v{VT}\nv_bfe_u32 v{VR}, v{L16}, 4, 4\nv_lshl_add_u32 v{VR}, v{VR}, 3, v{VT}')
    a(f's_lshl_b32 s75, {sTB}, 1\ns_lshr_b32 s76, s{SW}, 1\ns_add_u32 s75, s75, s76\ns_mul_i32 s75, s75, 40960\ns_mul_i32 s76, {sCG}, 5120\ns_add_u32 s75, s75, s76')
    a(f's_and_b32 s76, s{SW}, 1\ns_lshl_b32 s76, s76, 7\ns_add_u32 s94, s75, s76')
    wl = wd_list()
    tw = {}; th = {}; tok = {}
    PF = NHB - 1
    def hload(k, tb):
        if k >= 14: return
        r = hb(k, tb)
        th[(k, tb)] = a(f'buffer_load_dwordx4 v[{r}:{r+3}], v{VM if k >= 12 else L16}, {WS}, {sHB[tb]} offen offset:{1024*(k&3)}{SH}')
        if k & 3 == 3: a(f's_add_u32 {sHB[tb]}, {sHB[tb]}, 4096')
    def gran_loads(base, reg):
        a(f's_add_u32 s75, s94, {base}\ns_add_u32 s76, s75, 4096')
        for cb in range(5):
            t = a(f'buffer_load_dwordx2 v[{reg+2*cb}:{reg+2*cb+1}], v{VR}, {WS}, {"s75" if cb < 4 else "s76"} offen offset:{1024*(cb&3)}{SH}')
        return t
    def head_loads():
        for k in range(NH1):
            for tb in range(4): hload(k, tb)
    XQ = []
    def wd_item(k, cb):
        def f():
            if layer == 0:
                for x in wd_load(k, cb, vo=(f'v{VM}' if k >= 12 else None)): a(x)
            elif k == 11:
                a(f's_sub_u32 s74, {sWD[cb]}, 4096')
                a(f'buffer_load_dwordx4 {wd_reg(k, cb)}, v{L16}, {WS}, s74 offen offset:3072{SH}')
            else:
                a(f'buffer_load_dwordx4 {wd_reg(k, cb)}, v{VM if k >= 12 else L16}, {WS}, {sWD[cb]} offen offset:{1024*(k&3)}{SH}')
            tw[(k, cb)] = a.vm_issued
        return f
    for (k, cb) in (wl[g2g.NWDG1:] if layer == 0 else wl[58:]): XQ.append(wd_item(k, cb))
    GQ = []
    def gran_item(base, reg, cb, name):
        def f():
            if cb == 0: a(f's_add_u32 s95, s94, {base}')
            if cb == 4: a('s_add_u32 s95, s95, 4096')
            tok[name] = a(f'buffer_load_dwordx2 v[{reg+2*cb}:{reg+2*cb+1}], v{VR}, {WS}, s95 offen offset:{1024*(cb&3)}{SH}')
        return f
    for cb in range(5): GQ.append(gran_item(X, RX, cb, 'tx'))
    if layer == 0:
        for cb in range(5): GQ.append(gran_item(YG, RY, cb, 'ty'))
    def flag_b():
        a('s_barrier')
        a.flag_store('s79', 'v251', 'v252', rep=4, stride=128)
    lslow = a.newlab('slowA'); ljoin = a.newlab('joinA')
    a.wait_vm(tk['tA'])
    a(f'v_cmp_ne_u32 vcc, s{STAG}, v250\ns_cbranch_vccnz {lslow}')
    st0 = (a.vm_issued, a.vm_done)
    head_loads()
    a.wait_vm(tk['tS'])
    flag_b()
    a.label(ljoin)
    st1 = (a.vm_issued, a.vm_done, dict(th), dict(tw), dict(tok))
    def slow():
        a.label(lslow)
        a.vm_issued, a.vm_done = st0
        a('s_waitcnt vmcnt(0)')
        flag_b()
        a.poll(1, 'v249', 's80', 250)
        sv = (dict(th), dict(tw), dict(tok))
        head_loads()
        th.update(sv[0]); tw.update(sv[1]); tok.update(sv[2])
        a(f's_branch {ljoin}')
    a.tail.append(slow)
    a.st(tg + 'go')
    for k in range(NH1, PF):
        for tb in range(4): hload(k, tb)
    for tb in range(1, 4):
        a(f's_add_u32 s74, s{SW}, {tb}\ns_and_b32 s74, s74, 3\ns_mul_i32 s74, s74, 15360\ns_add_u32 s74, s74, {RED + (tb-1)*5120}\nv_add_u32 v{VT+tb-1}, s74, v{L16}')
    a(f's_mul_i32 s74, s{SW}, 15360\ns_add_u32 s74, s74, {RED}\nv_add_u32 v{VT+3}, s74, v{L16}')
    DQ = []
    if layer == 0 and not last and not os.environ.get('NODQ'):
        for i in range(6):
            L = [f's_add_u32 s81, s{SW}, {4*i}'] + quad_dma_dyn('s81', f'v{L16}', t=('s96', 's97', 's98'))
            DQ.append(L[:-3]); DQ += [[x] for x in L[-3:]]
    lskip = a.newlab('g2skip')
    ndl = [0]
    first = True
    tB = None
    for k in range(14):
        if k == 12:
            a(f's_cmp_eq_u32 s{SW}, 3\ns_cbranch_scc1 {lskip}')
            sv = (a.vm_issued, a.vm_done)
        if k == BP: tB = a.poll_issue(1, 'v249', 's80', 250, off=64)
        if k == BC:
            a.poll_check(tB, 1, 'v249', 's80', 250, off=64)
            a.st(tg + 'bok')
            for k2 in range(KE, BC + PF):
                for tb in range(4): hload(k2, tb)
        order = [0, 1, 2, 3] if k < 13 else [1, 2, 3, 0]
        for j, tb in enumerate(order):
            toks = [th[(k, tb)]] + [tw[(k, cb)] for cb in range(5) if (k, cb) in tw]
            a.wait_vm(max(toks))
            if first: a.st(tg + 'h0'); first = False
            for cb in range(5):
                A = acc(tb, cb); b = hb(k, tb)
                c = '0' if k == 0 else f'v[{A}:{A+3}]'
                a(f'v_mfma_f32_16x16x32_bf16 v[{A}:{A+3}], {wd_reg(k, cb)}, v[{b}:{b+3}], {c}')
                hl = k + PF < 14 and (k + PF < KE or k >= BC)
                if cb == 0 and hl: hload(k + PF, tb)
                elif k < 12:
                    if XQ and k >= XQ0 and cb in ((2, 4) if hl else (0, 2, 4))[:XQN]: XQ.pop(0)()
                    elif GQ and k >= GQ0 and cb in (0, 3): GQ.pop(0)()
                    elif DQ and ndl[0] < NDL and k >= DQ0 and cb in (0, 3):
                        for x in DQ.pop(0): a(x)
                        ndl[0] += 1
    assert not XQ and not GQ, (len(XQ), len(GQ))
    tx, ty = tok['tx'], tok.get('ty')
    a.label(lskip)
    assert a.vm_issued == sv[0]
    a.vm_done = sv[1]
    a.wait_vm(th[(13, 3)])
    a.st(tg + 'mend')
    for tb in (1, 2, 3):
        for cb in range(5):
            A = acc(tb, cb)
            a(f'ds_write_b128 v{VT+tb-1}, v[{A}:{A+3}] offset:{1024*cb}')
    ndr = [0]
    def dq(n=1):
        for _ in range(n):
            if DQ and ndr[0] < NDR:
                for x in DQ.pop(0): a(x)
                ndr[0] += 1
    dq(4)
    a('s_waitcnt lgkmcnt(0)\ns_barrier')
    RB = HBUF
    tr = []
    for cb in range(5):
        for j in range(3):
            r = RB + 12*cb + 4*j
            t = a(f'ds_read_b128 v[{r}:{r+3}], v{VT+3} offset:{5120*j + 1024*cb}')
        tr.append(t)
    a.wait_vm(tx)
    PK = 204
    U = 84
    a('s_mov_b32 s78, 0xffff0000')
    for cb in range(5):
        A = acc(0, cb); r = RB + 12*cb
        a.wait_lg(tr[cb])
        for e in range(4): a(f'v_add_f32 v{r+e}, v{r+e}, v{r+4+e}')
        dq()
        for e in range(4): a(f'v_add_f32 v{A+e}, v{A+e}, v{r+8+e}')
        for e in range(4): a(f'v_add_f32 v{A+e}, v{A+e}, v{r+e}')
        a(f'v_permlane32_swap_b32 v{A}, v{A+2}\nv_permlane32_swap_b32 v{A+1}, v{A+3}')
        a(f'v_permlane16_swap_b32 v{A}, v{A+1}\nv_permlane16_swap_b32 v{A+2}, v{A+3}')
        x = RX + 2*cb
        dq()
        a(f'v_lshlrev_b32 v{r}, 16, v{x}\nv_and_b32 v{r+1}, s78, v{x}\nv_lshlrev_b32 v{r+2}, 16, v{x+1}\nv_and_b32 v{r+3}, s78, v{x+1}')
        for e in range(4): a(f'v_add_f32 v{A+e}, v{A+e}, v{r+e}')
        a(f'v_cvt_pk_bf16_f32 v{PK+2*cb}, v{A}, v{A+1}\nv_cvt_pk_bf16_f32 v{PK+2*cb+1}, v{A+2}, v{A+3}')
    a.st(tg + 'red')
    if layer == 1:
        a(f'v_bfe_u32 v{VT}, v{L16}, 4, 4\nv_mul_u32_u24 v{VT}, 1280, v{VT}\nv_bfe_u32 v{VT+1}, v{L16}, 8, 1\nv_lshl_add_u32 v{VT}, v{VT+1}, 5, v{VT}')
        a(f'v_bfe_u32 v{VT+1}, v{L16}, 9, 1\nv_lshl_add_u32 v{VT}, v{VT+1}, 4, v{VT}')
        a(f's_lshl_b32 s74, {sTB}, 2\ns_add_u32 s74, s74, s{SW}\ns_mul_i32 s74, s74, {16*1280}\ns_mul_i32 s75, {sCG}, 160\ns_add_u32 s74, s74, s75')
        for p in range(3):
            R = PK + 4*p
            a(f'v_permlane16_swap_b32 v{R}, v{R+2}\nv_permlane16_swap_b32 v{R+1}, v{R+3}')
        for p in range(3):
            R = PK + 4*p
            if p == 2: a('s_mov_b32 exec_lo, 0x0000ffff\ns_mov_b32 exec_hi, 0x0000ffff')
            a(f'buffer_store_dwordx4 v[{R}:{R+3}], v{VT}, s[{SOUT}:{SOUT+3}], s74 offen offset:{64*p}{OPOL}')
        a('s_mov_b64 exec, -1')
        a.st(tg + 'end')
        return
    S_, Q_ = VT, VT+2
    a('s_mov_b32 s75, 0x3f803f80')
    for i in range(10):
        a(f'v_dot2_f32_bf16 v{S_}, v{PK+i}, s75, {"0" if i == 0 else f"v{S_}"}')
        a(f'v_dot2_f32_bf16 v{Q_}, v{PK+i}, v{PK+i}, {"0" if i == 0 else f"v{Q_}"}')
    for op in ('v_permlane16_swap_b32', 'v_permlane32_swap_b32'):
        a(f'v_mov_b32 v{VE}, v{S_}\nv_mov_b32 v{VE+1}, v{Q_}\n{op} v{VE}, v{S_}\n{op} v{VE+1}, v{Q_}')
        a(f'v_add_f32 v{S_}, v{S_}, v{VE}\nv_add_f32 v{Q_}, v{Q_}, v{VE+1}')
    a(f'v_mov_b32 v{VT+1}, s{STAG}\nv_mov_b32 v{VT+3}, s{STAG}')
    a(f'v_and_b32 v{VE}, 0xf0, v{L16}')
    a(f's_lshl_b32 s74, {sTB}, 13\ns_lshl_b32 s75, s{SW}, 8\ns_add_u32 s74, s74, s75\ns_add_u32 s79, s74, {XS}\ns_lshl_b32 s75, {sCG}, 10\ns_add_u32 s74, s79, s75')
    a(f's_mov_b64 exec, 0xffff\nbuffer_store_dwordx4 v[{VT}:{VT+3}], v{VE}, {WS}, s74 offen sc1\ns_mov_b64 exec, -1')
    a(f'v_lshrrev_b32 v{VE+1}, 8, v{L16}\nv_lshl_add_u32 v{VE}, v{VE+1}, 11, v{VE}')
    PR_ = RB
    ptk = []
    def xs_issue(b=None):
        b = PR_ if b is None else b
        ptk.append(a(f'buffer_load_dwordx4 v[{b}:{b+3}], v{VE}, {WS}, s79 offen sc1'))
        ptk.append(a(f'buffer_load_dwordx4 v[{b+4}:{b+7}], v{VE}, {WS}, s79 offen offset:1024 sc1'))
    def xs_cmp(b=None):
        b = PR_ if b is None else b
        a(f'v_xor_b32 v250, s{STAG}, v{b+1}\nv_xor_b32 v251, s{STAG}, v{b+3}\nv_xor_b32 v252, s{STAG}, v{b+5}\nv_xor_b32 v253, s{STAG}, v{b+7}')
        a('v_or3_b32 v250, v250, v251, v252\nv_or_b32 v250, v250, v253\nv_cmp_ne_u32 vcc, 0, v250')
    def xs_final(b):
        for e in (0, 2, 4, 6): a(f'v_mov_b32 v{PR_+e}, v{b+e}')
    xs_issue()
    while DQ:
        for x in DQ.pop(0): a(x)
    a.st(tg + 'xs')
    a.wait_vm(ty)
    YU = 104
    for i in range(10):
        a(f'v_lshlrev_b32 v{U+2*i}, 16, v{PK+i}\nv_and_b32 v{U+2*i+1}, s78, v{PK+i}')
        a(f'v_lshlrev_b32 v{YU+2*i}, 16, v{RY+i}\nv_and_b32 v{YU+2*i+1}, s78, v{RY+i}')
    a(f'v_bfe_u32 v{VE+2}, v{L16}, 4, 1')
    a(f'v_lshlrev_b32 v{VE+3}, 3, v{VE+2}\nv_sub_u32 v{VE+3}, v{VR}, v{VE+3}\nv_lshl_add_u32 v{VE+3}, v{VE+2}, 10, v{VE+3}')
    poll2(a, ptk[1], None, xs_issue, xs_cmp, alt=(152, 160, 168), final=xs_final)
    a.st(tg + 'xsok')
    a(f'v_add_f32 v{PR_}, v{PR_}, v{PR_+4}\nv_add_f32 v{PR_+2}, v{PR_+2}, v{PR_+6}')
    for op in ('v_permlane16_swap_b32', 'v_permlane32_swap_b32'):
        a(f'v_mov_b32 v250, v{PR_}\nv_mov_b32 v251, v{PR_+2}\n{op} v250, v{PR_}\n{op} v251, v{PR_+2}')
        a(f'v_add_f32 v{PR_}, v{PR_}, v250\nv_add_f32 v{PR_+2}, v{PR_+2}, v251')
    m_, q_ = PR_, PR_+2
    a('s_mov_b32 s74, 0x3acccccd\ns_mov_b32 s75, 0x3727c5ac')
    a(f'v_mul_f32 v{m_}, s74, v{m_}\nv_mul_f32 v{q_}, s74, v{q_}\nv_fma_f32 v{q_}, -v{m_}, v{m_}, v{q_}\nv_max_f32 v{q_}, 0, v{q_}\nv_add_f32 v{q_}, s75, v{q_}\nv_rsq_f32 v{q_}, v{q_}')
    a(f's_nop 0\nv_mul_f32 v{m_}, v{m_}, v{q_}\nv_sub_f32 v{m_}, 0, v{m_}')
    for i in range(20):
        a(f'v_fma_f32 v250, v{U+i}, v{q_}, v{m_}\nv_fma_f32 v{U+i}, v250, v{YU+i}, v{U+i}') if False else None
    T = 124
    for i in range(20): a(f'v_fma_f32 v{T+i}, v{U+i}, v{q_}, v{m_}')
    for i in range(20): a(f'v_fma_f32 v{U+i}, v{T+i}, v{YU+i}, v{U+i}')
    for i in range(10): a(f'v_cvt_pk_bf16_f32 v{PK+i}, v{U+2*i}, v{U+2*i+1}')
    O = 216
    a(f'v_cmp_eq_u32 vcc, 0, v{VE+2}')
    a(f's_add_u32 s75, s94, {X3}\ns_add_u32 s76, s75, 4096')
    for p in range(2):
        R = PK + 4*p; o = O + 4*p
        a(f'v_cndmask_b32 v250, v{R}, v{R+2}, vcc\nv_cndmask_b32 v251, v{R+1}, v{R+3}, vcc')
        a(f'v_cndmask_b32_dpp v{o}, v250, v{R}, vcc quad_perm:[1,0,3,2] row_mask:0xf bank_mask:0xf')
        a(f'v_cndmask_b32_dpp v{o+1}, v251, v{R+1}, vcc quad_perm:[1,0,3,2] row_mask:0xf bank_mask:0xf')
        a('s_not_b64 vcc, vcc\ns_nop 1')
        a(f'v_cndmask_b32_dpp v{o+2}, v250, v{R+2}, vcc quad_perm:[1,0,3,2] row_mask:0xf bank_mask:0xf')
        a(f'v_cndmask_b32_dpp v{o+3}, v251, v{R+3}, vcc quad_perm:[1,0,3,2] row_mask:0xf bank_mask:0xf')
        a('s_not_b64 vcc, vcc\ns_nop 1')
        a(f'buffer_store_dwordx4 v[{o}:{o+3}], v{VE+3}, {WS}, s75 offen offset:{2048*p} sc1')
    R = PK + 8
    a(f'v_mov_b32_dpp v{R+2}, v{R} quad_perm:[1,0,3,2] row_mask:0xf bank_mask:0xf\nv_mov_b32_dpp v{R+3}, v{R+1} quad_perm:[1,0,3,2] row_mask:0xf bank_mask:0xf')
    a('s_mov_b32 exec_lo, 0x55555555\ns_mov_b32 exec_hi, 0x55555555')
    a(f'buffer_store_dwordx4 v[{R}:{R+3}], v{VE+3}, {WS}, s76 offen sc1')
    a('s_mov_b64 exec, -1')
    a.st(tg + 'x3st')
    a(f's_lshr_b32 s74, {sTB}, 1\ns_lshl_b32 s74, s74, 9\ns_and_b32 s75, {sTB}, 1\ns_lshl_b32 s75, s75, 3\ns_add_u32 s75, s75, {sCG}\ns_lshl_b32 s75, s75, 2\ns_add_u32 s74, s74, s75\ns_add_u32 s79, s74, {FX3}')
    a(f's_lshl_b32 s80, {sC}, 2\ns_and_b32 s75, {sS}, 3\ns_add_u32 s80, s80, s75\ns_lshl_b32 s80, s80, 7\ns_add_u32 s80, s80, {FX3}')
    a(f'v_lshrrev_b32 v249, 4, v{L16}\nv_min_u32 v249, 15, v249\nv_lshlrev_b32 v249, 2, v249')
    a('s_waitcnt vmcnt(0)\ns_barrier')
    a.reset_counts()
    a.flag_store('s79', 'v250', 'v251', rep=4, stride=128)
    a.st(tg + 'x3flag')
    if last: return
    lab = a.newlab('nd')
    a(f's_cmp_eq_u32 s{SW}, 1\ns_cbranch_scc1 {lab}')
    a(f's_min_u32 s82, s{SW}, 1\ns_sub_u32 s82, s{SW}, s82\ns_add_u32 s82, s82, 24')
    sv = a.vm_issued
    for i in range(5):
        for x in quad_dma_dyn('s82', f'v{L16}'): a(x)
        if i < 4: a('s_add_u32 s82, s82, 3')
    a.vm_issued = sv
    a('s_waitcnt vmcnt(0)')
    a.label(lab)
    a.poll_w0(1, 'v249', 's80', 250, alt=(100, 104, 108))
    a.reset_counts()
```

```python
from g2base import *

CS = 4160
WLDS = 4*CS + 4608
CONV_BASE = LDS_BYTES - 4*WLDS
QBLK = 3
_nt = __import__('os').environ.get('NT', 'w,d,h').split(',')
POL = {k: (' nt' if k in _nt else '') for k in 'wkvhqsd'}
WPOL = ' nt' if 'wnt' in __import__('os').environ.get('EXP', '') else ''
FQBLK = int(__import__('os').environ.get('FQBLK', 1))
GPOL = {'': '', 'nt': ' nt', 'sc1': ' sc1', 'sc01': ' sc0 sc1', 'sc01nt': ' sc0 sc1 nt'}[__import__('os').environ.get('GPOL', '')]
EXP = __import__('os').environ.get('EXP', '')
NB1 = int(__import__('os').environ.get('NB1', 3))
import os
PBLK = int(os.environ.get('PBLK', 3))
STAGE1 = False
QDELAY = 4
CDEPTH = 3
TOUCH = True
NH0 = 3
WDRAW = 224
SWD = 48
HRAW = 192
SDQ = 's96'
SQC = 92
QRT = 128
QST_RAW = 168

def phase_T_with_tag(a):
    SK, SV, SSH, SH, SD = 8, 12, 16, 20, 24
    a('s_mul_i32 s28, s2, 205\ns_lshr_b32 s28, s28, 10')
    a('s_mul_i32 s29, s28, 5\ns_sub_u32 s29, s2, s29')
    a('v_bfe_u32 v1, v0, 4, 2\nv_lshrrev_b32 v2, 7, v0\nv_lshl_add_u32 v1, v2, 2, v1')
    a('v_and_b32 v2, 15, v0\nv_bfe_u32 v3, v0, 6, 1\nv_lshl_add_u32 v2, v3, 4, v2')
    a('s_mul_i32 s30, s28, 81920\ns_lshl_b32 s31, s29, 8\ns_add_u32 s30, s30, s31')
    a('v_mul_u32_u24 v3, 10240, v1\nv_lshl_add_u32 v3, v2, 3, v3\nv_add_u32 v3, s30, v3')
    a('v_add_u32 v4, 5120, v3\nv_subrev_u32 v5, 3840, v3')
    a('s_lshl_b32 s31, s29, 10\nv_lshlrev_b32 v6, 5, v2\nv_add_u32 v6, s31, v6')
    KR, VR, WR = 10, 32, 48
    for r in range(3):
        a(f'buffer_load_dwordx2 v[{KR+2*r}:{KR+2*r+1}], v5, s[{SK}:{SK+3}], 0 offen offset:{1280*r}{POL["k"]}')
    for r in range(8):
        a(f'buffer_load_dwordx2 v[{KR+6+2*r}:{KR+7+2*r}], v{3+(r>>2)}, s[{SK}:{SK+3}], 0 offen offset:{1280*(r&3)}{POL["k"]}')
    a(f'buffer_load_dwordx4 v[{WR}:{WR+3}], v6, s[{SSH}:{SSH+3}], 0 offen')
    tw = a(f'buffer_load_dwordx4 v[{WR+4}:{WR+7}], v6, s[{SSH}:{SSH+3}], 0 offen offset:16')
    tv = []
    for r in range(8):
        tv.append(a(f'buffer_load_dwordx2 v[{VR+2*r}:{VR+2*r+1}], v{3+(r>>2)}, s[{SV}:{SV+3}], 0 offen offset:{1280*(r&3)}{POL["v"]}'))
    a('v_and_b32 v8, 7, v2\nv_xor_b32 v8, v8, v1\nv_lshlrev_b32 v8, 4, v8\nv_lshl_add_u32 v8, v2, 9, v8')
    a('v_lshrrev_b32 v9, 5, v0\nv_and_b32 v7, 7, v0\nv_xor_b32 v9, v9, v7\nv_lshlrev_b32 v9, 4, v9\nv_lshrrev_b32 v148, 3, v0\nv_lshl_add_u32 v9, v148, 7, v9')
    a('s_lshl_b32 s30, s29, 19\ns_lshl_b32 s31, s28, 7\ns_add_u32 s30, s30, s31')
    a('v_lshlrev_b32 v7, 4, v7\nv_lshl_add_u32 v7, v148, 12, v7\nv_add_u32 v7, s30, v7')
    for c in range(4): a(f's_mov_b32 s{36+c}, {UT + c*131072}')
    a('s_mov_b32 s40, 0xffff0000')
    KF, WF, U = 56, 100, 116
    a.st('T_issued')
    a.wait_vm(tw)
    if 'kgate' in EXP:
        a('s_waitcnt lgkmcnt(0)')
        tag_from_epoch(a)
        a(f's_lshl_b32 s41, s2, 7\ns_add_u32 s41, s41, {FK}')
        a.flag_store('s41', 'v150', 'v151')
    a.st('T_kret')
    a(f's_and_b32 {SDQ}, s2, 7\ns_mul_i32 {SDQ}, {SDQ}, 20\ns_lshr_b32 s32, s2, 3\ns_add_u32 {SDQ}, {SDQ}, s32')
    a(f's_lshl_b32 s32, {SDQ}, 2\ns_add_u32 s32, s32, s{SW}')
    a('s_lshl_b32 s33, s32, 12')
    a(f's_add_u32 s{SH}, s{SH}, s33\ns_addc_u32 s{SH+1}, s{SH+1}, 0\ns_mov_b32 s{SH+2}, 4096')
    a('v_and_b32 v160, 63, v0\nv_lshlrev_b32 v161, 4, v160')
    a('v_subrev_u32 v162, 32, v161\nv_add_u32 v163, 16, v162\nv_add_u32 v164, 0x1000, v162\nv_add_u32 v165, 0x1000, v163')
    HR = HRAW
    for i in range(4):
        if i == 0:
            a(f'buffer_load_dwordx4 v[{HR}:{HR+3}], v162, s[{SH}:{SH+3}], 0 offen{POL["h"]}')
            a(f'buffer_load_dwordx2 v[{HR+4}:{HR+5}], v163, s[{SH}:{SH+3}], 0 offen{POL["h"]}')
        else:
            a(f'buffer_load_dwordx4 v[{HR+6*i}:{HR+6*i+3}], v161, s[{SH}:{SH+3}], 0 offen offset:{1024*i-32}{POL["h"]}')
            a(f'buffer_load_dwordx2 v[{HR+6*i+4}:{HR+6*i+5}], v161, s[{SH}:{SH+3}], 0 offen offset:{1024*i-16}{POL["h"]}')
    a(f'buffer_load_dwordx4 v[{HR+24}:{HR+27}], v164, s[{SH}:{SH+3}], 0 offen{POL["h"]}')
    th = a(f'buffer_load_dwordx2 v[{HR+28}:{HR+29}], v165, s[{SH}:{SH+3}], 0 offen{POL["h"]}')
    a('s_lshl_b32 s34, s32, 1\nv_mov_b32 v166, s34')
    tD = a(f'buffer_load_ushort v153, v166, s[{SD}:{SD+3}], 0 offen')
    for r in range(11):
        for p in range(2):
            a(f'v_lshlrev_b32 v{KF+4*r+2*p}, 16, v{KR+2*r+p}\nv_and_b32 v{KF+4*r+2*p+1}, s40, v{KR+2*r+p}')
    for c in range(4):
        for h in range(2):
            a(f'v_lshlrev_b32 v{WF+4*(2*h)+c}, 16, v{WR+2*c+h}\nv_and_b32 v{WF+4*(2*h+1)+c}, s40, v{WR+2*c+h}')
    for t in range(8):
        for p in range(2):
            d = U+4*t+2*p
            for j in range(4):
                k = KF+4*(t+3-j)+2*p; w = WF+4*j+2*p
                if j == 0: a(f'v_pk_mul_f32 v[{d}:{d+1}], v[{k}:{k+1}], v[{w}:{w+1}]')
                else: a(f'v_pk_fma_f32 v[{d}:{d+1}], v[{k}:{k+1}], v[{w}:{w+1}], v[{d}:{d+1}]')
    for t in range(8):
        a.wait_vm(tv[t])
        for p in range(2):
            x = KF+4*t+2*p
            a(f'v_lshlrev_b32 v{x}, 16, v{VR+2*t+p}\nv_and_b32 v{x+1}, s40, v{VR+2*t+p}')
            d = U+4*t+2*p
            a(f'v_pk_mul_f32 v[{d}:{d+1}], v[{d}:{d+1}], v[{x}:{x+1}]')
    O = 12
    for c in range(4):
        for q in range(4):
            a(f'v_cvt_pk_bf16_f32 v{O+4*c+q}, v{U+4*(7-2*q)+c}, v{U+4*(6-2*q)+c}')
        a(f'ds_write_b128 v8, v[{O+4*c}:{O+4*c+3}] offset:{128*c}')
    a('s_waitcnt lgkmcnt(0)\ns_barrier')
    tr = [a(f'ds_read_b128 v[{O+4*c}:{O+4*c+3}], v9 offset:{4096*c}') for c in range(4)]
    for c in range(4):
        a.wait_lg(tr[c])
        tst = a(f'buffer_store_dwordx4 v[{O+4*c}:{O+4*c+3}], v7, {WS}, s{36+c} offen sc1')
    a.st('T_stored')
    for r in range(8):
        a(f'buffer_load_dwordx2 v[{QRT+2*r}:{QRT+2*r+1}], v{3+(r>>2)}, s[{SQC}:{SQC+3}], 0 offen offset:{1280*(r&3)}{POL["q"]}')
    a(f's_lshl_b32 s98, s2, 2\ns_add_u32 s98, s98, s{SW}')
    a(f's_cmp_lt_u32 s2, 128\ns_cselect_b32 s99, 0, {OOB}\ns_mul_i32 s97, s98, 5120')
    a('v_bfe_u32 v150, v0, 4, 2\nv_mul_u32_u24 v150, 1280, v150\nv_and_b32 v151, 15, v0\nv_lshl_add_u32 v150, v151, 4, v150\nv_or_b32 v150, s99, v150')
    for i in range(5):
        tq = a(f'buffer_load_dwordx4 v[{QST_RAW+4*i}:{QST_RAW+4*i+3}], v150, s[{SQC}:{SQC+3}], s97 offen offset:{256*i}{POL["s"]}')
    a(f's_lshl_b32 s41, s29, 7\ns_add_u32 s41, s41, s28\ns_lshl_b32 s41, s41, 2\ns_add_u32 s41, s41, {FT}')
    return dict(th=th, tD=tD, tst=tst, tq=tq)

def q_retile(a, tk):
    a(f's_lshl_b32 s97, s{SW}, 12')
    a('v_lshlrev_b32 v24, 2, v16\nv_lshl_add_u32 v25, v15, 8, s97')
    a.wait_vm(tk['tq'])
    for j in range(4):
        a(f'v_add_u32 v27, {j}, v24\nv_xor_b32 v27, v27, v15\nv_lshl_add_u32 v27, v27, 4, v25')
        a(f'ds_write_b128 v27, v[{QRT+4*j}:{QRT+4*j+3}]')
    S0 = 188
    for i in range(5):
        for e in range(4):
            r = QST_RAW + 4*i + e
            h = e & 1
            first = (i == 0 and e < 2)
            a(f'v_dot2_f32_bf16 v{S0+2*h}, v{r}, s39, {"0" if first else f"v{S0+2*h}"}')
            a(f'v_dot2_f32_bf16 v{S0+2*h+1}, v{r}, v{r}, {"0" if first else f"v{S0+2*h+1}"}')
    a('s_waitcnt lgkmcnt(0)')
    for i in range(4):
        a(f'v_add_u32 v27, {4*i}, v16\nv_xor_b32 v26, v27, v15\nv_lshlrev_b32 v26, 4, v26\nv_lshl_add_u32 v26, v27, 8, v26\nv_add_u32 v26, s97, v26')
        tr = a(f'ds_read_b128 v[{QRT+4*i}:{QRT+4*i+3}], v26')
    a(f'v_add_f32 v{S0}, v{S0}, v{S0+2}\nv_add_f32 v{S0+1}, v{S0+1}, v{S0+3}')
    for rot in (8, 4, 2, 1):
        for e in range(2): a(f'v_add_f32_dpp v{S0+e}, v{S0+e}, v{S0+e} row_ror:{rot} row_mask:0xf bank_mask:0xf')
    a(f's_lshr_b32 s97, s{SW}, 1\ns_lshl_b32 s99, s28, 1\ns_add_u32 s97, s97, s99\ns_mul_i32 s97, s97, 40960')
    a(f's_and_b32 s99, s{SW}, 1\ns_lshl_b32 s99, s99, 12\ns_add_u32 s97, s97, s99\ns_lshl_b32 s99, s29, 13\ns_add_u32 s97, s97, s99\ns_add_u32 s97, s97, {QG}')
    a('s_mov_b32 s33, 0x3acccccd\ns_mov_b32 s34, 0x3727c5ac')
    m, q_ = S0, S0+1
    a(f'v_mul_f32 v{m}, s33, v{m}\nv_mul_f32 v{q_}, s33, v{q_}\nv_fma_f32 v{q_}, -v{m}, v{m}, v{q_}\nv_max_f32 v{q_}, 0, v{q_}\nv_add_f32 v{q_}, s34, v{q_}\nv_rsq_f32 v{q_}, v{q_}')
    a.wait_lg(tr)
    for i in range(4):
        a(f'buffer_store_dwordx4 v[{QRT+4*i}:{QRT+4*i+3}], v3, {WS}, s97 offen offset:{1024*i} sc1')
    a(f'v_mul_f32 v{m}, v{m}, v{q_}\nv_sub_f32 v{m}, 0, v{m}')
    a(f's_lshl_b32 s97, s98, 5\ns_add_u32 s97, s97, {QS}')
    a(f's_cmp_lt_u32 s2, 128\ns_cselect_b32 s99, 0, {OOB}\nv_lshlrev_b32 v26, 3, v16\nv_or_b32 v26, s99, v26')
    a('s_mov_b32 exec_lo, 0x00010001\ns_mov_b32 exec_hi, 0x00010001')
    t = a(f'buffer_store_dwordx2 v[{S0}:{S0+1}], v26, {WS}, s97 offen sc1')
    a('s_mov_b64 exec, -1')
    return t

def conv_pre(a, tk):
    HR = HRAW
    a('v_and_b32 v2, 63, v0\nv_lshlrev_b32 v3, 4, v2')
    a(f's_mul_i32 s35, s{SW}, {WLDS}\ns_add_u32 s35, s35, {CONV_BASE}')
    a('v_add_u32 v14, s35, v3')
    a('v_and_b32 v15, 15, v2\nv_lshrrev_b32 v16, 4, v2')
    a('v_add_u32 v17, 1, v15\nv_and_b32 v18, 3, v17\nv_lshrrev_b32 v17, 2, v17')
    a(f'v_mul_u32_u24 v18, {CS}, v18\nv_lshl_add_u32 v18, v17, 3, v18\nv_lshl_add_u32 v18, v16, 4, v18\nv_add_u32 v18, s35, v18')
    a(f'v_lshlrev_b32 v19, 5, v15\nv_lshlrev_b32 v20, 4, v16\nv_sub_u32 v19, v19, v20\nv_add_u32 v19, s35, v19\nv_add_u32 v19, {4*CS+528}, v19')
    a('v_mov_b32 v28, 0\nv_mov_b32 v29, 0\nv_mov_b32 v30, 0\nv_mov_b32 v31, 0')
    a('s_mov_b64 exec, 0xffffffff')
    a(f'ds_write_b128 v14, v[28:31] offset:{4*CS}')
    a('s_mov_b64 exec, -1')
    T0 = 96
    def hround(i):
        h = HR+6*i
        if i == 4: a('s_mov_b64 exec, 3')
        off = 1024*i
        a(f'ds_write_b128 v14, v[{h}:{h+3}] offset:{off}')
        for q in range(4): a(f'v_alignbit_b32 v{T0+q}, v{h+q+1}, v{h+q}, 16')
        a(f'ds_write_b128 v14, v[{T0}:{T0+3}] offset:{CS+off}')
        a(f'v_mov_b32 v{T0+4}, v{h+1}\nv_mov_b32 v{T0+5}, v{h+2}\nv_mov_b32 v{T0+6}, v{h+3}\nv_mov_b32 v{T0+7}, v{h+4}')
        a(f'ds_write_b128 v14, v[{T0+4}:{T0+7}] offset:{2*CS+off}')
        for q in range(4): a(f'v_alignbit_b32 v{T0+8+q}, v{h+q+2}, v{h+q+1}, 16')
        a(f'ds_write_b128 v14, v[{T0+8}:{T0+11}] offset:{3*CS+off}')
        if i == 4: a('s_mov_b64 exec, -1')
    a.wait_vm(tk['tst'])
    a('s_waitcnt lgkmcnt(0)')
    if 'kgate' not in EXP: tag_from_epoch(a)
    a('s_barrier')
    a.flag_store('s41', 'v4', 'v5', rep=4, stride=128)
    a.st('C_tflag')
    a.wait_vm(tk['tD'])
    a.st('C_hret')
    a(f's_lshr_b32 s42, {SDQ}, 5\ns_lshl_b32 s42, s42, 2\ns_and_b32 s43, s2, 3\ns_add_u32 s42, s42, s43\ns_lshl_b32 s42, s42, 7\ns_add_u32 s42, s42, {FT}')
    a('v_and_b32 v4, 31, v2\nv_lshlrev_b32 v4, 2, v4')
    tk['tp'] = a.poll1_issue(1, 'v4', 's42', 5)
    for i in range(5): hround(i)
    AD = 28
    a('v_lshl_add_u32 v21, v16, 3, v15\nv_sub_u32 v21, 15, v21')
    a('v_and_b32 v22, 1, v21\nv_lshlrev_b32 v22, 4, v22\nv_lshlrev_b32 v22, v22, v153\nv_ashrrev_i32 v21, 1, v21')
    a('s_waitcnt lgkmcnt(0)')
    for wd in range(4):
        a(f'v_cmp_eq_u32 vcc, {wd}, v21\nv_cndmask_b32 v{AD+wd}, 0, v22, vcc')
    a.st('C_hcopy')

def conv_main(a, tk):
    a.poll1_check(tk['tp'], 1, 'v4', 's42', 5, alt=(5, 6, 7))
    a.st('C_tpoll')
    a(f's_add_u32 s43, s33, {UT}\ns_add_u32 s44, s35, {4*CS+512}')
    a('s_mov_b32 m0, s44')
    for i in range(4):
        tu = a(f'buffer_load_dwordx4 v3, {WS}, s43 offen offset:{1024*i} sc1 lds')
    a('s_mov_b32 s39, 0x3f803f80')
    tqs = q_retile(a, tk)
    a.wait_vm(tu)
    a.st('C_uret')
    a('v_min_u32 v7, 23, v2\nv_lshlrev_b32 v7, 4, v7\nv_min_u32 v6, 39, v2\nv_lshlrev_b32 v6, 4, v6')
    a(f's_and_b32 s45, s2, 15\ns_lshl_b32 s52, s45, 9\ns_add_u32 s52, s52, {FW}\ns_lshl_b32 s45, s45, 10\ns_add_u32 s45, s45, {FQ}')
    tfw = []
    AD = 28
    A = [64, 128]; B = [96, 160]; ACC = 32
    def loads(buf):
        L = []
        for x in range(8):
            L.append(f'ds_read_b128 v[{B[buf]+4*x}:{B[buf]+4*x+3}], v19 offset:{512*x}')
            L.append(f'ds_read_b64 v[{A[buf]+4*x}:{A[buf]+4*x+1}], v18 offset:{512*x}')
            L.append(f'ds_read_b64 v[{A[buf]+4*x+2}:{A[buf]+4*x+3}], v18 offset:{512*x+8}')
        return L
    for s in loads(0): a(s)
    a('v_add_u32 v18, 64, v18\nv_subrev_u32 v19, 64, v19')
    a('s_waitcnt lgkmcnt(0)')
    for t in range(8):
        a(f'v_mfma_f32_16x16x32_bf16 v[{ACC+4*t}:{ACC+4*t+3}], v[{AD}:{AD+3}], v[{B[0]+4*t}:{B[0]+4*t+3}], 0')
    QR = 192; QLO = 208; QST = 224; LNQ = 96
    extra = {}
    q_tok = []; s_tok = []
    def fq_publish():
        a.wait_vm(tqs)
        a('s_barrier')
        a(f's_lshl_b32 s53, s2, 2\ns_add_u32 s53, s53, {FQ}')
        a.flag_store('s53', 'v26', 'v27', rep=16, stride=1024)
        a.st('C_fqpub')
    def fw_issue():
        a.st('C_b3')
        tfw.append(a.poll1_issue(4, 'v6', 's45', 20))
        tfw.append(a.poll1_issue(4, 'v7', 's52', 8))
    def fw_check():
        a.st('C_b4')
        a.poll1_check(tfw[1], 4, 'v6', 's45', 20, barrier=False)
        a.st('C_fq')
        a.poll1_check(tfw[1], 4, 'v7', 's52', 8)
        a.st('C_fw')
    def ql_addr():
        a('v_mul_u32_u24 v24, 40960, v16\nv_lshl_add_u32 v24, v15, 4, v24')
        a(f's_mul_i32 s48, s{SW}, {16*40960}\ns_lshl_b32 s49, {SDQ}, 8\ns_add_u32 s48, s48, s49')
        a(f's_add_u32 s46, s48, {QG}\ns_add_u32 s49, s48, {YG}\ns_add_u32 s48, s48, {X1}')
        a(f's_lshl_b32 s47, s{SW}, 12\ns_add_u32 s47, s47, {QS}')
    def q_load(k):
        def f():
            if k > 0: a(f's_add_u32 s46, s46, {4*40960}')
            q_tok.append(a(f'buffer_load_dwordx4 v[{QR+4*k}:{QR+4*k+3}], v24, {WS}, s46 offen sc1'))
            s_tok.append(a(f'buffer_load_dwordx4 v[{QST+4*k}:{QST+4*k+3}], v3, {WS}, s47 offen offset:{1024*k} sc1'))
        return f
    extra[FQBLK] = [fq_publish]
    extra.setdefault(2, []).append(ql_addr)
    extra.setdefault(PBLK, []).append(fw_issue)
    unp = []
    for k in range(4):
        unp.append(lambda k=k: a.wait_vm(s_tok[k]))
        for i in range(4*k, 4*k+4):
            unp.append(f'v_lshlrev_b32 v{QLO+i}, 16, v{QR+i}')
            unp.append(f'v_and_b32 v{QR+i}, s40, v{QR+i}')
        for tok in range(2):
            for c in range(4):
                iq = 4*k + 2*tok + (c >> 1)
                rq = (QLO+iq) if (c & 1) == 0 else (QR+iq)
                unp.append(f'v_fma_f32 v{LNQ+8*k+4*tok+c}, v{rq}, v{QST+4*k+2*tok+1}, v{QST+4*k+2*tok}')
    extra[7] = unp
    import g2g
    b0 = PBLK + 1
    extra[b0] = [fw_check] + [q_load(k) for k in range(4)]
    for i in range(5):
        L = [f's_add_u32 s81, s{SW}, {4*i}', 's_min_u32 s81, s81, 18'] + g2g.quad_dma_dyn('s81', 'v3')
        extra.setdefault(min(b0 + (i+1)//2, 6), []).extend(L)
    cs_tok = []
    extra.setdefault(6, []).extend(g2g.cs_issue_list('v3'))
    extra[6].append(lambda: cs_tok.append(a.vm_issued))
    for blk in range(8):
        if blk == 7: a.st('C_b7')
        buf = blk & 1
        L = loads(buf ^ 1) if blk < 7 else []
        X = list(extra.get(blk, []))
        n = 0
        for q in range(8):
            for dl in range(8 - q):
                t = q + dl
                a(f'v_mfma_f32_16x16x32_bf16 v[{ACC+4*t}:{ACC+4*t+3}], v[{A[buf]+4*q}:{A[buf]+4*q+3}], v[{B[buf]+4*dl}:{B[buf]+4*dl+3}], v[{ACC+4*t}:{ACC+4*t+3}]')
                if n < len(L): a(L[n])
                if X and (n >= len(L) or n % 2 == 0 or len(X) > 36 - n):
                    x = X.pop(0)
                    x() if callable(x) else a(x)
                n += 1
        for x in X: x() if callable(x) else a(x)
        if blk < 7:
            a('v_add_u32 v18, 64, v18\nv_subrev_u32 v19, 64, v19')
            a('s_waitcnt lgkmcnt(0)')
    a.st('C_loop')
    a('v_lshlrev_b32 v21, 6, v15\nv_lshl_add_u32 v21, v16, 4, v21\nv_add_u32 v21, s35, v21')
    for t in range(8):
        r = ACC+4*t
        a(f'ds_write_b128 v21, v[{r}:{r+3}] offset:{1024*t}')
    a(f's_lshl_b32 s47, s{SW}, 11\ns_add_u32 s47, s47, {CONV_BASE}\nv_lshl_add_u32 v22, v2, 3, s47')
    a(f'v_add_u32 v23, {2*WLDS}, v22')
    a('s_waitcnt lgkmcnt(0)\ns_barrier')
    YV = 64
    tk = []
    for k in range(4):
        for c in range(4):
            base = 'v22' if c < 2 else 'v23'
            t = a(f'ds_read_b64 v[{YV+8*k+2*c}:{YV+8*k+2*c+1}], {base} offset:{(c&1)*WLDS + 512*k}')
        tk.append(t)
    O = 128
    for k in range(4):
        a.wait_lg(tk[k])
        for tok in range(2):
            for c in range(4):
                iq = 4*k + 2*tok + (c >> 1)
                rq = (QLO+iq) if (c & 1) == 0 else (QR+iq)
                a(f'v_fma_f32 v{rq}, v{LNQ+8*k+4*tok+c}, v{YV+8*k+2*c+tok}, v{rq}')
        o = O + 4*k
        for tok in range(2):
            for h in range(2):
                iq = 4*k + 2*tok + h
                a(f'v_cvt_pk_bf16_f32 v{o+2*tok+h}, v{QLO+iq}, v{QR+iq}')
        a(f'buffer_store_dwordx4 v[{o}:{o+3}], v24, {WS}, s48 offen sc1')
        if k < 3: a(f's_add_u32 s48, s48, {4*40960}')
    a.st('C_x1st')
    OY = 48
    for k in range(4):
        o = OY + 4*k
        for tok in range(2):
            for h in range(2):
                a(f'v_cvt_pk_bf16_f32 v{o+2*tok+h}, v{YV+8*k+4*h+tok}, v{YV+8*k+4*h+2+tok}')
    if not STAGE1:
        a.wait_vm(cs_tok[0])
        g2g.cs_finish(a)
    a('s_waitcnt vmcnt(0)\ns_barrier')
    a(f's_lshl_b32 s50, s2, 2\ns_add_u32 s51, s50, {FY}\ns_add_u32 s50, s50, {FX1}')
    a.flag_store('s50', 'v4', 'v5', rep=16, stride=1024)
    a.st('C_x1flag')
    if STAGE1:
        for k in range(4):
            o = OY + 4*k
            a(f'buffer_store_dwordx4 v[{o}:{o+3}], v24, {WS}, s49 offen sc1')
            if k < 3: a(f's_add_u32 s49, s49, {4*40960}')
        return
    a(f'v_mov_b32 v{g2g.YOFF}, v24\ns_mov_b32 {g2g.sYB}, s49\ns_mov_b32 {g2g.sROLE}, 1')
    g2g.l16(a)
    lab = a.newlab('nd')
    a(f's_cmp_eq_u32 s{SW}, 1\ns_cbranch_scc1 {lab}')
    a(f's_min_u32 s82, s{SW}, 1\ns_sub_u32 s82, s{SW}, s82\ns_add_u32 s82, s82, 19')
    sv = a.vm_issued
    for i in range(7):
        a('s_min_u32 s81, s82, 38')
        for x in g2g.quad_dma_dyn('s81', f'v{g2g.L16}'): a(x)
        a('s_add_u32 s82, s82, 3')
    a.vm_issued = sv
    a.label(lab)
    g2g.g1_consts(a)

def allred_rows(a, regs, tmp):
    for r in regs:
        a(f'v_mov_b32 {tmp}, {r}\nv_permlane16_swap_b32 {tmp}, {r}\nv_add_f32 {r}, {r}, {tmp}')
    for r in regs:
        a(f'v_mov_b32 {tmp}, {r}\nv_permlane32_swap_b32 {tmp}, {r}\nv_add_f32 {r}, {r}, {tmp}')

QR0 = 164
QS_LDS = 0x15000
PR, PO, PCS, PONE = 20, 116, 208, 204
SG, SU, SDN, SQ = 8, 12, 16, 20

QRAW = 164
def qs_issue(a):
    a('s_mul_i32 s29, s50, 10240')
    a('v_mul_u32_u24 v13, 2560, v4\nv_lshl_add_u32 v13, v3, 4, v13')
    tk = []
    for g in range(2):
        for i in range(5):
            r = QRAW + 20*g + 4*i
            tk.append(a(f'buffer_load_dwordx4 v[{r}:{r+3}], v13, s[{SQ}:{SQ+3}], s29 offen offset:{1280*g + 256*i}'))
    return tk

def qs_finish(a, tk):
    S0 = 208
    for i in range(5):
        for g in range(2): a.wait_vm(tk[5*g+i]) if i == 0 or g == 1 else None
        for e in range(4):
            for g in range(2):
                r = QRAW + 20*g + 4*i + e
                s_, q_ = S0+2*g, S0+1+2*g
                first = (i == 0 and e == 0)
                a(f'v_dot2_f32_bf16 v{s_}, v{r}, s38, {"0" if first else f"v{s_}"}')
                a(f'v_dot2_f32_bf16 v{q_}, v{r}, v{r}, {"0" if first else f"v{q_}"}')
    for rot in (8, 4, 2, 1):
        for e in range(4): a(f'v_add_f32_dpp v{S0+e}, v{S0+e}, v{S0+e} row_ror:{rot} row_mask:0xf bank_mask:0xf')
    a('s_mov_b32 s33, 0x3acccccd\ns_mov_b32 s34, 0x3727c5ac')
    for tok in range(2):
        m, q_ = S0+2*tok, S0+1+2*tok
        a(f'v_mul_f32 v{m}, s33, v{m}\nv_mul_f32 v{q_}, s33, v{q_}\nv_fma_f32 v{q_}, -v{m}, v{m}, v{q_}\nv_max_f32 v{q_}, 0, v{q_}\nv_add_f32 v{q_}, s34, v{q_}\nv_rsq_f32 v{q_}, v{q_}')
        a(f's_nop 0\nv_mul_f32 v{m}, v{m}, v{q_}\nv_sub_f32 v{m}, 0, v{m}')
    a(f's_lshl_b32 s31, s50, 6\ns_add_u32 s31, s31, {QS}\nv_lshlrev_b32 v16, 4, v4')
    a('s_mov_b32 exec_lo, 0x00010001\ns_mov_b32 exec_hi, 0x00010001')
    t = a(f'buffer_store_dwordx4 v[{S0}:{S0+3}], v16, {WS}, s31 offen sc1')
    a('s_mov_b64 exec, -1')
    return t

def p_perms(a, t, ob):
    r = PR+16*t; O = PO+16*ob
    for c in range(4):
        for p in range(4):
            sel = 's36' if (c & 1) == 0 else 's37'
            a(f'v_perm_b32 v{O+4*c+p}, v{r+2*(2*p+1)+(c>>1)}, v{r+2*(2*p)+(c>>1)}, {sel}')

def w1_issue(a, t, T, masked=False):
    if 'oldtask' in EXP:
        a(f's_mul_i32 s24, {T}, 3277\ns_lshr_b32 s24, s24, 16\ns_mul_i32 s26, s24, 20\ns_sub_u32 s26, {T}, s26')
    else:
        a(f's_mul_i32 s26, {T}, 1214\ns_lshr_b32 s26, s26, 16\ns_mul_i32 s24, s26, 54\ns_sub_u32 s24, {T}, s24')
    a(f's_cmp_ge_u32 s24, 27\ns_cselect_b32 s{SG}, s{SU}, s{SGS}\ns_cselect_b32 s{SG+1}, s{SU+1}, s{SGS+1}')
    a('s_cselect_b32 s29, 27, 0\ns_cselect_b32 s30, 512, 0\ns_sub_u32 s24, s24, s29')
    a(f's_mul_i32 s31, s26, {32*3456}\ns_lshl_b32 s32, s24, 7\ns_add_u32 s31, s31, s32')
    v0 = PMSK if masked else 5
    for e in range(8):
        tk = a(f'buffer_load_dwordx2 v[{PR+16*t+2*e}:{PR+16*t+2*e+1}], v{v0+(e>>1)}, s[{SG}:{SG+3}], s31 offen offset:{3456*(e&1)}{POL["w"]}')
    a(f's_mul_i32 s31, s24, {4*40960}\ns_lshl_b32 s32, s26, 11\ns_add_u32 s31, s31, s32\ns_add_u32 s31, s31, s30\ns_add_u32 s{41+t}, s31, {W1P}')
    a(f's_mul_i32 s31, s26, 13824\ns_lshl_b32 s32, s24, 9\ns_add_u32 s31, s31, s32\ns_lshr_b32 s30, s30, 3\ns_add_u32 s31, s31, s30\ns_add_u32 s{47+t}, s31, {CSP}')
    return tk

def w1_finish(a, t, tk, ob, masked=False):
    a.wait_vm(tk)
    p_perms(a, t, ob)
    O = PO+16*ob; C = PCS + 16*ob
    vd = PMSK+4 if masked else 9
    vc = PMSK+5 if masked else 19
    vd2 = PMSK+6 if masked else 10
    for c in range(4):
        a(f'v_mfma_f32_16x16x32_bf16 v[{C+4*c}:{C+4*c+3}], v[{O+4*c}:{O+4*c+3}], v[{PONE}:{PONE+3}], 0')
        a(f'buffer_store_dwordx4 v[{O+4*c}:{O+4*c+3}], v{vd if c < 2 else vd2}, {WS}, s{41+t} offen offset:{128*(c&1)+256*(c>>1)} sc1')
    a('s_mov_b32 exec_lo, 0x00010001\ns_mov_b32 exec_hi, 0x00010001')
    for c in range(4):
        a(f'buffer_store_dwordx4 v[{C+4*c}:{C+4*c+3}], v{vc}, {WS}, s{47+t} offen offset:{16*c} sc1')
    a('s_mov_b64 exec, -1')

def wd_addr(a, vl_quad, vl_grp, vsa, vsb, vd, vt):
    a(f'v_lshrrev_b32 v{vsa}, 1, v{vl_grp}\nv_lshlrev_b32 v{vsa}, 4, v{vsa}\nv_and_b32 v{vt}, 1, v{vl_grp}\nv_lshl_add_u32 v{vsa}, v{vt}, 2, v{vsa}')
    a(f'v_mul_u32_u24 v{vsa}, 1280, v{vsa}\nv_lshl_add_u32 v{vsa}, v{vl_quad}, 3, v{vsa}\nv_add_u32 v{vsb}, 10240, v{vsa}')
    a(f'v_and_b32 v{vd}, 3, v{vl_quad}\nv_lshlrev_b32 v{vd}, 4, v{vd}\nv_lshl_add_u32 v{vd}, v{vl_grp}, 8, v{vd}')
    a(f'v_lshrrev_b32 v{vt}, 2, v{vl_quad}\nv_mul_u32_u24 v{vt}, 55296, v{vt}\nv_add_u32 v{vd}, v{vt}, v{vd}')

def wd_issue(a, raw, T, sdst, srd, vsa, vsb, st=('s29', 's30', 's31', 's32')):
    x, y, z, u = st
    a(f's_min_u32 {x}, {T}, 539\ns_mul_i32 {y}, {x}, 6554\ns_lshr_b32 {y}, {y}, 16')
    a(f's_mul_i32 {z}, {y}, 10\ns_sub_u32 {x}, {x}, {z}')
    a(f's_mul_i32 {z}, {y}, 4682\ns_lshr_b32 {z}, {z}, 16\ns_mul_i32 {u}, {z}, 14\ns_sub_u32 {u}, {y}, {u}')
    a(f's_mov_b32 s57, {u}\ns_mov_b32 s58, 0\ns_mov_b32 s55, 0')
    for q0, unit, pair in ((4, 2, 1), (6, 3, 1), (8, 4, 0), (12, 6, 1)):
        a(f's_sub_u32 s63, {u}, {q0}')
        if pair: a('s_lshl_b32 s63, s63, 1')
        a(f's_cmp_ge_u32 {u}, {q0}\ns_cselect_b32 s57, s63, s57\ns_cselect_b32 s58, {unit}, s58\ns_cselect_b32 s55, {pair}, s55')
    a(f's_cmp_eq_u32 {z}, 3\ns_cselect_b32 s63, 5, 6\ns_mul_i32 s55, s55, s63')
    a(f'v_mul_u32_u24 v{vsa+WDA_T}, s55, v{vsa+WDA_D}\nv_add_u32 v{vsa+WDA_T+1}, v{vsb}, v{vsa+WDA_T}\nv_add_u32 v{vsa+WDA_T}, v{vsa}, v{vsa+WDA_T}')
    a(f's_lshl_b32 {z}, {z}, 2\ns_add_u32 s57, s57, {z}')
    a(f's_mul_i32 {z}, s57, 7\ns_mul_i32 {u}, s57, 6\ns_add_u32 {u}, {u}, 12\ns_cmp_lt_u32 s57, 12\ns_cselect_b32 {z}, {z}, {u}\ns_add_u32 {z}, {z}, s58')
    a(f's_mul_i32 {z}, {z}, {16*1280}\ns_lshl_b32 {u}, {x}, 7\ns_add_u32 {z}, {z}, {u}')
    for e in range(8):
        tk = a(f'buffer_load_dwordx2 v[{raw+2*e}:{raw+2*e+1}], v{vsa+WDA_T+(e>>2)}, s[{srd}:{srd+3}], {z} offen offset:{1280*(e&3)}{POL["d"]}')
    a(f's_mul_i32 {z}, {x}, {4*55296}\ns_lshl_b32 {u}, {y}, 10\ns_add_u32 {z}, {z}, {u}\ns_add_u32 {sdst}, {z}, {WDP}')
    return tk

def wd_finish(a, raw, O, tk, sdst, vd, sel0, sel1):
    a.wait_vm(tk)
    for c in range(4):
        for p in range(4):
            sel = sel0 if (c & 1) == 0 else sel1
            a(f'v_perm_b32 v{O+4*c+p}, v{raw+2*(2*p+1)+(c>>1)}, v{raw+2*(2*p)+(c>>1)}, {sel}')
    for c in range(4):
        t = a(f'buffer_store_dwordx4 v[{O+4*c}:{O+4*c+3}], v{vd}, {WS}, {sdst} offen offset:{64*c} sc1')
    return t

SGS = 52
WDA = 240
WDA_D, WDA_T = 4, 5
def p_flag(a, base, stride, sreg='s56'):
    a(f's_lshl_b32 {sreg}, s28, 2\ns_add_u32 {sreg}, {sreg}, {base}')
    a.flag_store(sreg, 'v16', 'v17', rep=16, stride=stride)

def phase_P(a):
    global tag_from_epoch
    if 'kgate' in EXP:
        a('s_waitcnt lgkmcnt(0)')
        tag_from_epoch(a)
        tag_from_epoch = lambda a: None
        a(f'v_mov_b32 v4, 0\ns_sub_u32 s42, s2, 96\ns_lshl_b32 s42, s42, 7\ns_add_u32 s42, s42, {FK}')
        a.poll_w0(1, 'v4', 's42', 5)
        a.st('P_gate')
    if 'pwait' in EXP:
        a('s_waitcnt lgkmcnt(0)')
        tag_from_epoch(a)
        tag_from_epoch = lambda a: None
        a(f'v_and_b32 v4, 31, v0\nv_lshlrev_b32 v4, 2, v4\ns_mov_b32 s42, {FT}')
        a.poll_w0(1, 'v4', 's42', 5)
    a(f's_mov_b32 s{SGS}, s{SG}\ns_mov_b32 s{SGS+1}, s{SG+1}')
    a('s_sub_u32 s28, s2, 160')
    a('v_and_b32 v2, 63, v0\nv_and_b32 v3, 15, v2\nv_lshrrev_b32 v4, 4, v2')
    a('s_mov_b32 s36, 0x05040100\ns_mov_b32 s37, 0x07060302\ns_mov_b32 s38, 0x3f803f80')
    a(f's_lshl_b32 s50, s28, 2\ns_add_u32 s50, s50, s{SW}')
    a('s_mul_i32 s25, s50, 3')
    def w1_addr():
        a('v_mul_u32_u24 v5, 27648, v4\nv_lshl_add_u32 v5, v3, 3, v5')
        a('v_add_u32 v6, 6912, v5\nv_add_u32 v7, 13824, v5\nv_add_u32 v8, 20736, v5')
        a('v_and_b32 v12, 3, v3\nv_lshlrev_b32 v12, 4, v12\nv_and_b32 v19, 1, v4\nv_lshl_add_u32 v12, v19, 6, v12')
        a('v_lshrrev_b32 v19, 1, v4\nv_lshl_add_u32 v12, v19, 10, v12')
        a('v_lshrrev_b32 v19, 2, v3\nv_mul_u32_u24 v9, 40960, v19\nv_add_u32 v9, v9, v12\nv_xor_b32 v10, 64, v9')
        a('v_lshlrev_b32 v19, 7, v4')
        for i in range(4): a(f'v_mov_b32 v{PONE+i}, s38')
        a(f's_cmp_lt_u32 s25, 1080\ns_cselect_b32 s35, 0, {OOB}')
        for r in (5, 6, 7, 8, 9, 10, 19): a(f'v_or_b32 v{r}, s35, v{r}')
        wd_addr(a, 3, 4, WDA, WDA+1, WDA+2, WDA+3)
        a(f'v_lshrrev_b32 v{WDA+WDA_D}, 1, v4\nv_mul_u32_u24 v{WDA+WDA_D}, {16*1280}, v{WDA+WDA_D}')
    def w1_task(t):
        a(f's_add_u32 s33, s25, {t}\ns_min_u32 s33, s33, 1079')
        return w1_issue(a, t, 's33')
    def first_batch():
        if 'tagw' in EXP: a('s_waitcnt lgkmcnt(0)')
        tk = [w1_task(t) for t in range(NB1)]
        if NB1 > 0 and NB1 < 3: a.wait_vm(tk[0])
        a.st('P_b1')
        tk += [w1_task(t) for t in range(NB1, 3)]
        return tk
    WDS = ('s29', 's30', 's31', 's32')
    w1_addr()
    tA = first_batch()
    a.st('P_issued')
    for t in range(3): w1_finish(a, t, tA[t], t & 1)
    tw = a.vm_issued
    a.st('P_w1st')
    td = wd_issue(a, PR+48, 's50', 's44', SDN, WDA, WDA+1, st=WDS)
    a('s_add_u32 s54, s50, 384\ns_cmp_lt_u32 s50, 156\ns_cselect_b32 s51, 1, 0')
    a('s_waitcnt lgkmcnt(0)')
    tag_from_epoch(a)
    a.wait_vm(tw)
    a('s_barrier')
    p_flag(a, FW, 512)
    a.st('P_w1')
    g2g_guarded(a, 's51', lambda: wd_issue(a, PR+64, 's54', 's45', SDN, WDA, WDA+1, st=WDS))
    wd_finish(a, PR+48, PO, td, 's44', WDA+2, 's36', 's37')
    def second():
        a('s_waitcnt vmcnt(0)')
        wd_finish(a, PR+64, PO+16, None, 's45', WDA+2, 's36', 's37')
    g2g_guarded(a, 's51', second)
    a.label('L_pp_end')
    a('s_waitcnt vmcnt(0)\ns_barrier')
    a.reset_counts()
    p_flag(a, FWD, 512)
    a.st('P_done')
    if STAGE1: return
    import g2g
    a(f's_mov_b32 {g2g.sROLE}, 0')
    g2g.l16(a)
    a(f'v_lshrrev_b32 v88, 4, v{g2g.L16}\nv_min_u32 v88, 23, v88\nv_lshlrev_b32 v88, 4, v88')
    a(f's_and_b32 s45, s2, 15\ns_lshl_b32 s45, s45, 9\ns_add_u32 s45, s45, {FW}')
    a.poll_w0(4, 'v88', 's45', 84)
    a.st('P_fw')
    for i in range(10):
        a(f's_add_u32 s81, s{SW}, {4*i}\ns_min_u32 s81, s81, 38')
        for x in g2g.quad_dma_dyn('s81', f'v{g2g.L16}'): a(x)
    for x in g2g.cs_issue_list(f'v{g2g.L16}'): a(x)
    g2g.g1_consts(a)
    a('s_waitcnt vmcnt(0)')
    g2g.cs_finish(a)

def g2g_guarded(a, reg, fn):
    import g2g
    g2g.guarded(a, reg, fn)
```

```python
from g2base import *
import os
SH = '' if os.environ.get('PLAIN') else ' sc1'

sC, sS, sU0, sW1, sTB, sCG, sROLE = 's64', 's65', 's66', 's67', 's68', 's69', 's70'
sW4K = 's71'
sYB = 's73'
L16, WA, HOFF, NM, K1, IR2, CSR, CSA, YOFF = 224, 225, 228, 229, 230, 231, 232, 248, 249
XF = 64
WB = 232
NB, AHEAD = 6, 4
CS_LDS = 159744
RED = 29*4096
SOUT = 8

def role_setup(a):
    a('s_and_b32 s62, s2, 7\ns_lshr_b32 s63, s2, 3')
    a(f's_lshr_b32 {sC}, s62, 1\ns_lshl_b32 {sC}, {sC}, 2\ns_lshr_b32 {sS}, s63, 3\ns_add_u32 {sC}, {sC}, {sS}')
    a(f's_lshr_b32 {sTB}, s62, 1\ns_lshl_b32 {sTB}, {sTB}, 3\ns_add_u32 {sTB}, {sTB}, {sS}')
    a(f's_and_b32 s62, s62, 1\ns_lshl_b32 {sCG}, s62, 2\ns_add_u32 {sTB}, {sTB}, {sCG}')
    a(f's_and_b32 {sCG}, s63, 7\ns_lshl_b32 {sS}, s62, 3\ns_add_u32 {sS}, {sS}, {sCG}')
    a(f's_mul_i32 {sU0}, {sS}, 7\ns_mul_i32 s62, {sS}, 6\ns_add_u32 s62, s62, 12\ns_cmp_lt_u32 {sS}, 12\ns_cselect_b32 {sU0}, {sU0}, s62')
    a(f's_mul_i32 {sW1}, {sU0}, 40960\ns_add_u32 {sW1}, {sW1}, {W1P}')
    a(f's_lshl_b32 {sW4K}, s{SW}, 12')

def l16(a):
    a(f'v_mbcnt_lo_u32_b32 v{L16}, -1, 0\nv_mbcnt_hi_u32_b32 v{L16}, -1, v{L16}\nv_lshlrev_b32 v{L16}, 4, v{L16}')

def quad_src(g):
    return (g % 3)*40960 + (g//3)*4096 if g < 30 else 122880 + (g-30)*4096

def quad_dma_dyn(sg, vl, t=('s74', 's75', 's76')):
    x, y, z = t
    L = [f's_mul_i32 {x}, {sg}, 21846', f's_lshr_b32 {x}, {x}, 16', f's_mul_i32 {y}, {x}, 3', f's_sub_u32 {y}, {sg}, {y}',
         f's_mul_i32 {y}, {y}, 40960', f's_lshl_b32 {x}, {x}, 12', f's_add_u32 {x}, {x}, {y}',
         f's_lshl_b32 {z}, {sg}, 12',
         f's_cmp_lt_u32 {sg}, 30', f's_cselect_b32 {x}, {x}, {z}', f's_add_u32 {x}, {x}, {sW1}', f's_mov_b32 m0, {z}']
    for i in range(4):
        L.append(f'buffer_load_dwordx4 {vl}, {WS}, {x} offen offset:{1024*i}{SH} lds')
    return L

CSV = 240
CSA0 = 232
def cs_issue_list(vl16):
    vt = CSV
    L = []
    def a(t): L.extend(x for x in t.split('\n') if x)
    a(f'v_lshrrev_b32 v{vt}, 4, {vl16}')
    a(f'v_bfe_u32 v{vt+1}, v{vt}, 3, 1\ns_lshl_b32 s74, s{SW}, 1\nv_add_u32 v{vt+1}, s74, v{vt+1}\nv_min_u32 v{vt+1}, 6, v{vt+1}')
    a(f'v_and_b32 v{vt+2}, 7, v{vt}\nv_lshlrev_b32 v{vt+2}, 4, v{vt+2}')
    a(f'v_lshl_add_u32 v{vt+3}, v{vt+1}, 7, v{vt+2}')
    a(f'v_lshrrev_b32 v{vt}, 4, v{vt}\nv_mul_u32_u24 v{vt}, {5*13824}, v{vt}\nv_add_u32 v{vt}, v{vt}, v{vt+3}')
    a(f's_lshl_b32 s74, {sU0}, 7\ns_add_u32 s74, s74, {CSP}')
    for i in range(5):
        a(f'buffer_load_dwordx4 a[{CSA0+4*i}:{CSA0+4*i+3}], v{vt}, {WS}, s74 offen sc1')
        if i < 4: a('s_add_u32 s74, s74, 13824')
    a(f'v_bfe_u32 v{vt+3}, v{vt+2}, 6, 1\nv_lshlrev_b32 v{vt+3}, 4, v{vt+3}\nv_lshl_add_u32 v{vt+3}, v{vt+1}, 7, v{vt+3}')
    a(f'v_bfe_u32 v{vt+2}, v{vt+2}, 4, 2\nv_lshl_add_u32 v{vt+3}, v{vt+2}, 2, v{vt+3}\nv_add_u32 v{vt+3}, {CS_LDS}, v{vt+3}')
    return L

def cs_finish(a):
    vt = CSV
    for i in range(20): a(f'v_accvgpr_read_b32 v{64+i}, a{CSA0+i}')
    for i in range(1, 5):
        for e in range(4): a(f'v_add_f32 v{64+e}, v{64+e}, v{64+4*i+e}')
    for r in range(64, 68):
        a(f'v_mov_b32 v{vt}, v{r}\nv_permlane16_swap_b32 v{vt}, v{r}\nv_add_f32 v{r}, v{r}, v{vt}')
    for r in range(64, 68):
        a(f'v_mov_b32 v{vt}, v{r}\nv_permlane32_swap_b32 v{vt}, v{r}\nv_add_f32 v{r}, v{r}, v{vt}')
    for q3 in range(4):
        a(f'ds_write_b32 v{vt+3}, v{64+q3} offset:{(q3&1)*64 + (q3>>1)*32}')

def g1_consts(a):
    t = 250
    a(f'v_lshrrev_b32 v{t}, 4, v{L16}')
    a(f'v_bfe_u32 v{t+1}, v{t}, 2, 1\nv_bfe_u32 v{t+2}, v{t}, 4, 1\nv_lshl_add_u32 v{t+1}, v{t+2}, 1, v{t+1}')
    a(f'v_bfe_u32 v{t+2}, v{t}, 1, 1\nv_lshrrev_b32 v{t+3}, 5, v{t}\nv_xor_b32 v{t+3}, v{t+3}, v{t+2}\nv_lshl_add_u32 v{t+1}, v{t+3}, 2, v{t+1}')
    a(f'v_lshl_add_u32 v{t+1}, v{t+2}, 4, v{t+1}\nv_and_b32 v{t+2}, 1, v{t}\nv_lshl_add_u32 v{t+1}, v{t+2}, 3, v{t+1}')
    a(f'v_bfe_u32 v{t+2}, v{t}, 3, 1\nv_lshl_add_u32 v{t+1}, v{t+2}, 5, v{t+1}')
    a(f'v_lshlrev_b32 v{WA}, 4, v{t+1}\nv_add_u32 v{WA+1}, 0x10000, v{WA}\nv_add_u32 v{WA+2}, 0x20000, v{WA}')
    a(f'v_and_b32 v{t+1}, 7, v{t}\nv_bfe_u32 v{t+2}, v{t}, 4, 1\nv_lshl_add_u32 v{t+1}, v{t+1}, 1, v{t+2}\nv_lshlrev_b32 v{t+1}, 4, v{t+1}')
    a(f'v_bfe_u32 v{t+2}, v{t}, 3, 1\nv_mul_u32_u24 v{t+2}, 55296, v{t+2}\nv_add_u32 v{t+1}, v{t+1}, v{t+2}')
    a(f'v_lshrrev_b32 v{t+2}, 5, v{t}\nv_lshl_add_u32 v{HOFF}, v{t+2}, 8, v{t+1}')
    a(f'v_lshlrev_b32 v{CSA}, 6, v{t+2}\nv_add_u32 v{CSA}, {CS_LDS}, v{CSA}')

UORD = [[0, 1, 2, 3, 4, 5, 6], [4, 5, 6, 3, 0, 1, 2]]
FREE1 = list(range(1, 9)) + list(range(11, 19)) + list(range(21, 29)) + [9, 10, 19, 20, 29, 30, 31]
def g1_slot(layer, g):
    if layer == 0: return g % 39
    if g < 30: return 1 + 10*(g % 3) + g//3
    if g < 39: return 31 + (g - 30) if g < 38 else 0
    return FREE1[g - 39]
def g1_seq(layer):
    seq = []
    for ks in range(40):
        for u in range(3): seq.append((u, ks, g1_slot(layer, 3*(ks >> 2) + u)))
    for u in range(3, 7):
        for ks in range(40): seq.append((u, ks, g1_slot(layer, 30 + 10*(u-3) + (ks >> 2))))
    return seq
PRE1 = [(1 + 10*p + j, (4 + p)*40960 + j*4096) for j in (8, 9) for p in range(3)] + [(g1_slot(1, 30 + j), 3*40960 + j*4096) for j in range(9)]

def lds_addr(off):
    return (f'v{WA + (off >> 16)}', off & 0xffff)

def guarded(a, cond_reg, fn):
    lab = a.newlab('gd')
    a(f's_cmp_eq_u32 {cond_reg}, 0\ns_cbranch_scc1 {lab}')
    sv = a.vm_issued
    fn()
    a.vm_issued = sv
    a.label(lab)

def poll2(a, toks, regs, issue, cmp, alt=None, final=None):
    lspin = a.newlab('spin'); lback = a.newlab('back')
    a.wait_vm(toks)
    cmp(None)
    a(f's_cbranch_vccnz {lspin}')
    a.label(lback)
    def tail():
        a.label(lspin)
        a(f's_mov_b32 s57, {POLL_LIMIT}')
        lp = a.newlab('lp')
        if alt and PIPE:
            n0 = a.vm_issued; issue(alt[0]); n = a.vm_issued - n0
            for r in alt[1:]:
                a(f's_sleep {PIPE}'); issue(r)
            a.label(lp)
            oks = []
            for r in alt:
                a(f's_waitcnt vmcnt({n*(len(alt) - 1)})')
                cmp(r)
                lok = a.newlab('ok'); oks.append((lok, r))
                a(f's_cbranch_vccz {lok}')
                issue(r)
            a(f's_sub_u32 s57, s57, 1\ns_cbranch_scc0 {lp}')
            a(f's_branch {lback}')
            for lok, r in oks:
                a.label(lok); final(r); a(f's_branch {lback}')
        else:
            a.label(lp)
            if MASKP: a('s_mov_b64 exec, vcc')
            if BACKOFF: a(f's_sleep {BACKOFF}')
            issue(None)
            a('s_waitcnt vmcnt(0)')
            cmp(None)
            lx = a.newlab('px')
            a(f's_cbranch_vccz {lx}')
            a(f's_sub_u32 s57, s57, 1\ns_cbranch_scc0 {lp}')
            a.label(lx)
            if MASKP: a('s_mov_b64 exec, -1')
            a(f's_branch {lback}')
    a.tail.append(tail)

NXUP = int(os.environ.get('NXUP', 16))
NWDG1 = int(os.environ.get('NWDG1', 58))
EPB = int(os.environ.get('EPB', 3))

def wd_list():
    return [(k, cb) for k in range(14) for cb in range(5)]
def wd_reg(k, cb):
    i = 5*k + cb
    return f'a[{4*i}:{4*i+3}]' if i < 58 else f'v[{4*(i-58)}:{4*(i-58)+3}]'
sWD = ['s84', 's85', 's86', 's87', 's88']
def wd_bases(a):
    a(f's_mul_i32 s79, s{SW}, {14*1024}')
    a(f's_mul_i32 s74, {sCG}, {5*55296}\ns_add_u32 s79, s79, s74\ns_add_u32 {sWD[0]}, s79, {WDP}')
    for cb in range(1, 5): a(f's_add_u32 {sWD[cb]}, {sWD[cb-1]}, 55296')
def wd_load(k, cb, vo=None):
    L = []
    L.append(f'buffer_load_dwordx4 {wd_reg(k, cb)}, {vo or "v%d" % L16}, {WS}, {sWD[cb]} offen offset:{1024*(k&3)}{SH}')
    if k & 3 == 3: L.append(f's_add_u32 {sWD[cb]}, {sWD[cb]}, 4096')
    return L

def G1(a, layer, stages_g2=True):
    X = X1 if layer == 0 else X3
    H = HB[layer]
    seq = g1_seq(layer)
    UO = UORD[layer]
    tg = f'G1{layer}_'
    a.st(tg + 'go')
    a(f's_lshl_b32 s72, {sC}, 2\ns_add_u32 s72, s72, s{SW}\ns_mul_i32 s72, s72, 40960\ns_add_u32 s72, s72, {X}')
    xt = []
    def xload():
        ks = len(xt)
        if ks % 4 == 0 and ks > 0: a('s_add_u32 s72, s72, 4096')
        xt.append(a(f'buffer_load_dwordx4 v[{XF+4*ks}:{XF+4*ks+3}], v{L16}, {WS}, s72 offen offset:{1024*(ks&3)}{SH}'))
    NX0 = 4
    for ks in range(NX0): xload()
    SR = CSR
    a(f'v_lshrrev_b32 v250, 6, v{L16}\nv_lshlrev_b32 v250, 8, v250\nv_and_b32 v251, 0x30, v{L16}\nv_or_b32 v250, v250, v251')
    a(f'v_mov_b32 v252, {(OOB)}\nv_cmp_le_u32 vcc, 0x200, v{L16}\nv_cndmask_b32 v251, 0, v252, vcc\nv_or_b32 v251, v251, v250')
    a(f's_lshr_b32 s74, {sS}, 2\ns_lshl_b32 s75, {sC}, 2\ns_add_u32 s74, s74, s75\ns_mul_i32 s74, s74, 40960')
    a(f's_and_b32 s75, {sS}, 3\ns_lshl_b32 s75, s75, 6\ns_add_u32 s74, s74, s75\ns_mul_i32 s75, s{SW}, 10240\ns_add_u32 s74, s74, s75\ns_add_u32 s74, s74, {X}')
    stt = []
    for i in range(3):
        stt.append(a(f'buffer_load_dwordx4 v[{SR+4*i}:{SR+4*i+3}], v{251 if i == 2 else 250}, {WS}, s74 offen{SH}'))
        if i < 2: a('s_add_u32 s74, s74, 4096')
    for ks in range(NX0, NXUP): xload()
    rd_tok = {}
    def rd(s):
        if s >= len(seq): return
        u, ks, g = seq[s]
        reg, off = lds_addr(g*4096 + (ks & 3)*1024)
        b = WB + 4*(s % NB)
        rd_tok[s] = a(f'ds_read_b128 a[{b}:{b+3}], {reg} offset:{off}')
    for s in range(AHEAD): rd(s)
    a(f's_lshl_b32 s75, {sC}, 2\ns_add_u32 s75, s75, s{SW}\ns_mul_i32 s75, s75, 110592\ns_lshr_b32 s76, {sS}, 2\ns_mul_i32 s76, s76, {28*512}\ns_add_u32 s75, s75, s76')
    a(f's_add_u32 s77, s75, {H}')
    if layer == 0:
        a(f's_mov_b32 s82, {sW4K}\ns_add_u32 s83, {sW4K}, {quad_src(39)}\ns_add_u32 s83, s83, {sW1}')
    else:
        a(f's_add_u32 s82, {sW4K}, 4096\ns_sub_u32 s83, {sW4K}, 4096\ns_cmp_eq_u32 s{SW}, 0\ns_cselect_b32 s83, {3*40960 + 9*4096}, s83\ns_add_u32 s83, s83, {sW1}')
    if layer == 0: wd_bases(a)
    def swaps(ks):
        r = XF + 4*ks
        return [f'v_permlane16_swap_b32 v{r}, v{r+2}', f'v_permlane16_swap_b32 v{r+1}, v{r+3}']
    Q = []
    def push(at, items):
        for it in items: Q.append([at, it])
    S0 = CSR + 12
    st = [lambda: a.wait_vm(stt[2])]
    for i in range(3):
        for h in range(4):
            r = SR + 4*i + h; s_ = S0 + 2*(h >> 1); q_ = s_ + 1
            first = (i == 0 and (h & 1) == 0)
            st += [f'v_lshlrev_b32 v250, 16, v{r}', f'v_and_b32 v251, s78, v{r}']
            if first: st += [f'v_add_f32 v{s_}, v250, v251', f'v_mul_f32 v{q_}, v250, v250']
            else: st += [f'v_add_f32 v{s_}, v{s_}, v250', f'v_fmac_f32 v{q_}, v250, v250', f'v_add_f32 v{s_}, v{s_}, v251']
            st += [f'v_fmac_f32 v{q_}, v251, v251']
    for rot in (4, 8):
        for e in range(4): st.append(f'v_add_f32_dpp v{S0+e}, v{S0+e}, v{S0+e} row_ror:{rot} row_mask:0xf bank_mask:0xf')
    for op in ('v_permlane16_swap_b32', 'v_permlane32_swap_b32'):
        for e in range(4): st += [f'v_mov_b32 v{250+e}, v{S0+e}']
        for e in range(4): st += [f'{op} v{250+e}, v{S0+e}']
        for e in range(4): st += [f'v_add_f32 v{S0+e}, v{S0+e}, v{250+e}']
    st += [f'v_and_b32 v254, 0x40, v{L16}', 'v_cmp_ne_u32 vcc, 0, v254',
           f's_lshr_b32 s74, {sS}, 2', 's_lshl_b32 s74, s74, 9',
           f'v_cndmask_b32 v250, v{S0}, v{S0+2}, vcc', f'v_cndmask_b32 v252, v{S0+1}, v{S0+3}, vcc',
           f'v_mov_b32 v251, s{STAG}', f'v_mov_b32 v253, s{STAG}',
           'v_lshlrev_b32 v254, 2, v254', f'v_and_b32 v{S0}, 0x30, v{L16}', f'v_add_u32 v254, v254, v{S0}',
           f's_and_b32 s75, {sS}, 3', 's_lshl_b32 s75, s75, 6', 's_add_u32 s74, s74, s75',
           f's_lshl_b32 s75, s{SW}, 11', 's_add_u32 s74, s74, s75', f's_lshl_b32 s75, {sC}, 13', 's_add_u32 s74, s74, s75', f's_add_u32 s74, s74, {ST[layer]}']
    def st_store():
        a(f's_mov_b64 exec, 0xff\nbuffer_store_dwordx4 v[250:253], v254, {WS}, s74 offen sc1\ns_mov_b64 exec, -1')
    st.append(st_store)
    PR_ = CSR
    ptk = []
    def sp_issue(_=None):
        ptk.append(a(f'buffer_load_dwordx4 v[{PR_}:{PR_+3}], v254, {WS}, s74 offen sc1'))
        ptk.append(a(f'buffer_load_dwordx4 v[{PR_+4}:{PR_+7}], v254, {WS}, s74 offen offset:2048 sc1'))
    def sp_cmp(_=None):
        a(f'v_xor_b32 v250, s{STAG}, v{PR_+1}\nv_xor_b32 v251, s{STAG}, v{PR_+3}\nv_xor_b32 v252, s{STAG}, v{PR_+5}\nv_xor_b32 v253, s{STAG}, v{PR_+7}')
        a('v_or3_b32 v250, v250, v251, v252\nv_or_b32 v250, v250, v253\nv_cmp_ne_u32 vcc, 0, v250')
    sp = [f'v_and_b32 v254, 0x1f0, v{L16}', f'v_lshrrev_b32 v250, 9, v{L16}', 'v_lshl_add_u32 v254, v250, 12, v254',
          f's_lshl_b32 s74, {sC}, 13', f's_lshl_b32 s75, s{SW}, 9', 's_add_u32 s74, s74, s75', f's_add_u32 s74, s74, {ST[layer]}', sp_issue]
    sf = [lambda: poll2(a, ptk[1], None, sp_issue, sp_cmp),
          f'v_add_f32 v{PR_}, v{PR_}, v{PR_+4}', f'v_add_f32 v{PR_+2}, v{PR_+2}, v{PR_+6}',
          's_mov_b32 s74, 0x3acccccd', 's_mov_b32 s75, 0x3727c5ac',
          f'v_mov_b32 v250, v{PR_}', f'v_mov_b32 v251, v{PR_+2}', 's_mov_b32 s76, 0xbfb8aa3b', 's_nop 0',
          f'v_permlane32_swap_b32 v250, v{PR_}', f'v_permlane32_swap_b32 v251, v{PR_+2}',
          f'v_add_f32 v{PR_}, v{PR_}, v250', f'v_add_f32 v{PR_+2}, v{PR_+2}, v251',
          f'v_mul_f32 v{NM}, s74, v{PR_}', f'v_mul_f32 v{IR2}, s74, v{PR_+2}',
          f'v_fma_f32 v{IR2}, -v{NM}, v{NM}, v{IR2}', f'v_max_f32 v{IR2}, 0, v{IR2}', f'v_add_f32 v{IR2}, s75, v{IR2}',
          f'v_rsq_f32 v{K1}, v{IR2}', f'v_sub_f32 v{NM}, 0, v{NM}', f'v_mul_f32 v{K1}, s76, v{K1}']
    a('s_mov_b32 s78, 0xffff0000')
    push(9, st)
    push(ST_POLL, sp)
    push(ST_CHK, sf)
    accof = {0: 0, 1: 16, 2: 32, 3: 48, 4: 0, 5: 16, 6: 32}
    def epi(up):
        u = UO[up]
        A = accof[up]; L = []
        cst = {}
        def csrd(hf):
            def f():
                a(f'ds_read_b128 v[{CSR+8*hf}:{CSR+8*hf+3}], v{CSA} offset:{128*u + 32*hf}')
                cst[hf] = a(f'ds_read_b128 v[{CSR+8*hf+4}:{CSR+8*hf+7}], v{CSA} offset:{128*u + 32*hf + 16}')
            return (2, f)
        L += [csrd(0), csrd(1)]
        for hf in range(2):
            G = A + 8*hf; U = G + 4; C = CSR + 8*hf
            L.append((0, lambda hf=hf: a.wait_lg(cst[hf])))
            for r in range(4): L.append((1, f'v_fmac_f32 v{G+r}, v{NM}, v{C+r}'))
            for r in range(4): L.append((1, f'v_fmac_f32 v{U+r}, v{NM}, v{C+4+r}'))
            for r in range(4): L.append((1, f'v_mul_f32 v{C+r}, v{K1}, v{G+r}'))
            for r in range(4): L += [(2, f'v_exp_f32 v{C+r}, v{C+r}'), (1, f'v_mul_f32 v{G+r}, v{G+r}, v{U+r}')]
            for r in range(4): L.append((1, f'v_fma_f32 v{C+r}, v{C+r}, v{IR2}, v{IR2}'))
            for r in range(4): L.append((2, f'v_rcp_f32 v{C+r}, v{C+r}'))
            for r in range(4): L.append((1, f'v_mul_f32 v{G+r}, v{G+r}, v{C+r}'))
            O = A + 4 + 2*hf
            L += [(1, f'v_cvt_pk_bf16_f32 v{O}, v{G}, v{G+1}'), (1, f'v_cvt_pk_bf16_f32 v{O+1}, v{G+2}, v{G+3}')]
        def store():
            vo = HOFF
            c0, c1 = {0: (0, 2), 1: (1, 2), 2: (8, 1), 3: (12, 1), 4: (16, 2), 5: (17, 2), 6: (24, 1)}[u]
            a(f's_and_b32 s74, {sS}, 3\ns_lshl_b32 s74, s74, {9 + (c1 >> 1)}\ns_add_u32 s74, s74, s77')
            if c0 >= 8: a(f's_add_u32 s74, s74, {c0*512}')
            if u == 6:
                a(f's_cmp_ge_u32 {sS}, 12\ns_cselect_b32 s75, {OOB}, 0\nv_or_b32 v254, s75, v{HOFF}')
                vo = 254
            hst[up] = a(f'buffer_store_dwordx4 v[{A+4}:{A+7}], v{vo}, {WS}, s74 offen offset:{c0*512 if c0 < 8 else 0} sc1')
        L.append((1, store))
        return L
    hst = {}
    V = []
    dt = {}
    def refill_items(gam, at):
        for i in range(4):
            L = []
            if i == 0:
                if gam == 7:
                    src = quad_src(67) if layer == 0 else 27*4096
                    L += [f's_min_u32 s74, {sW4K}, {2*4096}', f's_add_u32 s82, s74, {(28 if layer == 0 else 29)*4096}', f's_add_u32 s83, s74, {src}', f's_add_u32 s83, s83, {sW1}']
                if layer == 1 and gam == 1: L += [f's_add_u32 s83, {sW4K}, {3*4096}', f's_add_u32 s83, s83, {sW1}']
                if layer == 1 and gam == 6:
                    L += [f's_and_b32 s74, s{SW}, 1', f's_lshr_b32 s82, s{SW}, 1', 's_mul_i32 s82, s82, 10', 's_add_u32 s82, s82, s74', 's_add_u32 s82, s82, 9', 's_lshl_b32 s82, s82, 12']
                L.append('s_mov_b32 m0, s82')
            L.append(f'buffer_load_dwordx4 v{L16}, {WS}, s83 offen offset:{1024*i}{SH} lds')
            if i == 3 and gam < 6:
                step = 16384 if (layer == 0 or gam % 2 == 0) else 16384 + 8192
                L += [f's_add_u32 s82, s82, {step}', 's_add_u32 s83, s83, 16384']
            V.append([at, L, ('dma', gam)])
    for gam in range(6): refill_items(gam, RB0)
    for gam in (6, 7): refill_items(gam, 148)
    V.sort(key=lambda x: x[0])
    WQ = []
    if layer == 0:
        for (k, cb) in wd_list()[:NWDG1]:
            L = wd_load(k, cb)
            if os.environ.get('NOWD'): L = L[1:] or ['s_nop 0']
            WQ.append(L)
    BARS = {RB0: [], 148: [2], 196: [5], 244: [7]}
    last_of = {}
    for s, (u, ks, g) in enumerate(seq): last_of[u] = s
    avail = {u: last_of[u] + 3 for u in range(7)}
    nxt = 0
    cur = []
    a.wait_vm(xt[0])
    for x in swaps(0): a(x)
    a.st(tg + 'x0')
    fy = None
    lastv = -9
    for s, (u, ks, g) in enumerate(seq):
        if s in BARS:
            for gam in BARS[s]:
                assert gam in dt, (s, gam)
                a.wait_vm(dt[gam])
            if s == RB0 and layer == 0:
                a.poll1_check(fwd, 4, 'v249', 's80', 240, barrier=False)
            if s == 244 and layer == 0:
                a.poll1_check(fy, 4, 'v249', 's80', 250, barrier=False)
            if s == 244: a.wait_vm(hst[3])
            a('s_barrier')
            if s == 244:
                a(f's_lshl_b32 s74, {sC}, 9\ns_lshl_b32 s75, {sS}, 2\ns_add_u32 s74, s74, s75\ns_add_u32 s74, s74, {FH[layer]}')
                a.flag_store('s74', 'v250', 'v251', rep=4, stride=128)
            if s == 148 and layer == 0:
                def fyf():
                    a(f's_lshl_b32 s74, s2, 2\ns_add_u32 s74, s74, {FY}')
                    a.flag_store('s74', 'v250', 'v251')
                guarded(a, sROLE, fyf)
        if s == FWD_AT and layer == 0:
            assert not any(q[0] == 9 for q in Q), 'statistics not finished'
            a(f'v_lshrrev_b32 v249, 4, v{L16}\nv_min_u32 v249, 23, v249\nv_lshlrev_b32 v249, 4, v249')
            a(f's_and_b32 s80, s2, 15\ns_lshl_b32 s80, s80, 9\ns_add_u32 s80, s80, {FWD}')
            fwd = a.poll1_issue(4, 'v249', 's80', 240)
        if s == YS_AT and layer == 0:
            def ys():
                for k in range(4):
                    a(f'buffer_store_dwordx4 v[{48+4*k}:{48+4*k+3}], v{YOFF}, {WS}, {sYB} offen sc1')
                    if k < 3: a(f's_add_u32 {sYB}, {sYB}, {4*40960}')
            guarded(a, sROLE, ys)
        if s == 232 and layer == 0:
            a(f'v_lshrrev_b32 v249, 4, v{L16}\nv_min_u32 v249, 39, v249\nv_lshlrev_b32 v249, 4, v249\ns_mov_b32 s80, {FY}')
            fy = a.poll1_issue(4, 'v249', 's80', 250)
        if s % 2 == 0: a.wait_lg(rd_tok[min(s + 1, len(seq) - 1)])
        b = WB + 4*(s % NB); A = accof[u]
        c = '0' if ks == 0 else f'v[{A}:{A+15}]'
        a(f'v_mfma_f32_32x32x16_bf16 v[{A}:{A+15}], a[{b}:{b+3}], v[{XF+4*ks}:{XF+4*ks+3}], {c}')
        rd(s + AHEAD)
        n = 1 + (1 if s % 2 == 1 else 0)
        if s < 120 and u == 1 and ks + 1 < 40:
            a.wait_vm(xt[ks+1])
            for x in swaps(ks+1): a(x)
            n += 3
        if s < 120 and u == 0 and len(xt) < 40:
            xload(); n += 1; lastv = s
        elif s - lastv >= 2:
            if V and V[0][0] <= s:
                _, L, nm = V.pop(0)
                for x in L: t = a(x)
                dt[nm[1]] = a.vm_issued
                n += len(L); lastv = s
            elif WQ and s >= WD_AT:
                L = WQ.pop(0)
                for x in L: a(x)
                n += len(L); lastv = s
        budget = 6
        while n < budget and Q and Q[0][0] <= s:
            it = Q.pop(0)[1]
            it() if callable(it) else a(it)
            n += 1
        if s >= 120:
            if not cur and nxt < 6 and avail[nxt] <= s and not Q:
                cur = epi(nxt); nxt += 1
            m = 0
            while cur and (n + cur[0][0] <= budget) and m < EPB:
                c_, it = cur.pop(0)
                it() if callable(it) else a(it)
                n += c_; m += 1 if c_ else 0
        if s in (119, 159, 199, 239): a.st(tg + f'm{s+1}')
        if s + 1 < len(seq) and seq[s+1][1] == 0 and seq[s+1][0] >= 4:
            assert nxt > seq[s+1][0] - 4 and not (nxt == seq[s+1][0] - 3 and cur), ('epilogue late', s, nxt, len(cur))
    assert not Q and not V and not WQ, (len(Q), len(V), len(WQ))
    a.st(tg + 'mend')
    a(f'v_lshrrev_b32 v249, 4, v{L16}\nv_min_u32 v249, 3, v249\ns_lshl_b32 s75, s{SW}, 2\nv_add_u32 v249, s75, v249\nv_lshlrev_b32 v249, 2, v249')
    a(f's_lshr_b32 s80, {sTB}, 1\ns_lshl_b32 s80, s80, 2\ns_add_u32 s80, s80, s{SW}\ns_lshl_b32 s80, s80, 7\ns_add_u32 s80, s80, {FH[layer]}')
    tA = a.poll_issue(1, 'v249', 's80', 250) if stages_g2 else None
    for c_, it in cur: it() if callable(it) else a(it)
    while nxt < 7:
        for c_, it in epi(nxt): it() if callable(it) else a(it)
        nxt += 1
    a.st(tg + 'epi')
    a(f's_lshl_b32 s79, {sC}, 9\ns_lshl_b32 s75, {sS}, 2\ns_add_u32 s79, s79, s75\ns_add_u32 s79, s79, {FH[layer] + 64}')
    return dict(tA=tA, tS=hst[6])

RB0 = 96
ST_POLL, ST_CHK = 84, 112
YS_AT = 78
FWD_AT = 82
WD_AT = 100

def pre_G1_common(a):
    a.st('J_cs')
    a(f'v_lshrrev_b32 v88, 4, v{L16}\nv_min_u32 v88, 39, v88\nv_lshlrev_b32 v88, 4, v88')
    a(f's_and_b32 s74, s2, 15\ns_lshl_b32 s74, s74, 10\ns_add_u32 s74, s74, {FX1}')
    a('s_waitcnt vmcnt(0) lgkmcnt(0)')
    a.poll_w0(4, 'v88', 's74', 84, alt=(92, 96, 100))
    a.reset_counts()

def rest(a, stages, epoch_update):
    import g2h
    pre_G1_common(a)
    epoch_update(a)
    tk = G1(a, 0, stages > 2)
    if stages == 2: return
    g2h.G2(a, 0, tk, last=(stages == 3))
    if stages == 3: return
    tk = G1(a, 1, stages > 4)
    if stages == 4: return
    g2h.G2(a, 1, tk)
```

```python
from g2base import *
from g2g import *
import g2g

OPOL = {'': '', 'nt': ' nt', 'sc1': ' sc1', 'sc01': ' sc0 sc1', 'sc1nt': ' sc1 nt', 'sc01nt': ' sc0 sc1 nt'}[os.environ.get('OPOL', '')]
ACC = 144
HBUF = 64
NHB = 5
RX = 232
RY = 48
sHB = ['s90', 's91', 's92', 's93']
VM, VR, VT = 242, 243, 244
VE = 58
def acc(tb, cb): return ACC + 20*tb + 4*cb
def hb(k, tb): return HBUF + 16*(k % NHB) + 4*tb

BP = int(os.environ.get('BP', 4))
BC = int(os.environ.get('BC', 6))
NH1 = int(os.environ.get('NH1', 2))
XQ0 = int(os.environ.get('XQ0', 4))
XQ1 = int(os.environ.get('XQ1', 1))
XQN = int(os.environ.get('XQN', 3))
GQ0 = int(os.environ.get('GQ0', 10))
DQ0 = int(os.environ.get('DQ0', 5))
NDL = int(os.environ.get('NDL', 16))
NDR = int(os.environ.get('NDR', 14))
KE = 8
def G2(a, layer, tk, last=False):
    H = HB[layer]; X = X1 if layer == 0 else X3
    tg = f'G2{layer}_'
    if layer == 1: a.srd_load(SOUT, 'out'); a.srd_fin(SOUT, 'out')
    a(f'v_mov_b32 v{VM}, {OOB}\ns_cmp_eq_u32 s{SW}, 3\ns_cselect_b32 s74, -1, 0\nv_and_b32 v{VM}, s74, v{VM}\nv_or_b32 v{VM}, v{VM}, v{L16}')
    a(f's_mul_i32 s78, s{SW}, {14*1024}\ns_add_u32 s78, s78, {H}')
    for tb in range(4):
        a(f's_add_u32 s74, s{SW}, {tb}\ns_and_b32 s74, s74, 3\ns_lshl_b32 s75, {sTB}, 2\ns_add_u32 s74, s74, s75\ns_mul_i32 s74, s74, 55296\ns_add_u32 {sHB[tb]}, s74, s78')
    a(f'v_lshrrev_b32 v{VT}, 8, v{L16}\nv_lshlrev_b32 v{VT}, 8, v{VT}\nv_bfe_u32 v{VR}, v{L16}, 4, 4\nv_lshl_add_u32 v{VR}, v{VR}, 3, v{VT}')
    a(f's_lshl_b32 s75, {sTB}, 1\ns_lshr_b32 s76, s{SW}, 1\ns_add_u32 s75, s75, s76\ns_mul_i32 s75, s75, 40960\ns_mul_i32 s76, {sCG}, 5120\ns_add_u32 s75, s75, s76')
    a(f's_and_b32 s76, s{SW}, 1\ns_lshl_b32 s76, s76, 7\ns_add_u32 s94, s75, s76')
    wl = wd_list()
    tw = {}; th = {}; tok = {}
    PF = NHB - 1
    QO = list(range(14)) if layer == 0 else [6, 7, 8, 9, 10, 11, 12, 13, 0, 1, 2, 3, 4, 5]
    hblk = [0]*4
    def hload(k, tb):
        if k >= 14: return
        r = hb(k, tb); q = QO[k]
        if q >> 2 != hblk[tb]:
            d = ((q >> 2) - hblk[tb])*4096
            a(f's_add_u32 {sHB[tb]}, {sHB[tb]}, {d}' if d > 0 else f's_sub_u32 {sHB[tb]}, {sHB[tb]}, {-d}')
            hblk[tb] = q >> 2
        th[(k, tb)] = a(f'buffer_load_dwordx4 v[{r}:{r+3}], v{VM if q >= 12 else L16}, {WS}, {sHB[tb]} offen offset:{1024*(q&3)}{SH}')
    def head_loads():
        for k in range(NH1):
            for tb in range(4): hload(k, tb)
    XQ = []
    def wd_item(k, cb):
        def f():
            if layer == 0:
                for x in wd_load(k, cb, vo=(f'v{VM}' if k >= 12 else None)): a(x)
            elif k == 11:
                a(f's_sub_u32 s74, {sWD[cb]}, 4096')
                a(f'buffer_load_dwordx4 {wd_reg(k, cb)}, v{L16}, {WS}, s74 offen offset:3072{SH}')
            else:
                a(f'buffer_load_dwordx4 {wd_reg(k, cb)}, v{VM if k >= 12 else L16}, {WS}, {sWD[cb]} offen offset:{1024*(k&3)}{SH}')
            tw[(k, cb)] = a.vm_issued
        return f
    for (k, cb) in (wl[g2g.NWDG1:] if layer == 0 else wl[58:]): XQ.append(wd_item(k, cb))
    GQ = []
    def gran_item(base, reg, cb, name):
        def f():
            if cb == 0: a(f's_add_u32 s95, s94, {base}')
            if cb == 4: a('s_add_u32 s95, s95, 4096')
            tok[name] = a(f'buffer_load_dwordx2 v[{reg+2*cb}:{reg+2*cb+1}], v{VR}, {WS}, s95 offen offset:{1024*(cb&3)}{SH}')
        return f
    for cb in range(5): GQ.append(gran_item(X, RX, cb, 'tx'))
    if layer == 0:
        for cb in range(5): GQ.append(gran_item(YG, RY, cb, 'ty'))
    def flag_b():
        a('s_barrier')
        a.flag_store('s79', 'v251', 'v252', rep=4, stride=128)
    lslow = a.newlab('slowA'); ljoin = a.newlab('joinA')
    a.wait_vm(tk['tA'])
    a(f'v_cmp_ne_u32 vcc, s{STAG}, v250\ns_cbranch_vccnz {lslow}')
    st0 = (a.vm_issued, a.vm_done)
    hblk0 = list(hblk)
    head_loads()
    a.wait_vm(tk['tS'])
    flag_b()
    a.label(ljoin)
    st1 = (a.vm_issued, a.vm_done, dict(th), dict(tw), dict(tok))
    def slow():
        a.label(lslow)
        a.vm_issued, a.vm_done = st0
        a('s_waitcnt vmcnt(0)')
        flag_b()
        a.poll(1, 'v249', 's80', 250)
        sv = (dict(th), dict(tw), dict(tok))
        hblk[:] = hblk0
        head_loads()
        th.update(sv[0]); tw.update(sv[1]); tok.update(sv[2])
        a(f's_branch {ljoin}')
    a.tail.append(slow)
    a.st(tg + 'go')
    for k in range(NH1, PF):
        for tb in range(4): hload(k, tb)
    RA = 128
    AQ = []
    def red_addr(preg, dst):
        L = []
        if dst[0] is not None: L += [f's_lshl_b32 s97, {preg}, 10', f's_add_u32 s98, s97, {RED}', f'v_add_u32 v{dst[0]}, s98, v{L16}']
        else: L += [f's_lshl_b32 s97, {preg}, 10']
        for i, (lo, hi) in enumerate(((9*4096, RED + 36864 - 8192), (19*4096, -8192))):
            L += [f's_add_u32 s98, s97, {lo}', f's_add_u32 s99, s97, {hi & 0xffffffff}', f's_cmp_lt_u32 {preg}, 8', 's_cselect_b32 s98, s98, s99', f'v_add_u32 v{dst[1+i]}, s98, v{L16}']
        return L
    for tb in range(1, 4):
        AQ += [f's_add_u32 s96, s{SW}, {tb}', 's_and_b32 s96, s96, 3', 's_mul_i32 s96, s96, 3', f's_add_u32 s96, s96, {tb-1}']
        AQ += red_addr('s96', [RA + 3*(tb-1) + i for i in range(3)])
    for j in range(3):
        AQ += [f's_mul_i32 s96, s{SW}, 3', f's_add_u32 s96, s96, {j}']
        AQ += red_addr('s96', [RA + 9 if j == 0 else None, RA + 10 + j, RA + 13 + j])
    first = True
    tB = None
    xq0 = XQ0 if layer == 0 else XQ1
    for k in range(14):
        q = QO[k]
        if k == BP: tB = a.poll_issue(1, 'v249', 's80', 250, off=64)
        if k == BC:
            a.poll_check(tB, 1, 'v249', 's80', 250, off=64)
            a.st(tg + 'bok')
            for k2 in range(KE, BC + PF):
                for tb in range(4): hload(k2, tb)
        order = [0, 1, 2, 3] if k < 13 else [1, 2, 3, 0]
        for j, tb in enumerate(order):
            toks = [th[(k, tb)]] + [tw[(q, cb)] for cb in range(5) if (q, cb) in tw]
            assert all((q, cb) in tw for cb in range(5) if 5*q + cb >= (g2g.NWDG1 if layer == 0 else 58)), (k, q)
            a.wait_vm(max(toks))
            if first: a.st(tg + 'h0'); first = False
            for cb in range(5):
                A = acc(tb, cb); b = hb(k, tb)
                c = '0' if k == 0 else f'v[{A}:{A+3}]'
                a(f'v_mfma_f32_16x16x32_bf16 v[{A}:{A+3}], {wd_reg(q, cb)}, v[{b}:{b+3}], {c}')
                hl = k + PF < 14 and (k + PF < KE or k >= BC)
                if cb == 0 and hl: hload(k + PF, tb)
                elif XQ and k >= xq0 and cb in ((2, 4) if hl else (0, 2, 4))[:XQN]: XQ.pop(0)()
                elif GQ and k >= GQ0 and cb in (0, 3): GQ.pop(0)()
                if k >= 11:
                    for _ in range(2):
                        if AQ: a(AQ.pop(0))
    assert not XQ and not GQ and not AQ, (len(XQ), len(GQ), len(AQ))
    tx, ty = tok['tx'], tok.get('ty')
    a.st(tg + 'mend')
    for tb in (1, 2, 3):
        for cb in range(5):
            A = acc(tb, cb)
            ad = f'v{RA + 3*(tb-1) + max(cb - 2, 0)}' + (f' offset:{12288*cb}' if cb < 3 else '')
            a('ds_write_b128 ' + ad.split()[0] + f', v[{A}:{A+3}]' + (' ' + ad.split()[1] if cb < 3 else ''))
    a('s_waitcnt lgkmcnt(0)\ns_barrier')
    RB = HBUF
    tr = []
    for cb in range(5):
        for j in range(3):
            r = RB + 12*cb + 4*j
            if cb < 3: t = a(f'ds_read_b128 v[{r}:{r+3}], v{RA+9} offset:{12288*cb + 1024*j}')
            else: t = a(f'ds_read_b128 v[{r}:{r+3}], v{RA + 10 + 3*(cb-3) + j}')
        tr.append(t)
    a.wait_vm(tx)
    PK = 204
    U = 84
    a('s_mov_b32 s78, 0xffff0000')
    for cb in range(5):
        A = acc(0, cb); r = RB + 12*cb
        a.wait_lg(tr[cb])
        for e in range(4): a(f'v_add_f32 v{r+e}, v{r+e}, v{r+4+e}')
        for e in range(4): a(f'v_add_f32 v{A+e}, v{A+e}, v{r+8+e}')
        for e in range(4): a(f'v_add_f32 v{A+e}, v{A+e}, v{r+e}')
        a(f'v_permlane32_swap_b32 v{A}, v{A+2}\nv_permlane32_swap_b32 v{A+1}, v{A+3}')
        a(f'v_permlane16_swap_b32 v{A}, v{A+1}\nv_permlane16_swap_b32 v{A+2}, v{A+3}')
        x = RX + 2*cb
        a(f'v_lshlrev_b32 v{r}, 16, v{x}\nv_and_b32 v{r+1}, s78, v{x}\nv_lshlrev_b32 v{r+2}, 16, v{x+1}\nv_and_b32 v{r+3}, s78, v{x+1}')
        for e in range(4): a(f'v_add_f32 v{A+e}, v{A+e}, v{r+e}')
        a(f'v_cvt_pk_bf16_f32 v{PK+2*cb}, v{A}, v{A+1}\nv_cvt_pk_bf16_f32 v{PK+2*cb+1}, v{A+2}, v{A+3}')
    a.st(tg + 'red')
    if layer == 1:
        a(f'v_bfe_u32 v{VT}, v{L16}, 4, 4\nv_mul_u32_u24 v{VT}, 1280, v{VT}\nv_bfe_u32 v{VT+1}, v{L16}, 8, 1\nv_lshl_add_u32 v{VT}, v{VT+1}, 5, v{VT}')
        a(f'v_bfe_u32 v{VT+1}, v{L16}, 9, 1\nv_lshl_add_u32 v{VT}, v{VT+1}, 4, v{VT}')
        a(f's_lshl_b32 s74, {sTB}, 2\ns_add_u32 s74, s74, s{SW}\ns_mul_i32 s74, s74, {16*1280}\ns_mul_i32 s75, {sCG}, 160\ns_add_u32 s74, s74, s75')
        for p in range(3):
            R = PK + 4*p
            a(f'v_permlane16_swap_b32 v{R}, v{R+2}\nv_permlane16_swap_b32 v{R+1}, v{R+3}')
        for p in range(3):
            R = PK + 4*p
            if p == 2: a('s_mov_b32 exec_lo, 0x0000ffff\ns_mov_b32 exec_hi, 0x0000ffff')
            a(f'buffer_store_dwordx4 v[{R}:{R+3}], v{VT}, s[{SOUT}:{SOUT+3}], s74 offen offset:{64*p}{OPOL}')
        a('s_mov_b64 exec, -1')
        a.st(tg + 'end')
        return
    S_, Q_ = VT, VT+2
    a('s_mov_b32 s75, 0x3f803f80')
    for i in range(10):
        a(f'v_dot2_f32_bf16 v{S_}, v{PK+i}, s75, {"0" if i == 0 else f"v{S_}"}')
        a(f'v_dot2_f32_bf16 v{Q_}, v{PK+i}, v{PK+i}, {"0" if i == 0 else f"v{Q_}"}')
    for op in ('v_permlane16_swap_b32', 'v_permlane32_swap_b32'):
        a(f'v_mov_b32 v{VE}, v{S_}\nv_mov_b32 v{VE+1}, v{Q_}\n{op} v{VE}, v{S_}\n{op} v{VE+1}, v{Q_}')
        a(f'v_add_f32 v{S_}, v{S_}, v{VE}\nv_add_f32 v{Q_}, v{Q_}, v{VE+1}')
    a(f'v_mov_b32 v{VT+1}, s{STAG}\nv_mov_b32 v{VT+3}, s{STAG}')
    a(f'v_and_b32 v{VE}, 0xf0, v{L16}')
    a(f's_lshl_b32 s74, {sTB}, 13\ns_lshl_b32 s75, s{SW}, 8\ns_add_u32 s74, s74, s75\ns_add_u32 s79, s74, {XS}\ns_lshl_b32 s75, {sCG}, 10\ns_add_u32 s74, s79, s75')
    a(f's_mov_b64 exec, 0xffff\nbuffer_store_dwordx4 v[{VT}:{VT+3}], v{VE}, {WS}, s74 offen sc1\ns_mov_b64 exec, -1')
    a(f'v_lshrrev_b32 v{VE+1}, 8, v{L16}\nv_lshl_add_u32 v{VE}, v{VE+1}, 11, v{VE}')
    PR_ = RB
    ptk = []
    def xs_issue(b=None):
        b = PR_ if b is None else b
        ptk.append(a(f'buffer_load_dwordx4 v[{b}:{b+3}], v{VE}, {WS}, s79 offen sc1'))
        ptk.append(a(f'buffer_load_dwordx4 v[{b+4}:{b+7}], v{VE}, {WS}, s79 offen offset:1024 sc1'))
    def xs_cmp(b=None):
        b = PR_ if b is None else b
        a(f'v_xor_b32 v250, s{STAG}, v{b+1}\nv_xor_b32 v251, s{STAG}, v{b+3}\nv_xor_b32 v252, s{STAG}, v{b+5}\nv_xor_b32 v253, s{STAG}, v{b+7}')
        a('v_or3_b32 v250, v250, v251, v252\nv_or_b32 v250, v250, v253\nv_cmp_ne_u32 vcc, 0, v250')
    def xs_final(b):
        for e in (0, 2, 4, 6): a(f'v_mov_b32 v{PR_+e}, v{b+e}')
    xs_issue()
    a.st(tg + 'xs')
    a.wait_vm(ty)
    YU = 104
    for i in range(10):
        a(f'v_lshlrev_b32 v{U+2*i}, 16, v{PK+i}\nv_and_b32 v{U+2*i+1}, s78, v{PK+i}')
        a(f'v_lshlrev_b32 v{YU+2*i}, 16, v{RY+i}\nv_and_b32 v{YU+2*i+1}, s78, v{RY+i}')
    a(f'v_bfe_u32 v{VE+2}, v{L16}, 4, 1')
    a(f'v_lshlrev_b32 v{VE+3}, 3, v{VE+2}\nv_sub_u32 v{VE+3}, v{VR}, v{VE+3}\nv_lshl_add_u32 v{VE+3}, v{VE+2}, 10, v{VE+3}')
    poll2(a, ptk[1], None, xs_issue, xs_cmp, alt=(152, 160, 168), final=xs_final)
    a.st(tg + 'xsok')
    a(f'v_add_f32 v{PR_}, v{PR_}, v{PR_+4}\nv_add_f32 v{PR_+2}, v{PR_+2}, v{PR_+6}')
    for op in ('v_permlane16_swap_b32', 'v_permlane32_swap_b32'):
        a(f'v_mov_b32 v250, v{PR_}\nv_mov_b32 v251, v{PR_+2}\n{op} v250, v{PR_}\n{op} v251, v{PR_+2}')
        a(f'v_add_f32 v{PR_}, v{PR_}, v250\nv_add_f32 v{PR_+2}, v{PR_+2}, v251')
    m_, q_ = PR_, PR_+2
    a('s_mov_b32 s74, 0x3acccccd\ns_mov_b32 s75, 0x3727c5ac')
    a(f'v_mul_f32 v{m_}, s74, v{m_}\nv_mul_f32 v{q_}, s74, v{q_}\nv_fma_f32 v{q_}, -v{m_}, v{m_}, v{q_}\nv_max_f32 v{q_}, 0, v{q_}\nv_add_f32 v{q_}, s75, v{q_}\nv_rsq_f32 v{q_}, v{q_}')
    a(f's_nop 0\nv_mul_f32 v{m_}, v{m_}, v{q_}\nv_sub_f32 v{m_}, 0, v{m_}')
    for i in range(20):
        a(f'v_fma_f32 v250, v{U+i}, v{q_}, v{m_}\nv_fma_f32 v{U+i}, v250, v{YU+i}, v{U+i}') if False else None
    T = 124
    for i in range(20): a(f'v_fma_f32 v{T+i}, v{U+i}, v{q_}, v{m_}')
    for i in range(20): a(f'v_fma_f32 v{U+i}, v{T+i}, v{YU+i}, v{U+i}')
    for i in range(10): a(f'v_cvt_pk_bf16_f32 v{PK+i}, v{U+2*i}, v{U+2*i+1}')
    O = 216
    a(f'v_cmp_eq_u32 vcc, 0, v{VE+2}')
    a(f's_add_u32 s75, s94, {X3}\ns_add_u32 s76, s75, 4096')
    for p in range(2):
        R = PK + 4*p; o = O + 4*p
        a(f'v_cndmask_b32 v250, v{R}, v{R+2}, vcc\nv_cndmask_b32 v251, v{R+1}, v{R+3}, vcc')
        a(f'v_cndmask_b32_dpp v{o}, v250, v{R}, vcc quad_perm:[1,0,3,2] row_mask:0xf bank_mask:0xf')
        a(f'v_cndmask_b32_dpp v{o+1}, v251, v{R+1}, vcc quad_perm:[1,0,3,2] row_mask:0xf bank_mask:0xf')
        a('s_not_b64 vcc, vcc\ns_nop 1')
        a(f'v_cndmask_b32_dpp v{o+2}, v250, v{R+2}, vcc quad_perm:[1,0,3,2] row_mask:0xf bank_mask:0xf')
        a(f'v_cndmask_b32_dpp v{o+3}, v251, v{R+3}, vcc quad_perm:[1,0,3,2] row_mask:0xf bank_mask:0xf')
        a('s_not_b64 vcc, vcc\ns_nop 1')
        a(f'buffer_store_dwordx4 v[{o}:{o+3}], v{VE+3}, {WS}, s75 offen offset:{2048*p} sc1')
    R = PK + 8
    a(f'v_mov_b32_dpp v{R+2}, v{R} quad_perm:[1,0,3,2] row_mask:0xf bank_mask:0xf\nv_mov_b32_dpp v{R+3}, v{R+1} quad_perm:[1,0,3,2] row_mask:0xf bank_mask:0xf')
    a('s_mov_b32 exec_lo, 0x55555555\ns_mov_b32 exec_hi, 0x55555555')
    a(f'buffer_store_dwordx4 v[{R}:{R+3}], v{VE+3}, {WS}, s76 offen sc1')
    a('s_mov_b64 exec, -1')
    a.st(tg + 'x3st')
    a(f's_lshr_b32 s74, {sTB}, 1\ns_lshl_b32 s74, s74, 9\ns_and_b32 s75, {sTB}, 1\ns_lshl_b32 s75, s75, 3\ns_add_u32 s75, s75, {sCG}\ns_lshl_b32 s75, s75, 2\ns_add_u32 s74, s74, s75\ns_add_u32 s79, s74, {FX3}')
    a(f's_lshl_b32 s80, {sC}, 2\ns_and_b32 s75, {sS}, 3\ns_add_u32 s80, s80, s75\ns_lshl_b32 s80, s80, 7\ns_add_u32 s80, s80, {FX3}')
    a(f'v_lshrrev_b32 v249, 4, v{L16}\nv_min_u32 v249, 15, v249\nv_lshlrev_b32 v249, 2, v249')
    a('s_waitcnt vmcnt(0)\ns_barrier')
    a.reset_counts()
    a.flag_store('s79', 'v250', 'v251', rep=4, stride=128)
    a.st(tg + 'x3flag')
    if last: return
    lab = a.newlab('nd')
    a(f's_cmp_eq_u32 s{SW}, 1\ns_cbranch_scc1 {lab}')
    sv = a.vm_issued
    for i in range(5):
        (sa, oa), (sb, ob), (sc, oc) = PRE1[3*i:3*i+3]
        a(f's_mov_b32 s74, {sa*4096}\ns_mov_b32 s75, {oa}\ns_cmp_eq_u32 s{SW}, 2\ns_cselect_b32 s74, {sb*4096}, s74\ns_cselect_b32 s75, {ob}, s75')
        a(f's_cmp_eq_u32 s{SW}, 3\ns_cselect_b32 s74, {sc*4096}, s74\ns_cselect_b32 s75, {oc}, s75\ns_add_u32 s75, s75, {sW1}\ns_mov_b32 m0, s74')
        for j in range(4): a(f'buffer_load_dwordx4 v{L16}, {WS}, s75 offen offset:{1024*j}{SH} lds')
    a.vm_issued = sv
    a('s_waitcnt vmcnt(0)')
    a.label(lab)
    a.poll_w0(1, 'v249', 's80', 250, alt=(100, 104, 108))
    a.reset_counts()
```

```python
from g2base import *

CS = 4160
WLDS = 4*CS + 4608
CONV_BASE = LDS_BYTES - 4*WLDS
QBLK = 3
_nt = __import__('os').environ.get('NT', 'w,d,h').split(',')
POL = {k: (' nt' if k in _nt else '') for k in 'wkvhqsd'}
WPOL = ' nt' if 'wnt' in __import__('os').environ.get('EXP', '') else ''
FQBLK = int(__import__('os').environ.get('FQBLK', 1))
GPOL = {'': '', 'nt': ' nt', 'sc1': ' sc1', 'sc01': ' sc0 sc1', 'sc01nt': ' sc0 sc1 nt'}[__import__('os').environ.get('GPOL', '')]
EXP = __import__('os').environ.get('EXP', '')
NB1 = int(__import__('os').environ.get('NB1', 3))
import os
PBLK = int(os.environ.get('PBLK', 3))
STAGE1 = False
XLOC = int(os.environ.get('XLOC', 1))
VSP = int(os.environ.get('VSP', 0))
WBLK = int(os.environ.get('WBLK', 3))
NQ3 = int(os.environ.get('NQ3', 2))
VEND = int(os.environ.get('VEND', 6))
CB = os.environ.get('CB', '')
NDPP = int(os.environ.get('NDPP', 0))
CA2 = int(os.environ.get('CA2', 0))
LSTEP = int(os.environ.get('LSTEP', 2))
QDELAY = 4
CDEPTH = 3
TOUCH = True
NH0 = 3
WDRAW = 224
SWD = 48
HRAW = 192
SDQ = 's96'
SQC = 92
QRT = 128
QST_RAW = 168

def phase_T_with_tag(a):
    SK, SV, SSH, SH, SD = 8, 12, 16, 20, 24
    a('s_mul_i32 s28, s2, 205\ns_lshr_b32 s28, s28, 10')
    a('s_mul_i32 s29, s28, 5\ns_sub_u32 s29, s2, s29')
    a('v_bfe_u32 v1, v0, 4, 2\nv_lshrrev_b32 v2, 7, v0\nv_lshl_add_u32 v1, v2, 2, v1')
    a('v_and_b32 v2, 15, v0\nv_bfe_u32 v3, v0, 6, 1\nv_lshl_add_u32 v2, v3, 4, v2')
    a('s_mul_i32 s30, s28, 81920\ns_lshl_b32 s31, s29, 8\ns_add_u32 s30, s30, s31')
    a('v_mul_u32_u24 v3, 10240, v1\nv_lshl_add_u32 v3, v2, 3, v3\nv_add_u32 v3, s30, v3')
    a('v_add_u32 v4, 5120, v3\nv_subrev_u32 v5, 3840, v3')
    a('s_lshl_b32 s31, s29, 10\nv_lshlrev_b32 v6, 5, v2\nv_add_u32 v6, s31, v6')
    KR, VR, WR = 10, 32, 48
    for r in range(3):
        a(f'buffer_load_dwordx2 v[{KR+2*r}:{KR+2*r+1}], v5, s[{SK}:{SK+3}], 0 offen offset:{1280*r}{POL["k"]}')
    for r in range(8):
        a(f'buffer_load_dwordx2 v[{KR+6+2*r}:{KR+7+2*r}], v{3+(r>>2)}, s[{SK}:{SK+3}], 0 offen offset:{1280*(r&3)}{POL["k"]}')
    a(f'buffer_load_dwordx4 v[{WR}:{WR+3}], v6, s[{SSH}:{SSH+3}], 0 offen')
    tw = a(f'buffer_load_dwordx4 v[{WR+4}:{WR+7}], v6, s[{SSH}:{SSH+3}], 0 offen offset:16')
    tv = []
    for r in range(8):
        tv.append(a(f'buffer_load_dwordx2 v[{VR+2*r}:{VR+2*r+1}], v{3+(r>>2)}, s[{SV}:{SV+3}], 0 offen offset:{1280*(r&3)}{POL["v"]}'))
    a('v_and_b32 v8, 7, v2\nv_xor_b32 v8, v8, v1\nv_lshlrev_b32 v8, 4, v8\nv_lshl_add_u32 v8, v2, 9, v8')
    a('v_lshrrev_b32 v9, 5, v0\nv_and_b32 v7, 7, v0\nv_xor_b32 v9, v9, v7\nv_lshlrev_b32 v9, 4, v9\nv_lshrrev_b32 v148, 3, v0\nv_lshl_add_u32 v9, v148, 7, v9')
    a('s_lshl_b32 s30, s29, 19\ns_lshl_b32 s31, s28, 7\ns_add_u32 s30, s30, s31')
    a('v_lshlrev_b32 v7, 4, v7\nv_lshl_add_u32 v7, v148, 12, v7\nv_add_u32 v7, s30, v7')
    for c in range(4): a(f's_mov_b32 s{36+c}, {UT + c*131072}')
    a('s_mov_b32 s40, 0xffff0000')
    KF, WF, U = 56, 100, 116
    a.st('T_issued')
    if XLOC:
        a('s_waitcnt lgkmcnt(0)')
        tag_from_epoch(a)
        a.xt_publish(150, 154)
    a.wait_vm(tw)
    if 'kgate' in EXP:
        a('s_waitcnt lgkmcnt(0)')
        tag_from_epoch(a)
        a(f's_lshl_b32 s41, s2, 7\ns_add_u32 s41, s41, {FK}')
        a.flag_store('s41', 'v150', 'v151')
    a.st('T_kret')
    a(f's_and_b32 {SDQ}, s2, 7\ns_mul_i32 {SDQ}, {SDQ}, 20\ns_lshr_b32 s32, s2, 3\ns_add_u32 {SDQ}, {SDQ}, s32')
    a(f's_lshl_b32 s32, {SDQ}, 2\ns_add_u32 s32, s32, s{SW}')
    a('s_lshl_b32 s33, s32, 12')
    a(f's_add_u32 s{SH}, s{SH}, s33\ns_addc_u32 s{SH+1}, s{SH+1}, 0\ns_mov_b32 s{SH+2}, 4096')
    a('v_and_b32 v160, 63, v0\nv_lshlrev_b32 v161, 4, v160')
    a('v_subrev_u32 v162, 32, v161\nv_add_u32 v163, 16, v162\nv_add_u32 v164, 0x1000, v162\nv_add_u32 v165, 0x1000, v163')
    HR = HRAW
    for i in range(4):
        if i == 0:
            a(f'buffer_load_dwordx4 v[{HR}:{HR+3}], v162, s[{SH}:{SH+3}], 0 offen{POL["h"]}')
            a(f'buffer_load_dwordx2 v[{HR+4}:{HR+5}], v163, s[{SH}:{SH+3}], 0 offen{POL["h"]}')
        else:
            a(f'buffer_load_dwordx4 v[{HR+6*i}:{HR+6*i+3}], v161, s[{SH}:{SH+3}], 0 offen offset:{1024*i-32}{POL["h"]}')
            a(f'buffer_load_dwordx2 v[{HR+6*i+4}:{HR+6*i+5}], v161, s[{SH}:{SH+3}], 0 offen offset:{1024*i-16}{POL["h"]}')
    a(f'buffer_load_dwordx4 v[{HR+24}:{HR+27}], v164, s[{SH}:{SH+3}], 0 offen{POL["h"]}')
    th = a(f'buffer_load_dwordx2 v[{HR+28}:{HR+29}], v165, s[{SH}:{SH+3}], 0 offen{POL["h"]}')
    a('s_lshl_b32 s34, s32, 1\nv_mov_b32 v166, s34')
    tD = a(f'buffer_load_ushort v153, v166, s[{SD}:{SD+3}], 0 offen')
    for r in range(11):
        for p in range(2):
            a(f'v_lshlrev_b32 v{KF+4*r+2*p}, 16, v{KR+2*r+p}\nv_and_b32 v{KF+4*r+2*p+1}, s40, v{KR+2*r+p}')
    for c in range(4):
        for h in range(2):
            a(f'v_lshlrev_b32 v{WF+4*(2*h)+c}, 16, v{WR+2*c+h}\nv_and_b32 v{WF+4*(2*h+1)+c}, s40, v{WR+2*c+h}')
    for t in range(8):
        for p in range(2):
            d = U+4*t+2*p
            for j in range(4):
                k = KF+4*(t+3-j)+2*p; w = WF+4*j+2*p
                if j == 0: a(f'v_pk_mul_f32 v[{d}:{d+1}], v[{k}:{k+1}], v[{w}:{w+1}]')
                else: a(f'v_pk_fma_f32 v[{d}:{d+1}], v[{k}:{k+1}], v[{w}:{w+1}], v[{d}:{d+1}]')
    for t in range(8):
        a.wait_vm(tv[t])
        for p in range(2):
            x = KF+4*t+2*p
            a(f'v_lshlrev_b32 v{x}, 16, v{VR+2*t+p}\nv_and_b32 v{x+1}, s40, v{VR+2*t+p}')
            d = U+4*t+2*p
            a(f'v_pk_mul_f32 v[{d}:{d+1}], v[{d}:{d+1}], v[{x}:{x+1}]')
    O = 12
    for c in range(4):
        for q in range(4):
            a(f'v_cvt_pk_bf16_f32 v{O+4*c+q}, v{U+4*(7-2*q)+c}, v{U+4*(6-2*q)+c}')
        a(f'ds_write_b128 v8, v[{O+4*c}:{O+4*c+3}] offset:{128*c}')
    a('s_waitcnt lgkmcnt(0)\ns_barrier')
    tr = [a(f'ds_read_b128 v[{O+4*c}:{O+4*c+3}], v9 offset:{4096*c}') for c in range(4)]
    for c in range(4):
        a.wait_lg(tr[c])
        tst = a(f'buffer_store_dwordx4 v[{O+4*c}:{O+4*c+3}], v7, {WS}, s{36+c} offen sc1')
    a.st('T_stored')
    for r in range(8):
        a(f'buffer_load_dwordx2 v[{QRT+2*r}:{QRT+2*r+1}], v{3+(r>>2)}, s[{SQC}:{SQC+3}], 0 offen offset:{1280*(r&3)}{POL["q"]}')
    a(f's_lshl_b32 s98, s2, 2\ns_add_u32 s98, s98, s{SW}')
    a(f's_cmp_lt_u32 s2, 128\ns_cselect_b32 s99, 0, {OOB}\ns_mul_i32 s97, s98, 5120')
    a('v_bfe_u32 v150, v0, 4, 2\nv_mul_u32_u24 v150, 1280, v150\nv_and_b32 v151, 15, v0\nv_lshl_add_u32 v150, v151, 4, v150\nv_or_b32 v150, s99, v150')
    for i in range(5):
        tq = a(f'buffer_load_dwordx4 v[{QST_RAW+4*i}:{QST_RAW+4*i+3}], v150, s[{SQC}:{SQC+3}], s97 offen offset:{256*i}{POL["s"]}')
    a(f's_lshl_b32 s41, s29, 7\ns_add_u32 s41, s41, s28\ns_lshl_b32 s41, s41, 2\ns_add_u32 s41, s41, {FT}')
    return dict(th=th, tD=tD, tst=tst, tq=tq)

def q_retile(a, tk):
    a(f's_lshl_b32 s97, s{SW}, 12')
    a('v_lshlrev_b32 v24, 2, v16\nv_lshl_add_u32 v25, v15, 8, s97')
    a.wait_vm(tk['tq'])
    for j in range(4):
        a(f'v_add_u32 v27, {j}, v24\nv_xor_b32 v27, v27, v15\nv_lshl_add_u32 v27, v27, 4, v25')
        a(f'ds_write_b128 v27, v[{QRT+4*j}:{QRT+4*j+3}]')
    S0 = 188
    for i in range(5):
        for e in range(4):
            r = QST_RAW + 4*i + e
            h = e & 1
            first = (i == 0 and e < 2)
            a(f'v_dot2_f32_bf16 v{S0+2*h}, v{r}, s39, {"0" if first else f"v{S0+2*h}"}')
            a(f'v_dot2_f32_bf16 v{S0+2*h+1}, v{r}, v{r}, {"0" if first else f"v{S0+2*h+1}"}')
    a('s_waitcnt lgkmcnt(0)')
    for i in range(4):
        a(f'v_add_u32 v27, {4*i}, v16\nv_xor_b32 v26, v27, v15\nv_lshlrev_b32 v26, 4, v26\nv_lshl_add_u32 v26, v27, 8, v26\nv_add_u32 v26, s97, v26')
        tr = a(f'ds_read_b128 v[{QRT+4*i}:{QRT+4*i+3}], v26')
    a(f'v_add_f32 v{S0}, v{S0}, v{S0+2}\nv_add_f32 v{S0+1}, v{S0+1}, v{S0+3}')
    for rot in (8, 4, 2, 1):
        for e in range(2): a(f'v_add_f32_dpp v{S0+e}, v{S0+e}, v{S0+e} row_ror:{rot} row_mask:0xf bank_mask:0xf')
    a(f's_lshr_b32 s97, s{SW}, 1\ns_lshl_b32 s99, s28, 1\ns_add_u32 s97, s97, s99\ns_mul_i32 s97, s97, 40960')
    a(f's_and_b32 s99, s{SW}, 1\ns_lshl_b32 s99, s99, 12\ns_add_u32 s97, s97, s99\ns_lshl_b32 s99, s29, 13\ns_add_u32 s97, s97, s99\ns_add_u32 s97, s97, {QG}')
    a('s_mov_b32 s33, 0x3acccccd\ns_mov_b32 s34, 0x3727c5ac')
    m, q_ = S0, S0+1
    a(f'v_mul_f32 v{m}, s33, v{m}\nv_mul_f32 v{q_}, s33, v{q_}\nv_fma_f32 v{q_}, -v{m}, v{m}, v{q_}\nv_max_f32 v{q_}, 0, v{q_}\nv_add_f32 v{q_}, s34, v{q_}\nv_rsq_f32 v{q_}, v{q_}')
    a.wait_lg(tr)
    for i in range(4):
        a(f'buffer_store_dwordx4 v[{QRT+4*i}:{QRT+4*i+3}], v3, {WS}, s97 offen offset:{1024*i} sc1')
    a(f'v_mul_f32 v{m}, v{m}, v{q_}\nv_sub_f32 v{m}, 0, v{m}')
    a(f's_lshl_b32 s97, s98, 5\ns_add_u32 s97, s97, {QS}')
    a(f's_cmp_lt_u32 s2, 128\ns_cselect_b32 s99, 0, {OOB}\nv_lshlrev_b32 v26, 3, v16\nv_or_b32 v26, s99, v26')
    a('s_mov_b32 exec_lo, 0x00010001\ns_mov_b32 exec_hi, 0x00010001')
    t = a(f'buffer_store_dwordx2 v[{S0}:{S0+1}], v26, {WS}, s97 offen sc1')
    a('s_mov_b64 exec, -1')
    return t

def conv_pre(a, tk):
    HR = HRAW
    a('v_and_b32 v2, 63, v0\nv_lshlrev_b32 v3, 4, v2')
    a(f's_mul_i32 s35, s{SW}, {WLDS}\ns_add_u32 s35, s35, {CONV_BASE}')
    a('v_add_u32 v14, s35, v3')
    a('v_and_b32 v15, 15, v2\nv_lshrrev_b32 v16, 4, v2')
    a('v_add_u32 v17, 1, v15\nv_and_b32 v18, 3, v17\nv_lshrrev_b32 v17, 2, v17')
    a(f'v_mul_u32_u24 v18, {CS}, v18\nv_lshl_add_u32 v18, v17, 3, v18\nv_lshl_add_u32 v18, v16, 4, v18\nv_add_u32 v18, s35, v18')
    a(f'v_lshlrev_b32 v19, 5, v15\nv_lshlrev_b32 v20, 4, v16\nv_sub_u32 v19, v19, v20\nv_add_u32 v19, s35, v19\nv_add_u32 v19, {4*CS+528}, v19')
    a('v_mov_b32 v28, 0\nv_mov_b32 v29, 0\nv_mov_b32 v30, 0\nv_mov_b32 v31, 0')
    a('s_mov_b64 exec, 0xffffffff')
    a(f'ds_write_b128 v14, v[28:31] offset:{4*CS}')
    a('s_mov_b64 exec, -1')
    T0 = 96
    def hround(i):
        h = HR+6*i
        if i == 4: a('s_mov_b64 exec, 3')
        off = 1024*i
        a(f'ds_write_b128 v14, v[{h}:{h+3}] offset:{off}')
        for q in range(4): a(f'v_alignbit_b32 v{T0+q}, v{h+q+1}, v{h+q}, 16')
        a(f'ds_write_b128 v14, v[{T0}:{T0+3}] offset:{CS+off}')
        a(f'v_mov_b32 v{T0+4}, v{h+1}\nv_mov_b32 v{T0+5}, v{h+2}\nv_mov_b32 v{T0+6}, v{h+3}\nv_mov_b32 v{T0+7}, v{h+4}')
        a(f'ds_write_b128 v14, v[{T0+4}:{T0+7}] offset:{2*CS+off}')
        for q in range(4): a(f'v_alignbit_b32 v{T0+8+q}, v{h+q+2}, v{h+q+1}, 16')
        a(f'ds_write_b128 v14, v[{T0+8}:{T0+11}] offset:{3*CS+off}')
        if i == 4: a('s_mov_b64 exec, -1')
    a.wait_vm(tk['tst'])
    a('s_waitcnt lgkmcnt(0)')
    if 'kgate' not in EXP and not XLOC: tag_from_epoch(a)
    a('s_barrier')
    a.flag_store('s41', 'v4', 'v5', rep=4, stride=128)
    a.st('C_tflag')
    a.wait_vm(tk['tD'])
    a.st('C_hret')
    a(f's_lshr_b32 s42, {SDQ}, 5\ns_lshl_b32 s42, s42, 2\ns_and_b32 s43, s2, 3\ns_add_u32 s42, s42, s43\ns_lshl_b32 s42, s42, 7\ns_add_u32 s42, s42, {FT}')
    a('v_and_b32 v4, 31, v2\nv_lshlrev_b32 v4, 2, v4')
    tk['tp'] = a.poll1_issue(1, 'v4', 's42', 5)
    for i in range(5): hround(i)
    AD = 28
    a('v_lshl_add_u32 v21, v16, 3, v15\nv_sub_u32 v21, 15, v21')
    a('v_and_b32 v22, 1, v21\nv_lshlrev_b32 v22, 4, v22\nv_lshlrev_b32 v22, v22, v153\nv_ashrrev_i32 v21, 1, v21')
    a('s_waitcnt lgkmcnt(0)')
    for wd in range(4):
        a(f'v_cmp_eq_u32 vcc, {wd}, v21\nv_cndmask_b32 v{AD+wd}, 0, v22, vcc')
    a.st('C_hcopy')

def conv_main(a, tk):
    a.poll1_check(tk['tp'], 1, 'v4', 's42', 5, alt=(5, 6, 7))
    a.st('C_tpoll')
    a(f's_add_u32 s43, s33, {UT}\ns_add_u32 s44, s35, {4*CS+512}')
    a('s_mov_b32 m0, s44')
    for i in range(4):
        tu = a(f'buffer_load_dwordx4 v3, {WS}, s43 offen offset:{1024*i} sc1 lds')
    a('s_mov_b32 s39, 0x3f803f80')
    tqs = q_retile(a, tk)
    a.wait_vm(tu)
    a.st('C_uret')
    a('v_min_u32 v7, 23, v2\nv_lshlrev_b32 v7, 4, v7\nv_min_u32 v6, 39, v2\nv_lshlrev_b32 v6, 4, v6')
    a(f's_and_b32 s45, s2, 15\ns_lshl_b32 s52, s45, 9\ns_add_u32 s52, s52, {FW}\ns_lshl_b32 s45, s45, 10\ns_add_u32 s45, s45, {FQ}')
    tfw = []
    AD = 28
    A = [64, 128]; B = [96, 160]; ACC = 32
    def loads(buf, first=False):
        L = []
        for x in range(8):
            if first or (x >= NDPP and CB != 'none'):
                L.append(f'ds_read_b128 v[{B[buf]+4*x}:{B[buf]+4*x+3}], v19 offset:{512*x}')
            if CA2:
                L.append(f'ds_read2_b64 v[{A[buf]+4*x}:{A[buf]+4*x+3}], v{18 if x < 4 else 17} offset0:{64*(x&3)} offset1:{64*(x&3)+1}')
            else:
                L.append(f'ds_read_b64 v[{A[buf]+4*x}:{A[buf]+4*x+1}], v18 offset:{512*x}')
                L.append(f'ds_read_b64 v[{A[buf]+4*x+2}:{A[buf]+4*x+3}], v18 offset:{512*x+8}')
        return L
    def dpp_shift(buf):
        L = []
        m = 'row_mask:0xf bank_mask:0xf'
        for x in range(NDPP - 1, -1, -1):
            d = B[buf ^ 1] + 4*x; c = B[buf] + 4*x; p = c - 4
            if x == 0:
                L += [f'v_mov_b32_dpp v{d+r}, v{c+r} row_shr:2 {m} bound_ctrl:0' for r in range(4)]
            else:
                L += [f'v_mov_b32_dpp v{d+r}, v{p+r} row_ror:2 {m}' for r in range(4)]
                L += [f'v_mov_b32_dpp v{d+r}, v{c+r} row_shr:2 {m}' for r in range(4)]
        return L
    def adv():
        a('v_add_u32 v18, 64, v18')
        if CA2: a('v_add_u32 v17, 64, v17')
        if NDPP < 8: a('v_subrev_u32 v19, 64, v19')
    if CA2: a('v_add_u32 v17, 2048, v18')
    for s in loads(0, True): a(s)
    adv()
    a('s_waitcnt lgkmcnt(0)')
    for t in range(8):
        a(f'v_mfma_f32_16x16x32_bf16 v[{ACC+4*t}:{ACC+4*t+3}], v[{AD}:{AD+3}], v[{B[0]+4*t}:{B[0]+4*t+3}], 0')
    QR = 192; QLO = 208; QST = 224; LNQ = 96
    extra = {}
    q_tok = []; s_tok = []
    def fq_publish():
        a.wait_vm(tqs)
        a('s_barrier')
        a(f's_lshl_b32 s53, s2, 2\ns_add_u32 s53, s53, {FQ}')
        a.flag_store('s53', 'v26', 'v27', rep=16, stride=1024)
        a.st('C_fqpub')
    def fw_issue():
        a.st('C_b3')
        tfw.append(a.poll1_issue(4, 'v6', 's45', 20))
        tfw.append(a.poll1_issue(4, 'v7', 's52', 8))
    def fw_check():
        a.st('C_b4')
        a.poll1_check(tfw[1], 4, 'v6', 's45', 20, barrier=False)
        a.st('C_fq')
        a.poll1_check(tfw[1], 4, 'v7', 's52', 8)
        a.st('C_fw')
    pt = {}
    def pw_issue(): pt['w'] = a.poll_issue(4, 'v7', 's52', 8)
    def pw_check():
        a.st('C_b3')
        a.poll_check(pt['w'], 4, 'v7', 's52', 8)
        a.st('C_fw')
    def pq_issue(): pt['q'] = a.poll_issue(4, 'v6', 's45', 20)
    def pq_check():
        a.st('C_b4')
        a.poll_check(pt['q'], 4, 'v6', 's45', 20)
        a.st('C_fq')
    def ql_addr():
        a('v_mul_u32_u24 v24, 40960, v16\nv_lshl_add_u32 v24, v15, 4, v24')
        a(f's_mul_i32 s48, s{SW}, {16*40960}\ns_lshl_b32 s49, {SDQ}, 8\ns_add_u32 s48, s48, s49')
        a(f's_add_u32 s46, s48, {QG}\ns_add_u32 s49, s48, {YG}\ns_add_u32 s48, s48, {X1}')
        a(f's_lshl_b32 s47, s{SW}, 12\ns_add_u32 s47, s47, {QS}')
    def q_load(k):
        def f():
            if k > 0: a(f's_add_u32 s46, s46, {4*40960}')
            q_tok.append(a(f'buffer_load_dwordx4 v[{QR+4*k}:{QR+4*k+3}], v24, {WS}, s46 offen sc1'))
            s_tok.append(a(f'buffer_load_dwordx4 v[{QST+4*k}:{QST+4*k+3}], v3, {WS}, s47 offen offset:{1024*k} sc1'))
        return f
    import g2g
    unp = []
    for k in range(4):
        unp.append(lambda k=k: a.wait_vm(s_tok[k]))
        for i in range(4*k, 4*k+4):
            unp.append(f'v_lshlrev_b32 v{QLO+i}, 16, v{QR+i}')
            unp.append(f'v_and_b32 v{QR+i}, s40, v{QR+i}')
        for tok in range(2):
            for c in range(4):
                iq = 4*k + 2*tok + (c >> 1)
                rq = (QLO+iq) if (c & 1) == 0 else (QR+iq)
                unp.append(f'v_fma_f32 v{LNQ+8*k+4*tok+c}, v{rq}, v{QST+4*k+2*tok+1}, v{QST+4*k+2*tok}')
    cs_tok = []
    quads = [[f's_add_u32 s81, s{SW}, {4*i}', 's_min_u32 s81, s81, 18'] + g2g.quad_dma_dyn('s81', 'v3') for i in range(5)]
    GQ = []
    def gq(at, items, v=None):
        for it in items: GQ.append([at, it, (isinstance(it, str) and it.startswith('buffer_')) if v is None else v])
    if VSP:
        def q_ld(k, part):
            def f():
                if part == 0:
                    if k > 0: a(f's_add_u32 s46, s46, {4*40960}')
                    q_tok.append(a(f'buffer_load_dwordx4 v[{QR+4*k}:{QR+4*k+3}], v24, {WS}, s46 offen sc1'))
                else:
                    s_tok.append(a(f'buffer_load_dwordx4 v[{QST+4*k}:{QST+4*k+3}], v3, {WS}, s47 offen offset:{1024*k} sc1'))
            return f
        gq(36*FQBLK, [fq_publish], False)
        gq(36*(WBLK - 1), [pw_issue], True)
        gq(36*(WBLK - 1), [ql_addr], False)
        gq(36*WBLK, [pw_check], False)
        if WBLK == PBLK: gq(36*PBLK, [pq_issue], True)
        nq = 0
        if WBLK == PBLK:
            for L in quads[:NQ3]: gq(36*WBLK, L)
            nq = NQ3
        else:
            gq(36*PBLK, [pq_issue], True)
        gq(36*(PBLK + 1), [pq_check], False)
        for k in range(4):
            gq(36*(PBLK + 1), [q_ld(k, 0), q_ld(k, 1)], True)
        for L in quads[nq:]: gq(36*(PBLK + 1), L)
        gq(36*(PBLK + 1), g2g.cs_issue_list('v3'))
        gq(36*(PBLK + 1), [lambda: cs_tok.append(a.vm_issued)], False)
        extra[7] = unp
    else:
        extra[FQBLK] = [fq_publish]
        extra.setdefault(2, []).append(ql_addr)
        extra.setdefault(PBLK, []).append(fw_issue)
        extra[7] = unp
        b0 = PBLK + 1
        extra[b0] = [fw_check] + [q_load(k) for k in range(4)]
        for i in range(5):
            extra.setdefault(min(b0 + (i+1)//2, 6), []).extend(quads[i])
        extra.setdefault(6, []).extend(g2g.cs_issue_list('v3'))
        extra[6].append(lambda: cs_tok.append(a.vm_issued))
    lastv = -99
    for blk in range(8):
        if blk == 7: a.st('C_b7')
        buf = blk & 1
        L = loads(buf ^ 1) if blk < 7 else []
        Dp = dpp_shift(buf) if blk < 7 and CB != 'none' else []
        X = list(extra.get(blk, []))
        n = 0
        for q in range(8):
            for dl in range(8 - q):
                t = q + dl
                a(f'v_mfma_f32_16x16x32_bf16 v[{ACC+4*t}:{ACC+4*t+3}], v[{A[buf]+4*q}:{A[buf]+4*q+3}], v[{B[buf]+4*dl}:{B[buf]+4*dl+3}], v[{ACC+4*t}:{ACC+4*t+3}]')
                if not NDPP:
                    m = 0
                    if n < len(L): a(L[n]); m += 1
                    if X and (n >= len(L) or n % 2 == 0 or len(X) > 36 - n):
                        x = X.pop(0)
                        x() if callable(x) else a(x)
                        m += 1
                    slot = 36*blk + n
                    while GQ and m < 3 and GQ[0][0] <= slot and not (GQ[0][2] and slot - lastv < VSP):
                        _, x, isv = GQ.pop(0)
                        x() if callable(x) else a(x)
                        m += 1
                        if isv: lastv = slot
                else:
                    m = 0
                    if L and (n % LSTEP == 0 or len(L) > 35 - n): a(L.pop(0)); m += 1
                    if X and (n % 2 == 0 or len(X) > 36 - n):
                        x = X.pop(0)
                        x() if callable(x) else a(x)
                        m += 1
                    while Dp and (m < 3 or len(Dp) > 3*(35 - n)):
                        a(Dp.pop(0)); m += 1
                n += 1
        for x in X: x() if callable(x) else a(x)
        if NDPP: assert not L and not Dp
        if blk == VEND: assert not GQ, len(GQ)
        if blk < 7:
            adv()
            a('s_waitcnt lgkmcnt(0)')
    a.st('C_loop')
    a('v_lshlrev_b32 v21, 6, v15\nv_lshl_add_u32 v21, v16, 4, v21\nv_add_u32 v21, s35, v21')
    for t in range(8):
        r = ACC+4*t
        a(f'ds_write_b128 v21, v[{r}:{r+3}] offset:{1024*t}')
    a(f's_lshl_b32 s47, s{SW}, 11\ns_add_u32 s47, s47, {CONV_BASE}\nv_lshl_add_u32 v22, v2, 3, s47')
    a(f'v_add_u32 v23, {2*WLDS}, v22')
    a('s_waitcnt lgkmcnt(0)\ns_barrier')
    YV = 64
    tk = []
    for k in range(4):
        for c in range(4):
            base = 'v22' if c < 2 else 'v23'
            t = a(f'ds_read_b64 v[{YV+8*k+2*c}:{YV+8*k+2*c+1}], {base} offset:{(c&1)*WLDS + 512*k}')
        tk.append(t)
    O = 128
    for k in range(4):
        a.wait_lg(tk[k])
        for tok in range(2):
            for c in range(4):
                iq = 4*k + 2*tok + (c >> 1)
                rq = (QLO+iq) if (c & 1) == 0 else (QR+iq)
                a(f'v_fma_f32 v{rq}, v{LNQ+8*k+4*tok+c}, v{YV+8*k+2*c+tok}, v{rq}')
        o = O + 4*k
        for tok in range(2):
            for h in range(2):
                iq = 4*k + 2*tok + h
                a(f'v_cvt_pk_bf16_f32 v{o+2*tok+h}, v{QLO+iq}, v{QR+iq}')
        a(f'buffer_store_dwordx4 v[{o}:{o+3}], v24, {WS}, s48 offen sc1')
        if k < 3: a(f's_add_u32 s48, s48, {4*40960}')
    a.st('C_x1st')
    OY = 48
    for k in range(4):
        o = OY + 4*k
        for tok in range(2):
            for h in range(2):
                a(f'v_cvt_pk_bf16_f32 v{o+2*tok+h}, v{YV+8*k+4*h+tok}, v{YV+8*k+4*h+2+tok}')
    if not STAGE1:
        a.wait_vm(cs_tok[0])
        g2g.cs_finish(a)
    a('s_waitcnt vmcnt(0)\ns_barrier')
    a(f's_lshl_b32 s50, s2, 2\ns_add_u32 s51, s50, {FY}\ns_add_u32 s50, s50, {FX1}')
    a.flag_store('s50', 'v4', 'v5', rep=16, stride=1024)
    a.st('C_x1flag')
    if STAGE1:
        for k in range(4):
            o = OY + 4*k
            a(f'buffer_store_dwordx4 v[{o}:{o+3}], v24, {WS}, s49 offen sc1')
            if k < 3: a(f's_add_u32 s49, s49, {4*40960}')
        return
    a(f'v_mov_b32 v{g2g.YOFF}, v24\ns_mov_b32 {g2g.sYB}, s49\ns_mov_b32 {g2g.sROLE}, 1')
    g2g.l16(a)
    lab = a.newlab('nd')
    a(f's_cmp_eq_u32 s{SW}, 1\ns_cbranch_scc1 {lab}')
    a(f's_min_u32 s82, s{SW}, 1\ns_sub_u32 s82, s{SW}, s82\ns_add_u32 s82, s82, 19')
    sv = a.vm_issued
    for i in range(7):
        a('s_min_u32 s81, s82, 38')
        for x in g2g.quad_dma_dyn('s81', f'v{g2g.L16}'): a(x)
        a('s_add_u32 s82, s82, 3')
    a.vm_issued = sv
    a.label(lab)
    g2g.g1_consts(a)

def allred_rows(a, regs, tmp):
    for r in regs:
        a(f'v_mov_b32 {tmp}, {r}\nv_permlane16_swap_b32 {tmp}, {r}\nv_add_f32 {r}, {r}, {tmp}')
    for r in regs:
        a(f'v_mov_b32 {tmp}, {r}\nv_permlane32_swap_b32 {tmp}, {r}\nv_add_f32 {r}, {r}, {tmp}')

QR0 = 164
QS_LDS = 0x15000
PR, PO, PCS, PONE = 20, 116, 208, 204
SG, SU, SDN, SQ = 8, 12, 16, 20

QRAW = 164
def qs_issue(a):
    a('s_mul_i32 s29, s50, 10240')
    a('v_mul_u32_u24 v13, 2560, v4\nv_lshl_add_u32 v13, v3, 4, v13')
    tk = []
    for g in range(2):
        for i in range(5):
            r = QRAW + 20*g + 4*i
            tk.append(a(f'buffer_load_dwordx4 v[{r}:{r+3}], v13, s[{SQ}:{SQ+3}], s29 offen offset:{1280*g + 256*i}'))
    return tk

def qs_finish(a, tk):
    S0 = 208
    for i in range(5):
        for g in range(2): a.wait_vm(tk[5*g+i]) if i == 0 or g == 1 else None
        for e in range(4):
            for g in range(2):
                r = QRAW + 20*g + 4*i + e
                s_, q_ = S0+2*g, S0+1+2*g
                first = (i == 0 and e == 0)
                a(f'v_dot2_f32_bf16 v{s_}, v{r}, s38, {"0" if first else f"v{s_}"}')
                a(f'v_dot2_f32_bf16 v{q_}, v{r}, v{r}, {"0" if first else f"v{q_}"}')
    for rot in (8, 4, 2, 1):
        for e in range(4): a(f'v_add_f32_dpp v{S0+e}, v{S0+e}, v{S0+e} row_ror:{rot} row_mask:0xf bank_mask:0xf')
    a('s_mov_b32 s33, 0x3acccccd\ns_mov_b32 s34, 0x3727c5ac')
    for tok in range(2):
        m, q_ = S0+2*tok, S0+1+2*tok
        a(f'v_mul_f32 v{m}, s33, v{m}\nv_mul_f32 v{q_}, s33, v{q_}\nv_fma_f32 v{q_}, -v{m}, v{m}, v{q_}\nv_max_f32 v{q_}, 0, v{q_}\nv_add_f32 v{q_}, s34, v{q_}\nv_rsq_f32 v{q_}, v{q_}')
        a(f's_nop 0\nv_mul_f32 v{m}, v{m}, v{q_}\nv_sub_f32 v{m}, 0, v{m}')
    a(f's_lshl_b32 s31, s50, 6\ns_add_u32 s31, s31, {QS}\nv_lshlrev_b32 v16, 4, v4')
    a('s_mov_b32 exec_lo, 0x00010001\ns_mov_b32 exec_hi, 0x00010001')
    t = a(f'buffer_store_dwordx4 v[{S0}:{S0+3}], v16, {WS}, s31 offen sc1')
    a('s_mov_b64 exec, -1')
    return t

def p_perms(a, t, ob):
    r = PR+16*t; O = PO+16*ob
    for c in range(4):
        for p in range(4):
            sel = 's36' if (c & 1) == 0 else 's37'
            a(f'v_perm_b32 v{O+4*c+p}, v{r+2*(2*p+1)+(c>>1)}, v{r+2*(2*p)+(c>>1)}, {sel}')

def w1_issue(a, t, T, masked=False):
    if 'oldtask' in EXP:
        a(f's_mul_i32 s24, {T}, 3277\ns_lshr_b32 s24, s24, 16\ns_mul_i32 s26, s24, 20\ns_sub_u32 s26, {T}, s26')
    else:
        a(f's_mul_i32 s26, {T}, 1214\ns_lshr_b32 s26, s26, 16\ns_mul_i32 s24, s26, 54\ns_sub_u32 s24, {T}, s24')
    a(f's_cmp_ge_u32 s24, 27\ns_cselect_b32 s{SG}, s{SU}, s{SGS}\ns_cselect_b32 s{SG+1}, s{SU+1}, s{SGS+1}')
    a('s_cselect_b32 s29, 27, 0\ns_cselect_b32 s30, 512, 0\ns_sub_u32 s24, s24, s29')
    a(f's_mul_i32 s31, s26, {32*3456}\ns_lshl_b32 s32, s24, 7\ns_add_u32 s31, s31, s32')
    v0 = PMSK if masked else 5
    for e in range(8):
        tk = a(f'buffer_load_dwordx2 v[{PR+16*t+2*e}:{PR+16*t+2*e+1}], v{v0+(e>>1)}, s[{SG}:{SG+3}], s31 offen offset:{3456*(e&1)}{POL["w"]}')
    a(f's_mul_i32 s31, s24, {4*40960}\ns_lshl_b32 s32, s26, 11\ns_add_u32 s31, s31, s32\ns_add_u32 s31, s31, s30\ns_add_u32 s{41+t}, s31, {W1P}')
    a(f's_mul_i32 s31, s26, 13824\ns_lshl_b32 s32, s24, 9\ns_add_u32 s31, s31, s32\ns_lshr_b32 s30, s30, 3\ns_add_u32 s31, s31, s30\ns_add_u32 s{47+t}, s31, {CSP}')
    return tk

def w1_finish(a, t, tk, ob, masked=False):
    a.wait_vm(tk)
    p_perms(a, t, ob)
    O = PO+16*ob; C = PCS + 16*ob
    vd = PMSK+4 if masked else 9
    vc = PMSK+5 if masked else 19
    vd2 = PMSK+6 if masked else 10
    for c in range(4):
        a(f'v_mfma_f32_16x16x32_bf16 v[{C+4*c}:{C+4*c+3}], v[{O+4*c}:{O+4*c+3}], v[{PONE}:{PONE+3}], 0')
        a(f'buffer_store_dwordx4 v[{O+4*c}:{O+4*c+3}], v{vd if c < 2 else vd2}, {WS}, s{41+t} offen offset:{128*(c&1)+256*(c>>1)} sc1')
    a('s_mov_b32 exec_lo, 0x00010001\ns_mov_b32 exec_hi, 0x00010001')
    for c in range(4):
        a(f'buffer_store_dwordx4 v[{C+4*c}:{C+4*c+3}], v{vc}, {WS}, s{47+t} offen offset:{16*c} sc1')
    a('s_mov_b64 exec, -1')

def wd_addr(a, vl_quad, vl_grp, vsa, vsb, vd, vt):
    a(f'v_lshrrev_b32 v{vsa}, 1, v{vl_grp}\nv_lshlrev_b32 v{vsa}, 4, v{vsa}\nv_and_b32 v{vt}, 1, v{vl_grp}\nv_lshl_add_u32 v{vsa}, v{vt}, 2, v{vsa}')
    a(f'v_mul_u32_u24 v{vsa}, 1280, v{vsa}\nv_lshl_add_u32 v{vsa}, v{vl_quad}, 3, v{vsa}\nv_add_u32 v{vsb}, 10240, v{vsa}')
    a(f'v_and_b32 v{vd}, 3, v{vl_quad}\nv_lshlrev_b32 v{vd}, 4, v{vd}\nv_lshl_add_u32 v{vd}, v{vl_grp}, 8, v{vd}')
    a(f'v_lshrrev_b32 v{vt}, 2, v{vl_quad}\nv_mul_u32_u24 v{vt}, 55296, v{vt}\nv_add_u32 v{vd}, v{vt}, v{vd}')

def wd_issue(a, raw, T, sdst, srd, vsa, vsb, st=('s29', 's30', 's31', 's32')):
    x, y, z, u = st
    a(f's_min_u32 {x}, {T}, 539\ns_mul_i32 {y}, {x}, 6554\ns_lshr_b32 {y}, {y}, 16')
    a(f's_mul_i32 {z}, {y}, 10\ns_sub_u32 {x}, {x}, {z}')
    a(f's_mul_i32 {z}, {y}, 4682\ns_lshr_b32 {z}, {z}, 16\ns_mul_i32 {u}, {z}, 14\ns_sub_u32 {u}, {y}, {u}')
    a(f's_mov_b32 s57, {u}\ns_mov_b32 s58, 0\ns_mov_b32 s55, 0')
    for q0, unit, pair in ((4, 2, 1), (6, 3, 1), (8, 4, 0), (12, 6, 1)):
        a(f's_sub_u32 s63, {u}, {q0}')
        if pair: a('s_lshl_b32 s63, s63, 1')
        a(f's_cmp_ge_u32 {u}, {q0}\ns_cselect_b32 s57, s63, s57\ns_cselect_b32 s58, {unit}, s58\ns_cselect_b32 s55, {pair}, s55')
    a(f's_cmp_eq_u32 {z}, 3\ns_cselect_b32 s63, 5, 6\ns_mul_i32 s55, s55, s63')
    a(f'v_mul_u32_u24 v{vsa+WDA_T}, s55, v{vsa+WDA_D}\nv_add_u32 v{vsa+WDA_T+1}, v{vsb}, v{vsa+WDA_T}\nv_add_u32 v{vsa+WDA_T}, v{vsa}, v{vsa+WDA_T}')
    a(f's_lshl_b32 {z}, {z}, 2\ns_add_u32 s57, s57, {z}')
    a(f's_mul_i32 {z}, s57, 7\ns_mul_i32 {u}, s57, 6\ns_add_u32 {u}, {u}, 12\ns_cmp_lt_u32 s57, 12\ns_cselect_b32 {z}, {z}, {u}\ns_add_u32 {z}, {z}, s58')
    a(f's_mul_i32 {z}, {z}, {16*1280}\ns_lshl_b32 {u}, {x}, 7\ns_add_u32 {z}, {z}, {u}')
    for e in range(8):
        tk = a(f'buffer_load_dwordx2 v[{raw+2*e}:{raw+2*e+1}], v{vsa+WDA_T+(e>>2)}, s[{srd}:{srd+3}], {z} offen offset:{1280*(e&3)}{POL["d"]}')
    a(f's_mul_i32 {z}, {x}, {4*55296}\ns_lshl_b32 {u}, {y}, 10\ns_add_u32 {z}, {z}, {u}\ns_add_u32 {sdst}, {z}, {WDP}')
    return tk

def wd_finish(a, raw, O, tk, sdst, vd, sel0, sel1):
    a.wait_vm(tk)
    for c in range(4):
        for p in range(4):
            sel = sel0 if (c & 1) == 0 else sel1
            a(f'v_perm_b32 v{O+4*c+p}, v{raw+2*(2*p+1)+(c>>1)}, v{raw+2*(2*p)+(c>>1)}, {sel}')
    for c in range(4):
        t = a(f'buffer_store_dwordx4 v[{O+4*c}:{O+4*c+3}], v{vd}, {WS}, {sdst} offen offset:{64*c} sc1')
    return t

SGS = 52
WDA = 240
WDA_D, WDA_T = 4, 5
def p_flag(a, base, stride, sreg='s56'):
    a(f's_lshl_b32 {sreg}, s28, 2\ns_add_u32 {sreg}, {sreg}, {base}')
    a.flag_store(sreg, 'v16', 'v17', rep=16, stride=stride)

def phase_P(a):
    global tag_from_epoch
    if 'kgate' in EXP:
        a('s_waitcnt lgkmcnt(0)')
        tag_from_epoch(a)
        tag_from_epoch = lambda a: None
        a(f'v_mov_b32 v4, 0\ns_sub_u32 s42, s2, 96\ns_lshl_b32 s42, s42, 7\ns_add_u32 s42, s42, {FK}')
        a.poll_w0(1, 'v4', 's42', 5)
        a.st('P_gate')
    if 'pwait' in EXP:
        a('s_waitcnt lgkmcnt(0)')
        tag_from_epoch(a)
        tag_from_epoch = lambda a: None
        a(f'v_and_b32 v4, 31, v0\nv_lshlrev_b32 v4, 2, v4\ns_mov_b32 s42, {FT}')
        a.poll_w0(1, 'v4', 's42', 5)
    a(f's_mov_b32 s{SGS}, s{SG}\ns_mov_b32 s{SGS+1}, s{SG+1}')
    a('s_sub_u32 s28, s2, 160')
    a('v_and_b32 v2, 63, v0\nv_and_b32 v3, 15, v2\nv_lshrrev_b32 v4, 4, v2')
    a('s_mov_b32 s36, 0x05040100\ns_mov_b32 s37, 0x07060302\ns_mov_b32 s38, 0x3f803f80')
    a(f's_lshl_b32 s50, s28, 2\ns_add_u32 s50, s50, s{SW}')
    a('s_mul_i32 s25, s50, 3')
    def w1_addr():
        a('v_mul_u32_u24 v5, 27648, v4\nv_lshl_add_u32 v5, v3, 3, v5')
        a('v_add_u32 v6, 6912, v5\nv_add_u32 v7, 13824, v5\nv_add_u32 v8, 20736, v5')
        a('v_and_b32 v12, 3, v3\nv_lshlrev_b32 v12, 4, v12\nv_and_b32 v19, 1, v4\nv_lshl_add_u32 v12, v19, 6, v12')
        a('v_lshrrev_b32 v19, 1, v4\nv_lshl_add_u32 v12, v19, 10, v12')
        a('v_lshrrev_b32 v19, 2, v3\nv_mul_u32_u24 v9, 40960, v19\nv_add_u32 v9, v9, v12\nv_xor_b32 v10, 64, v9')
        a('v_lshlrev_b32 v19, 7, v4')
        for i in range(4): a(f'v_mov_b32 v{PONE+i}, s38')
        a(f's_cmp_lt_u32 s25, 1080\ns_cselect_b32 s35, 0, {OOB}')
        for r in (5, 6, 7, 8, 9, 10, 19): a(f'v_or_b32 v{r}, s35, v{r}')
        wd_addr(a, 3, 4, WDA, WDA+1, WDA+2, WDA+3)
        a(f'v_lshrrev_b32 v{WDA+WDA_D}, 1, v4\nv_mul_u32_u24 v{WDA+WDA_D}, {16*1280}, v{WDA+WDA_D}')
    def w1_task(t):
        a(f's_add_u32 s33, s25, {t}\ns_min_u32 s33, s33, 1079')
        return w1_issue(a, t, 's33')
    def first_batch():
        if 'tagw' in EXP: a('s_waitcnt lgkmcnt(0)')
        tk = [w1_task(t) for t in range(NB1)]
        if NB1 > 0 and NB1 < 3: a.wait_vm(tk[0])
        a.st('P_b1')
        tk += [w1_task(t) for t in range(NB1, 3)]
        return tk
    WDS = ('s29', 's30', 's31', 's32')
    w1_addr()
    tA = first_batch()
    if XLOC:
        a('s_waitcnt lgkmcnt(0)')
        tag_from_epoch(a)
        a.xt_publish(16, 14)
    a.st('P_issued')
    for t in range(3): w1_finish(a, t, tA[t], t & 1)
    tw = a.vm_issued
    a.st('P_w1st')
    td = wd_issue(a, PR+48, 's50', 's44', SDN, WDA, WDA+1, st=WDS)
    a('s_add_u32 s54, s50, 384\ns_cmp_lt_u32 s50, 156\ns_cselect_b32 s51, 1, 0')
    if not XLOC:
        a('s_waitcnt lgkmcnt(0)')
        tag_from_epoch(a)
    a.wait_vm(tw)
    a('s_barrier')
    p_flag(a, FW, 512)
    a.st('P_w1')
    g2g_guarded(a, 's51', lambda: wd_issue(a, PR+64, 's54', 's45', SDN, WDA, WDA+1, st=WDS))
    wd_finish(a, PR+48, PO, td, 's44', WDA+2, 's36', 's37')
    def second():
        a('s_waitcnt vmcnt(0)')
        wd_finish(a, PR+64, PO+16, None, 's45', WDA+2, 's36', 's37')
    g2g_guarded(a, 's51', second)
    a.label('L_pp_end')
    a('s_waitcnt vmcnt(0)\ns_barrier')
    a.reset_counts()
    p_flag(a, FWD, 512)
    a.st('P_done')
    if STAGE1: return
    import g2g
    a(f's_mov_b32 {g2g.sROLE}, 0')
    g2g.l16(a)
    a(f'v_lshrrev_b32 v88, 4, v{g2g.L16}\nv_min_u32 v88, 23, v88\nv_lshlrev_b32 v88, 4, v88')
    a(f's_and_b32 s45, s2, 15\ns_lshl_b32 s45, s45, 9\ns_add_u32 s45, s45, {FW}')
    a.poll_w0(4, 'v88', 's45', 84)
    a.st('P_fw')
    for i in range(10):
        a(f's_add_u32 s81, s{SW}, {4*i}\ns_min_u32 s81, s81, 38')
        for x in g2g.quad_dma_dyn('s81', f'v{g2g.L16}'): a(x)
    for x in g2g.cs_issue_list(f'v{g2g.L16}'): a(x)
    g2g.g1_consts(a)
    a('s_waitcnt vmcnt(0)')
    g2g.cs_finish(a)

def g2g_guarded(a, reg, fn):
    import g2g
    g2g.guarded(a, reg, fn)
```

```python
from asmlib import Asm

S, D, F = 2048, 640, 1728
FLG  = 0x0000000
E_OFF = FLG + 0x0
FT   = FLG + 0x1000
FQ   = FLG + 0x1B000
FW   = FLG + 0x11000
FK   = FLG + 0x16000
FY   = FLG + 0x2400
FWD  = FLG + 0x13000
FH   = [FLG + 0x3000, FLG + 0x5000]
FX3  = FLG + 0xC000
FX1  = FLG + 0x8000
ST   = [0x2440000, 0x2460000]
XT   = FLG + 0x7000
XS   = FLG + 0x20000
STAMPS = FLG + 0x80000
UT   = 0x0100000
QG   = 0x0380000
QS   = 0x0600000
X1   = 0x0880000
YG   = 0x0B00000
X3   = 0x0D80000
W1P  = 0x1000000
WDP  = 0x1440000
CSP  = 0x1660000
H0   = 0x16C0000
H1   = 0x1D80000
WS_USED = 0x2480000
HB = [H0, H1]
OOB = 0x80000000
LDS_BYTES = 163840

KA = dict(q=0, k=8, v=16, shk=24, ssmk=32, ssmD=40, x=48, wg=56, wu=64, wd=72, out=80, dbg=88, ws=96)
SZ = dict(q=S*D*2, k=S*D*2, v=S*D*2, shk=D*8, ssmk=D*S*2, ssmD=D*2, wg=D*F*2, wu=D*F*2, wd=D*F*2, out=S*D*2, dbg=256, ws=WS_USED)

SWS = 4
STAG = 3
SW = 59
SLOC = 89
POLL_LIMIT = 20000
PIPE = int(__import__('os').environ.get('PIPE', 0))
BACKOFF = int(__import__('os').environ.get('BACKOFF', 0))
MASKP = int(__import__('os').environ.get('MASKP', 0))
WS = f's[{SWS}:{SWS+3}]'

class K(Asm):
    def __init__(self, timing=False):
        super().__init__()
        self.timing = timing
        self.nst = 0
        self.stnames = []
        self.tail = []
        self.uid = 0
    def newlab(self, p):
        self.uid += 1
        return f'L_{p}_{self.uid}'
    def st(self, name):
        if not self.timing: return
        if name in self.stnames: i = self.stnames.index(name)
        else:
            i = len(self.stnames); self.stnames.append(name)
        assert i < 64, name
        import os
        op = 's_memtime' if os.environ.get('STCYC') else 's_memrealtime'
        self(f'{op} s[60:61]\ns_waitcnt lgkmcnt(0)\nv_writelane_b32 v255, s60, {i}')
        self.lg_done = self.lg_issued
    def st_init(self):
        if not self.timing: return
        self('v_mov_b32 v255, 0')
    def st_flush(self, layer, vt='v254'):
        if not self.timing: return
        a = self
        a(f's_lshl_b32 s60, s2, 2\ns_add_u32 s60, s60, s{SW}\ns_lshl_b32 s60, s60, 9\ns_add_u32 s60, s60, {STAMPS}')
        a(f's_add_u32 s60, s60, {layer*256 if isinstance(layer, int) else layer}')
        a(f'v_mbcnt_lo_u32_b32 {vt}, -1, 0\nv_mbcnt_hi_u32_b32 {vt}, -1, {vt}\nv_lshlrev_b32 {vt}, 2, {vt}')
        a(f'buffer_store_dword v255, {vt}, {WS}, s60 offen')
    def srd_load(self, r, name):
        self(f's_load_dwordx2 s[{r}:{r+1}], s[0:1], {KA[name]}')
    def srd_fin(self, r, name):
        self(f's_mov_b32 s{r+2}, {SZ[name]}\ns_mov_b32 s{r+3}, 0x00020000')
    def flag_store(self, soff, vz, vt, rep=1, stride=0, wave=0, pol=' sc1'):
        a = self
        lab = a.newlab('fs')
        a(f's_cmp_lg_u32 s{SW}, {wave}\ns_cbranch_scc1 {lab}')
        if rep == 1:
            a(f'v_mov_b32 {vz}, 0')
        else:
            a(f'v_mbcnt_lo_u32_b32 {vz}, -1, 0\nv_mul_u32_u24 {vz}, {stride}, {vz}')
        a(f'v_mov_b32 {vt}, s{STAG}\ns_mov_b64 exec, {(1 << rep) - 1}')
        a(f'buffer_store_dword {vt}, {vz}, {WS}, {soff} offen{pol}')
        a.vm_issued -= 1
        a('s_mov_b64 exec, -1')
        a.label(lab)
    def xt_publish(self, vz, vd, wave=0):
        a = self
        lab = a.newlab('xt')
        a(f's_getreg_b32 s{SLOC}, hwreg(HW_REG_XCC_ID, 0, 4)')
        a(f's_cmp_lg_u32 s{SW}, {wave}\ns_cbranch_scc1 {lab}')
        a(f's_and_b32 s90, s2, 7\ns_lshl_b32 s90, s90, 8\ns_lshr_b32 s91, s2, 3\ns_lshl_b32 s91, s91, 3\ns_add_u32 s90, s90, s91\ns_add_u32 s90, s90, {XT}')
        a(f'v_mov_b32 v{vz}, 0\nv_mov_b32 v{vd}, s{STAG}\nv_mov_b32 v{vd+1}, s{SLOC}\ns_mov_b64 exec, 1')
        a(f'buffer_store_dwordx2 v[{vd}:{vd+1}], v{vz}, {WS}, s90 offen sc1')
        a.vm_issued -= 1
        a('s_mov_b64 exec, -1')
        a.label(lab)
    def xt_issue(self, va, vd):
        a = self
        a(f'v_mbcnt_lo_u32_b32 v{va}, -1, 0\nv_mbcnt_hi_u32_b32 v{va}, -1, v{va}\nv_min_u32 v{va}, 31, v{va}\nv_lshlrev_b32 v{va}, 3, v{va}')
        a(f's_and_b32 s90, s2, 7\ns_lshl_b32 s90, s90, 8\ns_add_u32 s90, s90, {XT}')
        return a.poll_issue(2, f'v{va}', 's90', vd)
    def xt_check(self, tok, va, vd):
        a = self
        a.poll_check(tok, 2, f'v{va}', 's90', vd, cmp=lambda: a(f'v_cmp_ne_u32 vcc, s{STAG}, v{vd}'))
        a(f'v_cmp_ne_u32 vcc, s{SLOC}, v{vd+1}\ns_cmp_eq_u64 vcc, 0\ns_cselect_b32 s{SLOC}, 1, 0')
        if __import__('os').environ.get('FORCEG'): a(f's_mov_b32 s{SLOC}, 0')
    def mstore(self, text):
        a = self
        lg = a.newlab('mg'); lb = a.newlab('mb')
        lines = text.strip().split('\n')
        a(f's_cmp_eq_u32 s{SLOC}, 0\ns_cbranch_scc1 {lg}')
        t = None
        for x in lines: t = a(x)
        a.label(lb)
        def tail():
            a.label(lg)
            sv = (a.vm_issued, a.vm_done)
            for x in lines: a(x + ' sc1')
            a.vm_issued, a.vm_done = sv
            a(f's_branch {lb}')
        a.tail.append(tail)
        return t
    def poll_w0(self, nd, vaddr, soff, vd, wave=1, **kw):
        a = self
        lab = a.newlab('pw')
        sv = (a.vm_issued, a.vm_done)
        a(f's_cmp_lg_u32 s{SW}, {wave}\ns_cbranch_scc1 {lab}')
        a.poll(nd, vaddr, soff, vd, **kw)
        a.label(lab)
        a.vm_issued, a.vm_done = sv
        a('s_barrier')
    def poll1_issue(self, nd, vaddr, soff, vd, wave=1, off=0):
        a = self
        lab = a.newlab('p1')
        a(f's_cmp_lg_u32 s{SW}, {wave}\ns_cbranch_scc1 {lab}')
        a.poll_issue(nd, vaddr, soff, vd, off)
        a.vm_issued -= 1
        a.label(lab)
        return a.vm_issued
    def poll1_check(self, mark, nd, vaddr, soff, vd, wave=1, barrier=True, **kw):
        a = self
        lab = a.newlab('p1c')
        sv = (a.vm_issued, a.vm_done)
        a(f's_cmp_lg_u32 s{SW}, {wave}\ns_cbranch_scc1 {lab}')
        n = min(a.vm_issued - mark, 63)
        a(f's_waitcnt vmcnt({n})')
        a.vm_done = sv[1]
        a.poll_check(None, nd, vaddr, soff, vd, **kw)
        a.label(lab)
        a.vm_issued, a.vm_done = sv
        if barrier: a('s_barrier')
    def _cmp(self, nd, vd):
        a = self
        if nd == 1:
            a(f'v_cmp_ne_u32 vcc, s{STAG}, v{vd}')
        else:
            for i in range(nd): a(f'v_xor_b32 v{vd+i}, s{STAG}, v{vd+i}')
            if nd == 2: a(f'v_or_b32 v{vd}, v{vd}, v{vd+1}')
            else: a(f'v_or3_b32 v{vd}, v{vd}, v{vd+1}, v{vd+2}\nv_or_b32 v{vd}, v{vd}, v{vd+3}')
            a(f'v_cmp_ne_u32 vcc, 0, v{vd}')
    def poll_issue(self, nd, vaddr, soff, vd, off=0):
        op = {1: 'buffer_load_dword', 2: 'buffer_load_dwordx2', 4: 'buffer_load_dwordx4'}[nd]
        reg = f'v{vd}' if nd == 1 else f'v[{vd}:{vd+nd-1}]'
        o = f' offset:{off}' if off else ''
        return self(f'{op} {reg}, {vaddr}, {WS}, {soff} offen{o} sc1')
    def poll_check(self, tok, nd, vaddr, soff, vd, scnt='s57', off=0, cmp=None, alt=None):
        a = self
        cmp0 = cmp or (lambda: a._cmp(nd, vd))
        lspin = a.newlab('spin'); lback = a.newlab('back')
        a.wait_vm(tok)
        cmp0()
        a(f's_cbranch_vccnz {lspin}')
        a.label(lback)
        def tail():
            a.label(lspin)
            a(f's_mov_b32 {scnt}, {POLL_LIMIT}')
            lp = a.newlab('lp')
            if alt and PIPE:
                for i, r in enumerate(alt):
                    a.poll_issue(nd, vaddr, soff, r, off)
                    if i < len(alt) - 1: a(f's_sleep {PIPE}')
                a.label(lp)
                for r in alt:
                    a(f's_waitcnt vmcnt({len(alt) - 1})')
                    a._cmp(nd, r)
                    a(f's_cbranch_vccz {lback}')
                    a.poll_issue(nd, vaddr, soff, r, off)
            else:
                a.label(lp)
                if MASKP: a('s_mov_b64 exec, vcc')
                if BACKOFF: a(f's_sleep {BACKOFF}')
                a.poll_issue(nd, vaddr, soff, vd, off)
                a('s_waitcnt vmcnt(0)')
                cmp0()
                if MASKP:
                    lx = a.newlab('px')
                    a(f's_cbranch_vccz {lx}')
                else:
                    a(f's_cbranch_vccz {lback}')
            a(f's_sub_u32 {scnt}, {scnt}, 1\ns_cbranch_scc0 {lp}')
            if MASKP and not (alt and PIPE):
                a.label(lx)
                a('s_mov_b64 exec, -1')
            a(f's_branch {lback}')
        a.tail.append(tail)
    def poll(self, nd, vaddr, soff, vd, **kw):
        t = self.poll_issue(nd, vaddr, soff, vd, kw.get('off', 0))
        self.poll_check(t, nd, vaddr, soff, vd, **kw)
    def emit_tail(self):
        for t in self.tail: t()
        self.tail = []
```

```python
from g2base import *
import os
SH = '' if os.environ.get('PLAIN') else ' sc1'

sC, sS, sU0, sW1, sTB, sCG, sROLE = 's64', 's65', 's66', 's67', 's68', 's69', 's70'
sW4K = 's71'
sYB = 's73'
L16, WA, HOFF, NM, K1, IR2, CSR, CSA, YOFF = 224, 225, 228, 229, 230, 231, 232, 248, 249
XF = 64
WB = 232
NB, AHEAD = 6, 4
CS_LDS = 159744
RED = 29*4096
SOUT = 8

MAP = int(os.environ.get('MAP', 0))
LOC = os.environ.get('LOC', '')
HPOL = '' if 'h' in LOC else ' sc1'
XPOL = '' if 'x' in LOC else ' sc1'
FPOL = '' if 'f' in LOC else ' sc1'
TPOL = '' if 't' in LOC else ' sc1'
def role_setup(a):
    a('s_and_b32 s62, s2, 7\ns_lshr_b32 s63, s2, 3')
    if MAP == 0:
        a(f's_lshr_b32 {sC}, s62, 1\ns_lshl_b32 {sC}, {sC}, 2\ns_lshr_b32 {sS}, s63, 3\ns_add_u32 {sC}, {sC}, {sS}')
        a(f's_lshr_b32 {sTB}, s62, 1\ns_lshl_b32 {sTB}, {sTB}, 3\ns_add_u32 {sTB}, {sTB}, {sS}')
        a(f's_and_b32 s62, s62, 1\ns_lshl_b32 {sCG}, s62, 2\ns_add_u32 {sTB}, {sTB}, {sCG}')
        a(f's_and_b32 {sCG}, s63, 7\ns_lshl_b32 {sS}, s62, 3\ns_add_u32 {sS}, {sS}, {sCG}')
    else:
        a(f's_lshr_b32 {sC}, s63, 4\ns_lshl_b32 {sS}, s62, 1\ns_add_u32 {sC}, {sC}, {sS}')
        a(f's_lshr_b32 {sTB}, s63, 3\ns_lshl_b32 {sS}, s62, 2\ns_add_u32 {sTB}, {sTB}, {sS}')
        a(f's_and_b32 {sS}, s63, 15\ns_and_b32 {sCG}, s63, 7')
    a(f's_mul_i32 {sU0}, {sS}, 7\ns_mul_i32 s62, {sS}, 6\ns_add_u32 s62, s62, 12\ns_cmp_lt_u32 {sS}, 12\ns_cselect_b32 {sU0}, {sU0}, s62')
    a(f's_mul_i32 {sW1}, {sU0}, 40960\ns_add_u32 {sW1}, {sW1}, {W1P}')
    a(f's_lshl_b32 {sW4K}, s{SW}, 12')

def l16(a):
    a(f'v_mbcnt_lo_u32_b32 v{L16}, -1, 0\nv_mbcnt_hi_u32_b32 v{L16}, -1, v{L16}\nv_lshlrev_b32 v{L16}, 4, v{L16}')

def quad_src(g):
    return (g % 3)*40960 + (g//3)*4096 if g < 30 else 122880 + (g-30)*4096

def quad_dma_dyn(sg, vl, t=('s74', 's75', 's76')):
    x, y, z = t
    L = [f's_mul_i32 {x}, {sg}, 21846', f's_lshr_b32 {x}, {x}, 16', f's_mul_i32 {y}, {x}, 3', f's_sub_u32 {y}, {sg}, {y}',
         f's_mul_i32 {y}, {y}, 40960', f's_lshl_b32 {x}, {x}, 12', f's_add_u32 {x}, {x}, {y}',
         f's_lshl_b32 {z}, {sg}, 12',
         f's_cmp_lt_u32 {sg}, 30', f's_cselect_b32 {x}, {x}, {z}', f's_add_u32 {x}, {x}, {sW1}', f's_mov_b32 m0, {z}']
    for i in range(4):
        L.append(f'buffer_load_dwordx4 {vl}, {WS}, {x} offen offset:{1024*i}{SH} lds')
    return L

CSV = 240
CSA0 = 232
def cs_issue_list(vl16):
    vt = CSV
    L = []
    def a(t): L.extend(x for x in t.split('\n') if x)
    a(f'v_lshrrev_b32 v{vt}, 4, {vl16}')
    a(f'v_bfe_u32 v{vt+1}, v{vt}, 3, 1\ns_lshl_b32 s74, s{SW}, 1\nv_add_u32 v{vt+1}, s74, v{vt+1}\nv_min_u32 v{vt+1}, 6, v{vt+1}')
    a(f'v_and_b32 v{vt+2}, 7, v{vt}\nv_lshlrev_b32 v{vt+2}, 4, v{vt+2}')
    a(f'v_lshl_add_u32 v{vt+3}, v{vt+1}, 7, v{vt+2}')
    a(f'v_lshrrev_b32 v{vt}, 4, v{vt}\nv_mul_u32_u24 v{vt}, {5*13824}, v{vt}\nv_add_u32 v{vt}, v{vt}, v{vt+3}')
    a(f's_lshl_b32 s74, {sU0}, 7\ns_add_u32 s74, s74, {CSP}')
    for i in range(5):
        a(f'buffer_load_dwordx4 a[{CSA0+4*i}:{CSA0+4*i+3}], v{vt}, {WS}, s74 offen sc1')
        if i < 4: a('s_add_u32 s74, s74, 13824')
    a(f'v_bfe_u32 v{vt+3}, v{vt+2}, 6, 1\nv_lshlrev_b32 v{vt+3}, 4, v{vt+3}\nv_lshl_add_u32 v{vt+3}, v{vt+1}, 7, v{vt+3}')
    a(f'v_bfe_u32 v{vt+2}, v{vt+2}, 4, 2\nv_lshl_add_u32 v{vt+3}, v{vt+2}, 2, v{vt+3}\nv_add_u32 v{vt+3}, {CS_LDS}, v{vt+3}')
    return L

def cs_finish(a):
    vt = CSV
    for i in range(20): a(f'v_accvgpr_read_b32 v{64+i}, a{CSA0+i}')
    for i in range(1, 5):
        for e in range(4): a(f'v_add_f32 v{64+e}, v{64+e}, v{64+4*i+e}')
    for r in range(64, 68):
        a(f'v_mov_b32 v{vt}, v{r}\nv_permlane16_swap_b32 v{vt}, v{r}\nv_add_f32 v{r}, v{r}, v{vt}')
    for r in range(64, 68):
        a(f'v_mov_b32 v{vt}, v{r}\nv_permlane32_swap_b32 v{vt}, v{r}\nv_add_f32 v{r}, v{r}, v{vt}')
    for q3 in range(4):
        a(f'ds_write_b32 v{vt+3}, v{64+q3} offset:{(q3&1)*64 + (q3>>1)*32}')

def g1_consts(a):
    t = 250
    a(f'v_lshrrev_b32 v{t}, 4, v{L16}')
    a(f'v_bfe_u32 v{t+1}, v{t}, 2, 1\nv_bfe_u32 v{t+2}, v{t}, 4, 1\nv_lshl_add_u32 v{t+1}, v{t+2}, 1, v{t+1}')
    a(f'v_bfe_u32 v{t+2}, v{t}, 1, 1\nv_lshrrev_b32 v{t+3}, 5, v{t}\nv_xor_b32 v{t+3}, v{t+3}, v{t+2}\nv_lshl_add_u32 v{t+1}, v{t+3}, 2, v{t+1}')
    a(f'v_lshl_add_u32 v{t+1}, v{t+2}, 4, v{t+1}\nv_and_b32 v{t+2}, 1, v{t}\nv_lshl_add_u32 v{t+1}, v{t+2}, 3, v{t+1}')
    a(f'v_bfe_u32 v{t+2}, v{t}, 3, 1\nv_lshl_add_u32 v{t+1}, v{t+2}, 5, v{t+1}')
    a(f'v_lshlrev_b32 v{WA}, 4, v{t+1}\nv_add_u32 v{WA+1}, 0x10000, v{WA}\nv_add_u32 v{WA+2}, 0x20000, v{WA}')
    a(f'v_and_b32 v{t+1}, 7, v{t}\nv_bfe_u32 v{t+2}, v{t}, 4, 1\nv_lshl_add_u32 v{t+1}, v{t+1}, 1, v{t+2}\nv_lshlrev_b32 v{t+1}, 4, v{t+1}')
    a(f'v_bfe_u32 v{t+2}, v{t}, 3, 1\nv_mul_u32_u24 v{t+2}, 55296, v{t+2}\nv_add_u32 v{t+1}, v{t+1}, v{t+2}')
    a(f'v_lshrrev_b32 v{t+2}, 5, v{t}\nv_lshl_add_u32 v{HOFF}, v{t+2}, 8, v{t+1}')
    a(f'v_lshlrev_b32 v{CSA}, 6, v{t+2}\nv_add_u32 v{CSA}, {CS_LDS}, v{CSA}')

UORD = [[0, 1, 2, 3, 4, 5, 6], [4, 5, 6, 3, 0, 1, 2]]
FREE1 = list(range(1, 9)) + list(range(11, 19)) + list(range(21, 29)) + [9, 10, 19, 20, 29, 30, 31]
def g1_slot(layer, g):
    if layer == 0: return g % 39
    if g < 30: return 1 + 10*(g % 3) + g//3
    if g < 39: return 31 + (g - 30) if g < 38 else 0
    return FREE1[g - 39]
def g1_seq(layer):
    seq = []
    for ks in range(40):
        for u in range(3): seq.append((u, ks, g1_slot(layer, 3*(ks >> 2) + u)))
    for u in range(3, 7):
        for ks in range(40): seq.append((u, ks, g1_slot(layer, 30 + 10*(u-3) + (ks >> 2))))
    return seq
PRE1 = [(1 + 10*p + j, (4 + p)*40960 + j*4096) for j in (8, 9) for p in range(3)] + [(g1_slot(1, 30 + j), 3*40960 + j*4096) for j in range(9)]

PREN = int(os.environ.get('PREN', 6))
PRE_AT = int(os.environ.get('PRE_AT', 72))
PRE_EARLY = int(os.environ.get('PRE_EARLY', 0))
def lds_addr(off):
    return (f'v{WA + (off >> 16)}', off & 0xffff)

def guarded(a, cond_reg, fn):
    lab = a.newlab('gd')
    a(f's_cmp_eq_u32 {cond_reg}, 0\ns_cbranch_scc1 {lab}')
    sv = a.vm_issued
    fn()
    a.vm_issued = sv
    a.label(lab)

def poll2(a, toks, regs, issue, cmp, alt=None, final=None):
    lspin = a.newlab('spin'); lback = a.newlab('back')
    a.wait_vm(toks)
    cmp(None)
    a(f's_cbranch_vccnz {lspin}')
    a.label(lback)
    def tail():
        a.label(lspin)
        a(f's_mov_b32 s57, {POLL_LIMIT}')
        lp = a.newlab('lp')
        if alt and PIPE:
            n0 = a.vm_issued; issue(alt[0]); n = a.vm_issued - n0
            for r in alt[1:]:
                a(f's_sleep {PIPE}'); issue(r)
            a.label(lp)
            oks = []
            for r in alt:
                a(f's_waitcnt vmcnt({n*(len(alt) - 1)})')
                cmp(r)
                lok = a.newlab('ok'); oks.append((lok, r))
                a(f's_cbranch_vccz {lok}')
                issue(r)
            a(f's_sub_u32 s57, s57, 1\ns_cbranch_scc0 {lp}')
            a(f's_branch {lback}')
            for lok, r in oks:
                a.label(lok); final(r); a(f's_branch {lback}')
        else:
            a.label(lp)
            if MASKP: a('s_mov_b64 exec, vcc')
            if BACKOFF: a(f's_sleep {BACKOFF}')
            issue(None)
            a('s_waitcnt vmcnt(0)')
            cmp(None)
            lx = a.newlab('px')
            a(f's_cbranch_vccz {lx}')
            a(f's_sub_u32 s57, s57, 1\ns_cbranch_scc0 {lp}')
            a.label(lx)
            if MASKP: a('s_mov_b64 exec, -1')
            a(f's_branch {lback}')
    a.tail.append(tail)

NXUP = int(os.environ.get('NXUP', 16))
NWDG1 = int(os.environ.get('NWDG1', 58))
EPB = int(os.environ.get('EPB', 3))

def wd_list():
    return [(k, cb) for k in range(14) for cb in range(5)]
def wd_reg(k, cb):
    i = 5*k + cb
    return f'a[{4*i}:{4*i+3}]' if i < 58 else f'v[{4*(i-58)}:{4*(i-58)+3}]'
sWD = ['s84', 's85', 's86', 's87', 's88']
def wd_bases(a):
    a(f's_mul_i32 s79, s{SW}, {14*1024}')
    a(f's_mul_i32 s74, {sCG}, {5*55296}\ns_add_u32 s79, s79, s74\ns_add_u32 {sWD[0]}, s79, {WDP}')
    for cb in range(1, 5): a(f's_add_u32 {sWD[cb]}, {sWD[cb-1]}, 55296')
def wd_load(k, cb, vo=None):
    L = []
    L.append(f'buffer_load_dwordx4 {wd_reg(k, cb)}, {vo or "v%d" % L16}, {WS}, {sWD[cb]} offen offset:{1024*(k&3)}{SH}')
    if k & 3 == 3: L.append(f's_add_u32 {sWD[cb]}, {sWD[cb]}, 4096')
    return L

def G1(a, layer, stages_g2=True):
    X = X1 if layer == 0 else X3
    H = HB[layer]
    seq = g1_seq(layer)
    UO = UORD[layer]
    tg = f'G1{layer}_'
    a.st(tg + 'go')
    a(f's_lshl_b32 s72, {sC}, 2\ns_add_u32 s72, s72, s{SW}\ns_mul_i32 s72, s72, 40960\ns_add_u32 s72, s72, {X}')
    xt = []
    def xload():
        ks = len(xt)
        if ks % 4 == 0 and ks > 0: a('s_add_u32 s72, s72, 4096')
        xt.append(a(f'buffer_load_dwordx4 v[{XF+4*ks}:{XF+4*ks+3}], v{L16}, {WS}, s72 offen offset:{1024*(ks&3)}{SH}'))
    NX0 = 4
    for ks in range(NX0): xload()
    SR = CSR
    a(f'v_lshrrev_b32 v250, 6, v{L16}\nv_lshlrev_b32 v250, 8, v250\nv_and_b32 v251, 0x30, v{L16}\nv_or_b32 v250, v250, v251')
    a(f'v_mov_b32 v252, {(OOB)}\nv_cmp_le_u32 vcc, 0x200, v{L16}\nv_cndmask_b32 v251, 0, v252, vcc\nv_or_b32 v251, v251, v250')
    a(f's_lshr_b32 s74, {sS}, 2\ns_lshl_b32 s75, {sC}, 2\ns_add_u32 s74, s74, s75\ns_mul_i32 s74, s74, 40960')
    a(f's_and_b32 s75, {sS}, 3\ns_lshl_b32 s75, s75, 6\ns_add_u32 s74, s74, s75\ns_mul_i32 s75, s{SW}, 10240\ns_add_u32 s74, s74, s75\ns_add_u32 s74, s74, {X}')
    stt = []
    for i in range(3):
        stt.append(a(f'buffer_load_dwordx4 v[{SR+4*i}:{SR+4*i+3}], v{251 if i == 2 else 250}, {WS}, s74 offen{SH}'))
        if i < 2: a('s_add_u32 s74, s74, 4096')
    for ks in range(NX0, NXUP): xload()
    rd_tok = {}
    def rd(s):
        if s >= len(seq): return
        u, ks, g = seq[s]
        reg, off = lds_addr(g*4096 + (ks & 3)*1024)
        b = WB + 4*(s % NB)
        rd_tok[s] = a(f'ds_read_b128 a[{b}:{b+3}], {reg} offset:{off}')
    for s in range(AHEAD): rd(s)
    a(f's_lshl_b32 s75, {sC}, 2\ns_add_u32 s75, s75, s{SW}\ns_mul_i32 s75, s75, 110592\ns_lshr_b32 s76, {sS}, 2\ns_mul_i32 s76, s76, {28*512}\ns_add_u32 s75, s75, s76')
    a(f's_add_u32 s77, s75, {H}')
    if layer == 0:
        a(f's_mov_b32 s82, {sW4K}\ns_add_u32 s83, {sW4K}, {quad_src(39)}\ns_add_u32 s83, s83, {sW1}')
    else:
        a(f's_add_u32 s82, {sW4K}, 4096\ns_sub_u32 s83, {sW4K}, 4096\ns_cmp_eq_u32 s{SW}, 0\ns_cselect_b32 s83, {3*40960 + 9*4096}, s83\ns_add_u32 s83, s83, {sW1}')
    if layer == 0: wd_bases(a)
    def swaps(ks):
        r = XF + 4*ks
        return [f'v_permlane16_swap_b32 v{r}, v{r+2}', f'v_permlane16_swap_b32 v{r+1}, v{r+3}']
    Q = []
    def push(at, items):
        for it in items: Q.append([at, it])
    S0 = CSR + 12
    st = [lambda: a.wait_vm(stt[2])]
    for i in range(3):
        for h in range(4):
            r = SR + 4*i + h; s_ = S0 + 2*(h >> 1); q_ = s_ + 1
            first = (i == 0 and (h & 1) == 0)
            st += [f'v_lshlrev_b32 v250, 16, v{r}', f'v_and_b32 v251, s78, v{r}']
            if first: st += [f'v_add_f32 v{s_}, v250, v251', f'v_mul_f32 v{q_}, v250, v250']
            else: st += [f'v_add_f32 v{s_}, v{s_}, v250', f'v_fmac_f32 v{q_}, v250, v250', f'v_add_f32 v{s_}, v{s_}, v251']
            st += [f'v_fmac_f32 v{q_}, v251, v251']
    for rot in (4, 8):
        for e in range(4): st.append(f'v_add_f32_dpp v{S0+e}, v{S0+e}, v{S0+e} row_ror:{rot} row_mask:0xf bank_mask:0xf')
    for op in ('v_permlane16_swap_b32', 'v_permlane32_swap_b32'):
        for e in range(4): st += [f'v_mov_b32 v{250+e}, v{S0+e}']
        for e in range(4): st += [f'{op} v{250+e}, v{S0+e}']
        for e in range(4): st += [f'v_add_f32 v{S0+e}, v{S0+e}, v{250+e}']
    st += [f'v_and_b32 v254, 0x40, v{L16}', 'v_cmp_ne_u32 vcc, 0, v254',
           f's_lshr_b32 s74, {sS}, 2', 's_lshl_b32 s74, s74, 9',
           f'v_cndmask_b32 v250, v{S0}, v{S0+2}, vcc', f'v_cndmask_b32 v252, v{S0+1}, v{S0+3}, vcc',
           f'v_mov_b32 v251, s{STAG}', f'v_mov_b32 v253, s{STAG}',
           'v_lshlrev_b32 v254, 2, v254', f'v_and_b32 v{S0}, 0x30, v{L16}', f'v_add_u32 v254, v254, v{S0}',
           f's_and_b32 s75, {sS}, 3', 's_lshl_b32 s75, s75, 6', 's_add_u32 s74, s74, s75',
           f's_lshl_b32 s75, s{SW}, 11', 's_add_u32 s74, s74, s75', f's_lshl_b32 s75, {sC}, 13', 's_add_u32 s74, s74, s75', f's_add_u32 s74, s74, {ST[layer]}']
    def st_store():
        a(f's_mov_b64 exec, 0xff\nbuffer_store_dwordx4 v[250:253], v254, {WS}, s74 offen{TPOL}\ns_mov_b64 exec, -1')
    st.append(st_store)
    PR_ = CSR
    ptk = []
    def sp_issue(_=None):
        ptk.append(a(f'buffer_load_dwordx4 v[{PR_}:{PR_+3}], v254, {WS}, s74 offen sc1'))
        ptk.append(a(f'buffer_load_dwordx4 v[{PR_+4}:{PR_+7}], v254, {WS}, s74 offen offset:2048 sc1'))
    def sp_cmp(_=None):
        a(f'v_xor_b32 v250, s{STAG}, v{PR_+1}\nv_xor_b32 v251, s{STAG}, v{PR_+3}\nv_xor_b32 v252, s{STAG}, v{PR_+5}\nv_xor_b32 v253, s{STAG}, v{PR_+7}')
        a('v_or3_b32 v250, v250, v251, v252\nv_or_b32 v250, v250, v253\nv_cmp_ne_u32 vcc, 0, v250')
    sp = [f'v_and_b32 v254, 0x1f0, v{L16}', f'v_lshrrev_b32 v250, 9, v{L16}', 'v_lshl_add_u32 v254, v250, 12, v254',
          f's_lshl_b32 s74, {sC}, 13', f's_lshl_b32 s75, s{SW}, 9', 's_add_u32 s74, s74, s75', f's_add_u32 s74, s74, {ST[layer]}', sp_issue]
    sf = [lambda: poll2(a, ptk[1], None, sp_issue, sp_cmp),
          f'v_add_f32 v{PR_}, v{PR_}, v{PR_+4}', f'v_add_f32 v{PR_+2}, v{PR_+2}, v{PR_+6}',
          's_mov_b32 s74, 0x3acccccd', 's_mov_b32 s75, 0x3727c5ac',
          f'v_mov_b32 v250, v{PR_}', f'v_mov_b32 v251, v{PR_+2}', 's_mov_b32 s76, 0xbfb8aa3b', 's_nop 0',
          f'v_permlane32_swap_b32 v250, v{PR_}', f'v_permlane32_swap_b32 v251, v{PR_+2}',
          f'v_add_f32 v{PR_}, v{PR_}, v250', f'v_add_f32 v{PR_+2}, v{PR_+2}, v251',
          f'v_mul_f32 v{NM}, s74, v{PR_}', f'v_mul_f32 v{IR2}, s74, v{PR_+2}',
          f'v_fma_f32 v{IR2}, -v{NM}, v{NM}, v{IR2}', f'v_max_f32 v{IR2}, 0, v{IR2}', f'v_add_f32 v{IR2}, s75, v{IR2}',
          f'v_rsq_f32 v{K1}, v{IR2}', f'v_sub_f32 v{NM}, 0, v{NM}', f'v_mul_f32 v{K1}, s76, v{K1}']
    a('s_mov_b32 s78, 0xffff0000')
    push(9, st)
    push(ST_POLL, sp)
    push(ST_CHK, sf)
    accof = {0: 0, 1: 16, 2: 32, 3: 48, 4: 0, 5: 16, 6: 32}
    def epi(up):
        u = UO[up]
        A = accof[up]; L = []
        cst = {}
        def csrd(hf):
            def f():
                a(f'ds_read_b128 v[{CSR+8*hf}:{CSR+8*hf+3}], v{CSA} offset:{128*u + 32*hf}')
                cst[hf] = a(f'ds_read_b128 v[{CSR+8*hf+4}:{CSR+8*hf+7}], v{CSA} offset:{128*u + 32*hf + 16}')
            return (2, f)
        L += [csrd(0), csrd(1)]
        for hf in range(2):
            G = A + 8*hf; U = G + 4; C = CSR + 8*hf
            L.append((0, lambda hf=hf: a.wait_lg(cst[hf])))
            for r in range(4): L.append((1, f'v_fmac_f32 v{G+r}, v{NM}, v{C+r}'))
            for r in range(4): L.append((1, f'v_fmac_f32 v{U+r}, v{NM}, v{C+4+r}'))
            for r in range(4): L.append((1, f'v_mul_f32 v{C+r}, v{K1}, v{G+r}'))
            for r in range(4): L += [(2, f'v_exp_f32 v{C+r}, v{C+r}'), (1, f'v_mul_f32 v{G+r}, v{G+r}, v{U+r}')]
            for r in range(4): L.append((1, f'v_fma_f32 v{C+r}, v{C+r}, v{IR2}, v{IR2}'))
            for r in range(4): L.append((2, f'v_rcp_f32 v{C+r}, v{C+r}'))
            for r in range(4): L.append((1, f'v_mul_f32 v{G+r}, v{G+r}, v{C+r}'))
            O = A + 4 + 2*hf
            L += [(1, f'v_cvt_pk_bf16_f32 v{O}, v{G}, v{G+1}'), (1, f'v_cvt_pk_bf16_f32 v{O+1}, v{G+2}, v{G+3}')]
        def store():
            vo = HOFF
            c0, c1 = {0: (0, 2), 1: (1, 2), 2: (8, 1), 3: (12, 1), 4: (16, 2), 5: (17, 2), 6: (24, 1)}[u]
            a(f's_and_b32 s74, {sS}, 3\ns_lshl_b32 s74, s74, {9 + (c1 >> 1)}\ns_add_u32 s74, s74, s77')
            if c0 >= 8: a(f's_add_u32 s74, s74, {c0*512}')
            if u == 6:
                a(f's_cmp_ge_u32 {sS}, 12\ns_cselect_b32 s75, {OOB}, 0\nv_or_b32 v254, s75, v{HOFF}')
                vo = 254
            hst[up] = a(f'buffer_store_dwordx4 v[{A+4}:{A+7}], v{vo}, {WS}, s74 offen offset:{c0*512 if c0 < 8 else 0}{HPOL}')
        L.append((1, store))
        return L
    hst = {}
    V = []
    dt = {}
    def refill_items(gam, at):
        for i in range(4):
            L = []
            if i == 0:
                if gam == 7:
                    src = quad_src(67) if layer == 0 else 27*4096
                    L += [f's_min_u32 s74, {sW4K}, {2*4096}', f's_add_u32 s82, s74, {(28 if layer == 0 else 29)*4096}', f's_add_u32 s83, s74, {src}', f's_add_u32 s83, s83, {sW1}']
                if layer == 1 and gam == 1: L += [f's_add_u32 s83, {sW4K}, {3*4096}', f's_add_u32 s83, s83, {sW1}']
                if layer == 1 and gam == 6:
                    L += [f's_and_b32 s74, s{SW}, 1', f's_lshr_b32 s82, s{SW}, 1', 's_mul_i32 s82, s82, 10', 's_add_u32 s82, s82, s74', 's_add_u32 s82, s82, 9', 's_lshl_b32 s82, s82, 12']
                L.append('s_mov_b32 m0, s82')
            L.append(f'buffer_load_dwordx4 v{L16}, {WS}, s83 offen offset:{1024*i}{SH} lds')
            if i == 3 and gam < 6:
                step = 16384 if (layer == 0 or gam % 2 == 0) else 16384 + 8192
                L += [f's_add_u32 s82, s82, {step}', 's_add_u32 s83, s83, 16384']
            V.append([at, L, ('dma', gam)])
    for gam in range(6): refill_items(gam, RB0)
    for gam in (6, 7): refill_items(gam, 148)
    BARS = {RB0: [], 148: [2], 196: [5], 244: [7]}
    if layer == 1 and PREN < 15:
        j0 = PREN - 6
        assert j0 >= 0
        for r in range((15 - PREN + 3)//4):
            for i in range(4):
                L = []
                if i == 0:
                    L += [f's_add_u32 s96, s{SW}, {j0 + 4*r}', 's_min_u32 s96, s96, 8', 's_add_u32 s97, s96, 31', 's_cmp_eq_u32 s96, 8', 's_cselect_b32 s97, 0, s97',
                          's_lshl_b32 s97, s97, 12', 's_mov_b32 m0, s97', 's_lshl_b32 s96, s96, 12', f's_add_u32 s96, s96, {sW1}', f's_add_u32 s96, s96, {3*40960}']
                L.append(f'buffer_load_dwordx4 v{L16}, {WS}, s96 offen offset:{1024*i}{SH} lds')
                V.append([PRE_AT, L, ('dma', 'pre')])
        BARS[116 + 4*j0] = ['pre']
    V.sort(key=lambda x: x[0])
    WQ = []
    if layer == 0:
        for (k, cb) in wd_list()[:NWDG1]:
            L = wd_load(k, cb)
            if os.environ.get('NOWD'): L = L[1:] or ['s_nop 0']
            WQ.append(L)
    last_of = {}
    for s, (u, ks, g) in enumerate(seq): last_of[u] = s
    avail = {u: last_of[u] + 3 for u in range(7)}
    nxt = 0
    cur = []
    a.wait_vm(xt[0])
    for x in swaps(0): a(x)
    a.st(tg + 'x0')
    fy = None
    lastv = -9
    for s, (u, ks, g) in enumerate(seq):
        if s in BARS:
            for gam in BARS[s]:
                assert gam in dt, (s, gam)
                a.wait_vm(dt[gam])
            if s == RB0 and layer == 0:
                a.poll1_check(fwd, 4, 'v249', 's80', 240, barrier=False)
            if s == 244 and layer == 0:
                a.poll1_check(fy, 4, 'v249', 's80', 250, barrier=False)
            if s == 244: a.wait_vm(hst[3])
            a('s_barrier')
            if s == 244:
                a(f's_lshl_b32 s74, {sC}, 9\ns_lshl_b32 s75, {sS}, 2\ns_add_u32 s74, s74, s75\ns_add_u32 s74, s74, {FH[layer]}')
                a.flag_store('s74', 'v250', 'v251', rep=4, stride=128, pol=FPOL)
            if s == 148 and layer == 0:
                def fyf():
                    a(f's_lshl_b32 s74, s2, 2\ns_add_u32 s74, s74, {FY}')
                    a.flag_store('s74', 'v250', 'v251')
                guarded(a, sROLE, fyf)
        if s == FWD_AT and layer == 0:
            assert not any(q[0] == 9 for q in Q), 'statistics not finished'
            a(f'v_lshrrev_b32 v249, 4, v{L16}\nv_min_u32 v249, 23, v249\nv_lshlrev_b32 v249, 4, v249')
            a(f's_and_b32 s80, s2, 15\ns_lshl_b32 s80, s80, 9\ns_add_u32 s80, s80, {FWD}')
            fwd = a.poll1_issue(4, 'v249', 's80', 240)
        if s == YS_AT and layer == 0:
            def ys():
                for k in range(4):
                    a(f'buffer_store_dwordx4 v[{48+4*k}:{48+4*k+3}], v{YOFF}, {WS}, {sYB} offen sc1')
                    if k < 3: a(f's_add_u32 {sYB}, {sYB}, {4*40960}')
            guarded(a, sROLE, ys)
        if s == 232 and layer == 0:
            a(f'v_lshrrev_b32 v249, 4, v{L16}\nv_min_u32 v249, 39, v249\nv_lshlrev_b32 v249, 4, v249\ns_mov_b32 s80, {FY}')
            fy = a.poll1_issue(4, 'v249', 's80', 250)
        if s % 2 == 0: a.wait_lg(rd_tok[min(s + 1, len(seq) - 1)])
        b = WB + 4*(s % NB); A = accof[u]
        c = '0' if ks == 0 else f'v[{A}:{A+15}]'
        a(f'v_mfma_f32_32x32x16_bf16 v[{A}:{A+15}], a[{b}:{b+3}], v[{XF+4*ks}:{XF+4*ks+3}], {c}')
        rd(s + AHEAD)
        n = 1 + (1 if s % 2 == 1 else 0)
        if s < 120 and u == 1 and ks + 1 < 40:
            a.wait_vm(xt[ks+1])
            for x in swaps(ks+1): a(x)
            n += 3
        if s < 120 and u == 0 and len(xt) < 40:
            xload(); n += 1; lastv = s
        elif s - lastv >= 2:
            if V and V[0][0] <= s:
                _, L, nm = V.pop(0)
                for x in L: t = a(x)
                dt[nm[1]] = a.vm_issued
                n += len(L); lastv = s
            elif WQ and s >= WD_AT:
                L = WQ.pop(0)
                for x in L: a(x)
                n += len(L); lastv = s
        budget = 6
        while n < budget and Q and Q[0][0] <= s:
            it = Q.pop(0)[1]
            it() if callable(it) else a(it)
            n += 1
        if s >= 120:
            if not cur and nxt < 6 and avail[nxt] <= s and not Q:
                cur = epi(nxt); nxt += 1
            m = 0
            while cur and (n + cur[0][0] <= budget) and m < EPB:
                c_, it = cur.pop(0)
                it() if callable(it) else a(it)
                n += c_; m += 1 if c_ else 0
        if s in (119, 159, 199, 239): a.st(tg + f'm{s+1}')
        if s + 1 < len(seq) and seq[s+1][1] == 0 and seq[s+1][0] >= 4:
            assert nxt > seq[s+1][0] - 4 and not (nxt == seq[s+1][0] - 3 and cur), ('epilogue late', s, nxt, len(cur))
    assert not Q and not V and not WQ, (len(Q), len(V), len(WQ))
    a.st(tg + 'mend')
    a(f'v_lshrrev_b32 v249, 4, v{L16}\nv_min_u32 v249, 3, v249\ns_lshl_b32 s75, s{SW}, 2\nv_add_u32 v249, s75, v249\nv_lshlrev_b32 v249, 2, v249')
    a(f's_lshr_b32 s80, {sTB}, 1\ns_lshl_b32 s80, s80, 2\ns_add_u32 s80, s80, s{SW}\ns_lshl_b32 s80, s80, 7\ns_add_u32 s80, s80, {FH[layer]}')
    tA = a.poll_issue(1, 'v249', 's80', 250) if stages_g2 else None
    for c_, it in cur: it() if callable(it) else a(it)
    while nxt < 7:
        for c_, it in epi(nxt): it() if callable(it) else a(it)
        nxt += 1
    a.st(tg + 'epi')
    a(f's_lshl_b32 s79, {sC}, 9\ns_lshl_b32 s75, {sS}, 2\ns_add_u32 s79, s79, s75\ns_add_u32 s79, s79, {FH[layer] + 64}')
    return dict(tA=tA, tS=hst[6])

RB0 = 96
ST_POLL, ST_CHK = 84, 112
YS_AT = 78
FWD_AT = 82
WD_AT = 100

def pre_G1_common(a):
    a.st('J_cs')
    import g2a
    if g2a.XLOC:
        t = a.xt_issue(88, 84)
        a.xt_check(t, 88, 84)
    a(f'v_lshrrev_b32 v88, 4, v{L16}\nv_min_u32 v88, 39, v88\nv_lshlrev_b32 v88, 4, v88')
    a(f's_and_b32 s74, s2, 15\ns_lshl_b32 s74, s74, 10\ns_add_u32 s74, s74, {FX1}')
    a('s_waitcnt vmcnt(0) lgkmcnt(0)')
    a.poll_w0(4, 'v88', 's74', 84, alt=(92, 96, 100))
    a.reset_counts()

def rest(a, stages, epoch_update):
    import g2h
    pre_G1_common(a)
    epoch_update(a)
    tk = G1(a, 0, stages > 2)
    if stages == 2: return
    g2h.G2(a, 0, tk, last=(stages == 3))
    if stages == 3: return
    tk = G1(a, 1, stages > 4)
    if stages == 4: return
    g2h.G2(a, 1, tk)
```

```python
from g2base import *
from g2g import *
import g2g
SPOL = '' if 's' in g2g.LOC else ' sc1'

OPOL = {'': '', 'nt': ' nt', 'sc1': ' sc1', 'sc01': ' sc0 sc1', 'sc1nt': ' sc1 nt', 'sc01nt': ' sc0 sc1 nt'}[os.environ.get('OPOL', '')]
ACC = 144
HBUF = 64
NHB = 5
RX = 232
RY = 48
sHB = ['s90', 's91', 's92', 's93']
VM, VR, VT = 242, 243, 244
VE = 58
def acc(tb, cb): return ACC + 20*tb + 4*cb
def hb(k, tb): return HBUF + 16*(k % NHB) + 4*tb

BP = int(os.environ.get('BP', 4))
BC = int(os.environ.get('BC', 6))
NH1 = int(os.environ.get('NH1', 2))
XQ0 = int(os.environ.get('XQ0', 4))
XQ1 = int(os.environ.get('XQ1', 1))
XQN = int(os.environ.get('XQN', 3))
GQ0 = int(os.environ.get('GQ0', 10))
DQ0 = int(os.environ.get('DQ0', 5))
NDL = int(os.environ.get('NDL', 16))
NDR = int(os.environ.get('NDR', 14))
KE = 8
def G2(a, layer, tk, last=False):
    H = HB[layer]; X = X1 if layer == 0 else X3
    tg = f'G2{layer}_'
    if layer == 1: a.srd_load(SOUT, 'out'); a.srd_fin(SOUT, 'out')
    a(f'v_mov_b32 v{VM}, {OOB}\ns_cmp_eq_u32 s{SW}, 3\ns_cselect_b32 s74, -1, 0\nv_and_b32 v{VM}, s74, v{VM}\nv_or_b32 v{VM}, v{VM}, v{L16}')
    a(f's_mul_i32 s78, s{SW}, {14*1024}\ns_add_u32 s78, s78, {H}')
    for tb in range(4):
        a(f's_add_u32 s74, s{SW}, {tb}\ns_and_b32 s74, s74, 3\ns_lshl_b32 s75, {sTB}, 2\ns_add_u32 s74, s74, s75\ns_mul_i32 s74, s74, 55296\ns_add_u32 {sHB[tb]}, s74, s78')
    a(f'v_lshrrev_b32 v{VT}, 8, v{L16}\nv_lshlrev_b32 v{VT}, 8, v{VT}\nv_bfe_u32 v{VR}, v{L16}, 4, 4\nv_lshl_add_u32 v{VR}, v{VR}, 3, v{VT}')
    a(f's_lshl_b32 s75, {sTB}, 1\ns_lshr_b32 s76, s{SW}, 1\ns_add_u32 s75, s75, s76\ns_mul_i32 s75, s75, 40960\ns_mul_i32 s76, {sCG}, 5120\ns_add_u32 s75, s75, s76')
    a(f's_and_b32 s76, s{SW}, 1\ns_lshl_b32 s76, s76, 7\ns_add_u32 s94, s75, s76')
    wl = wd_list()
    tw = {}; th = {}; tok = {}
    PF = NHB - 1
    QO = list(range(14)) if layer == 0 else [6, 7, 8, 9, 10, 11, 12, 13, 0, 1, 2, 3, 4, 5]
    hblk = [0]*4
    def hload(k, tb):
        if k >= 14: return
        r = hb(k, tb); q = QO[k]
        if q >> 2 != hblk[tb]:
            d = ((q >> 2) - hblk[tb])*4096
            a(f's_add_u32 {sHB[tb]}, {sHB[tb]}, {d}' if d > 0 else f's_sub_u32 {sHB[tb]}, {sHB[tb]}, {-d}')
            hblk[tb] = q >> 2
        th[(k, tb)] = a(f'buffer_load_dwordx4 v[{r}:{r+3}], v{VM if q >= 12 else L16}, {WS}, {sHB[tb]} offen offset:{1024*(q&3)}{SH}')
    def head_loads():
        for k in range(NH1):
            for tb in range(4): hload(k, tb)
    XQ = []
    def wd_item(k, cb):
        def f():
            if layer == 0:
                for x in wd_load(k, cb, vo=(f'v{VM}' if k >= 12 else None)): a(x)
            elif k == 11:
                a(f's_sub_u32 s74, {sWD[cb]}, 4096')
                a(f'buffer_load_dwordx4 {wd_reg(k, cb)}, v{L16}, {WS}, s74 offen offset:3072{SH}')
            else:
                a(f'buffer_load_dwordx4 {wd_reg(k, cb)}, v{VM if k >= 12 else L16}, {WS}, {sWD[cb]} offen offset:{1024*(k&3)}{SH}')
            tw[(k, cb)] = a.vm_issued
        return f
    for (k, cb) in (wl[g2g.NWDG1:] if layer == 0 else wl[58:]): XQ.append(wd_item(k, cb))
    GQ = []
    def gran_item(base, reg, cb, name):
        def f():
            if cb == 0: a(f's_add_u32 s95, s94, {base}')
            if cb == 4: a('s_add_u32 s95, s95, 4096')
            tok[name] = a(f'buffer_load_dwordx2 v[{reg+2*cb}:{reg+2*cb+1}], v{VR}, {WS}, s95 offen offset:{1024*(cb&3)}{SH}')
        return f
    for cb in range(5): GQ.append(gran_item(X, RX, cb, 'tx'))
    if layer == 0:
        for cb in range(5): GQ.append(gran_item(YG, RY, cb, 'ty'))
    def flag_b():
        a('s_barrier')
        a.flag_store('s79', 'v251', 'v252', rep=4, stride=128, pol=FPOL)
    lslow = a.newlab('slowA'); ljoin = a.newlab('joinA')
    a.wait_vm(tk['tA'])
    a(f'v_cmp_ne_u32 vcc, s{STAG}, v250\ns_cbranch_vccnz {lslow}')
    st0 = (a.vm_issued, a.vm_done)
    hblk0 = list(hblk)
    head_loads()
    a.wait_vm(tk['tS'])
    flag_b()
    a.label(ljoin)
    st1 = (a.vm_issued, a.vm_done, dict(th), dict(tw), dict(tok))
    def slow():
        a.label(lslow)
        a.vm_issued, a.vm_done = st0
        a('s_waitcnt vmcnt(0)')
        flag_b()
        a.poll(1, 'v249', 's80', 250)
        sv = (dict(th), dict(tw), dict(tok))
        hblk[:] = hblk0
        head_loads()
        th.update(sv[0]); tw.update(sv[1]); tok.update(sv[2])
        a(f's_branch {ljoin}')
    a.tail.append(slow)
    a.st(tg + 'go')
    for k in range(NH1, PF):
        for tb in range(4): hload(k, tb)
    RA = 128
    AQ = []
    def red_addr(preg, dst):
        L = []
        if dst[0] is not None: L += [f's_lshl_b32 s97, {preg}, 10', f's_add_u32 s98, s97, {RED}', f'v_add_u32 v{dst[0]}, s98, v{L16}']
        else: L += [f's_lshl_b32 s97, {preg}, 10']
        for i, (lo, hi) in enumerate(((9*4096, RED + 36864 - 8192), (19*4096, -8192))):
            L += [f's_add_u32 s98, s97, {lo}', f's_add_u32 s99, s97, {hi & 0xffffffff}', f's_cmp_lt_u32 {preg}, 8', 's_cselect_b32 s98, s98, s99', f'v_add_u32 v{dst[1+i]}, s98, v{L16}']
        return L
    for tb in range(1, 4):
        AQ += [f's_add_u32 s96, s{SW}, {tb}', 's_and_b32 s96, s96, 3', 's_mul_i32 s96, s96, 3', f's_add_u32 s96, s96, {tb-1}']
        AQ += red_addr('s96', [RA + 3*(tb-1) + i for i in range(3)])
    for j in range(3):
        AQ += [f's_mul_i32 s96, s{SW}, 3', f's_add_u32 s96, s96, {j}']
        AQ += red_addr('s96', [RA + 9 if j == 0 else None, RA + 10 + j, RA + 13 + j])
    first = True
    tB = None
    xq0 = XQ0 if layer == 0 else XQ1
    for k in range(14):
        q = QO[k]
        if k == BP: tB = a.poll_issue(1, 'v249', 's80', 250, off=64)
        if k == BC:
            a.poll_check(tB, 1, 'v249', 's80', 250, off=64)
            a.st(tg + 'bok')
            for k2 in range(KE, BC + PF):
                for tb in range(4): hload(k2, tb)
        order = [0, 1, 2, 3] if k < 13 else [1, 2, 3, 0]
        for j, tb in enumerate(order):
            toks = [th[(k, tb)]] + [tw[(q, cb)] for cb in range(5) if (q, cb) in tw]
            assert all((q, cb) in tw for cb in range(5) if 5*q + cb >= (g2g.NWDG1 if layer == 0 else 58)), (k, q)
            a.wait_vm(max(toks))
            if first: a.st(tg + 'h0'); first = False
            for cb in range(5):
                A = acc(tb, cb); b = hb(k, tb)
                c = '0' if k == 0 else f'v[{A}:{A+3}]'
                a(f'v_mfma_f32_16x16x32_bf16 v[{A}:{A+3}], {wd_reg(q, cb)}, v[{b}:{b+3}], {c}')
                hl = k + PF < 14 and (k + PF < KE or k >= BC)
                if cb == 0 and hl: hload(k + PF, tb)
                elif XQ and k >= xq0 and cb in ((2, 4) if hl else (0, 2, 4))[:XQN]: XQ.pop(0)()
                elif GQ and k >= GQ0 and cb in (0, 3): GQ.pop(0)()
                if k >= 11:
                    for _ in range(2):
                        if AQ: a(AQ.pop(0))
    assert not XQ and not GQ and not AQ, (len(XQ), len(GQ), len(AQ))
    tx, ty = tok['tx'], tok.get('ty')
    a.st(tg + 'mend')
    for tb in (1, 2, 3):
        for cb in range(5):
            A = acc(tb, cb)
            ad = f'v{RA + 3*(tb-1) + max(cb - 2, 0)}' + (f' offset:{12288*cb}' if cb < 3 else '')
            a('ds_write_b128 ' + ad.split()[0] + f', v[{A}:{A+3}]' + (' ' + ad.split()[1] if cb < 3 else ''))
    a('s_waitcnt lgkmcnt(0)\ns_barrier')
    RB = HBUF
    tr = []
    for cb in range(5):
        for j in range(3):
            r = RB + 12*cb + 4*j
            if cb < 3: t = a(f'ds_read_b128 v[{r}:{r+3}], v{RA+9} offset:{12288*cb + 1024*j}')
            else: t = a(f'ds_read_b128 v[{r}:{r+3}], v{RA + 10 + 3*(cb-3) + j}')
        tr.append(t)
    a.wait_vm(tx)
    PK = 204
    U = 84
    a('s_mov_b32 s78, 0xffff0000')
    for cb in range(5):
        A = acc(0, cb); r = RB + 12*cb
        a.wait_lg(tr[cb])
        for e in range(4): a(f'v_add_f32 v{r+e}, v{r+e}, v{r+4+e}')
        for e in range(4): a(f'v_add_f32 v{A+e}, v{A+e}, v{r+8+e}')
        for e in range(4): a(f'v_add_f32 v{A+e}, v{A+e}, v{r+e}')
        a(f'v_permlane32_swap_b32 v{A}, v{A+2}\nv_permlane32_swap_b32 v{A+1}, v{A+3}')
        a(f'v_permlane16_swap_b32 v{A}, v{A+1}\nv_permlane16_swap_b32 v{A+2}, v{A+3}')
        x = RX + 2*cb
        a(f'v_lshlrev_b32 v{r}, 16, v{x}\nv_and_b32 v{r+1}, s78, v{x}\nv_lshlrev_b32 v{r+2}, 16, v{x+1}\nv_and_b32 v{r+3}, s78, v{x+1}')
        for e in range(4): a(f'v_add_f32 v{A+e}, v{A+e}, v{r+e}')
        a(f'v_cvt_pk_bf16_f32 v{PK+2*cb}, v{A}, v{A+1}\nv_cvt_pk_bf16_f32 v{PK+2*cb+1}, v{A+2}, v{A+3}')
    if layer == 0 and PRE_EARLY: a('s_barrier')
    a.st(tg + 'red')
    if layer == 1:
        a(f'v_bfe_u32 v{VT}, v{L16}, 4, 4\nv_mul_u32_u24 v{VT}, 1280, v{VT}\nv_bfe_u32 v{VT+1}, v{L16}, 8, 1\nv_lshl_add_u32 v{VT}, v{VT+1}, 5, v{VT}')
        a(f'v_bfe_u32 v{VT+1}, v{L16}, 9, 1\nv_lshl_add_u32 v{VT}, v{VT+1}, 4, v{VT}')
        a(f's_lshl_b32 s74, {sTB}, 2\ns_add_u32 s74, s74, s{SW}\ns_mul_i32 s74, s74, {16*1280}\ns_mul_i32 s75, {sCG}, 160\ns_add_u32 s74, s74, s75')
        for p in range(3):
            R = PK + 4*p
            a(f'v_permlane16_swap_b32 v{R}, v{R+2}\nv_permlane16_swap_b32 v{R+1}, v{R+3}')
        for p in range(3):
            R = PK + 4*p
            if p == 2: a('s_mov_b32 exec_lo, 0x0000ffff\ns_mov_b32 exec_hi, 0x0000ffff')
            a(f'buffer_store_dwordx4 v[{R}:{R+3}], v{VT}, s[{SOUT}:{SOUT+3}], s74 offen offset:{64*p}{OPOL}')
        a('s_mov_b64 exec, -1')
        a.st(tg + 'end')
        return
    S_, Q_ = VT, VT+2
    a('s_mov_b32 s75, 0x3f803f80')
    for i in range(10):
        a(f'v_dot2_f32_bf16 v{S_}, v{PK+i}, s75, {"0" if i == 0 else f"v{S_}"}')
        a(f'v_dot2_f32_bf16 v{Q_}, v{PK+i}, v{PK+i}, {"0" if i == 0 else f"v{Q_}"}')
    for op in ('v_permlane16_swap_b32', 'v_permlane32_swap_b32'):
        a(f'v_mov_b32 v{VE}, v{S_}\nv_mov_b32 v{VE+1}, v{Q_}\n{op} v{VE}, v{S_}\n{op} v{VE+1}, v{Q_}')
        a(f'v_add_f32 v{S_}, v{S_}, v{VE}\nv_add_f32 v{Q_}, v{Q_}, v{VE+1}')
    a(f'v_mov_b32 v{VT+1}, s{STAG}\nv_mov_b32 v{VT+3}, s{STAG}')
    a(f'v_and_b32 v{VE}, 0xf0, v{L16}')
    a(f's_lshl_b32 s74, {sTB}, 13\ns_lshl_b32 s75, s{SW}, 8\ns_add_u32 s74, s74, s75\ns_add_u32 s79, s74, {XS}\ns_lshl_b32 s75, {sCG}, 10\ns_add_u32 s74, s79, s75')
    import g2a
    a('s_mov_b64 exec, 0xffff')
    if g2a.XLOC: a.mstore(f'buffer_store_dwordx4 v[{VT}:{VT+3}], v{VE}, {WS}, s74 offen')
    else: a(f'buffer_store_dwordx4 v[{VT}:{VT+3}], v{VE}, {WS}, s74 offen{SPOL}')
    a('s_mov_b64 exec, -1')
    a(f'v_lshrrev_b32 v{VE+1}, 8, v{L16}\nv_lshl_add_u32 v{VE}, v{VE+1}, 11, v{VE}')
    PR_ = RB
    ptk = []
    def xs_issue(b=None):
        b = PR_ if b is None else b
        ptk.append(a(f'buffer_load_dwordx4 v[{b}:{b+3}], v{VE}, {WS}, s79 offen sc1'))
        ptk.append(a(f'buffer_load_dwordx4 v[{b+4}:{b+7}], v{VE}, {WS}, s79 offen offset:1024 sc1'))
    def xs_cmp(b=None):
        b = PR_ if b is None else b
        a(f'v_xor_b32 v250, s{STAG}, v{b+1}\nv_xor_b32 v251, s{STAG}, v{b+3}\nv_xor_b32 v252, s{STAG}, v{b+5}\nv_xor_b32 v253, s{STAG}, v{b+7}')
        a('v_or3_b32 v250, v250, v251, v252\nv_or_b32 v250, v250, v253\nv_cmp_ne_u32 vcc, 0, v250')
    def xs_final(b):
        for e in (0, 2, 4, 6): a(f'v_mov_b32 v{PR_+e}, v{b+e}')
    xs_issue()
    a.st(tg + 'xs')
    a.wait_vm(ty)
    YU = 104
    for i in range(10):
        a(f'v_lshlrev_b32 v{U+2*i}, 16, v{PK+i}\nv_and_b32 v{U+2*i+1}, s78, v{PK+i}')
        a(f'v_lshlrev_b32 v{YU+2*i}, 16, v{RY+i}\nv_and_b32 v{YU+2*i+1}, s78, v{RY+i}')
    a(f'v_bfe_u32 v{VE+2}, v{L16}, 4, 1')
    a(f'v_lshlrev_b32 v{VE+3}, 3, v{VE+2}\nv_sub_u32 v{VE+3}, v{VR}, v{VE+3}\nv_lshl_add_u32 v{VE+3}, v{VE+2}, 10, v{VE+3}')
    poll2(a, ptk[1], None, xs_issue, xs_cmp, alt=(152, 160, 168), final=xs_final)
    a.st(tg + 'xsok')
    a(f'v_add_f32 v{PR_}, v{PR_}, v{PR_+4}\nv_add_f32 v{PR_+2}, v{PR_+2}, v{PR_+6}')
    for op in ('v_permlane16_swap_b32', 'v_permlane32_swap_b32'):
        a(f'v_mov_b32 v250, v{PR_}\nv_mov_b32 v251, v{PR_+2}\n{op} v250, v{PR_}\n{op} v251, v{PR_+2}')
        a(f'v_add_f32 v{PR_}, v{PR_}, v250\nv_add_f32 v{PR_+2}, v{PR_+2}, v251')
    m_, q_ = PR_, PR_+2
    a('s_mov_b32 s74, 0x3acccccd\ns_mov_b32 s75, 0x3727c5ac')
    a(f'v_mul_f32 v{m_}, s74, v{m_}\nv_mul_f32 v{q_}, s74, v{q_}\nv_fma_f32 v{q_}, -v{m_}, v{m_}, v{q_}\nv_max_f32 v{q_}, 0, v{q_}\nv_add_f32 v{q_}, s75, v{q_}\nv_rsq_f32 v{q_}, v{q_}')
    a(f's_nop 0\nv_mul_f32 v{m_}, v{m_}, v{q_}\nv_sub_f32 v{m_}, 0, v{m_}')
    for i in range(20):
        a(f'v_fma_f32 v250, v{U+i}, v{q_}, v{m_}\nv_fma_f32 v{U+i}, v250, v{YU+i}, v{U+i}') if False else None
    T = 124
    for i in range(20): a(f'v_fma_f32 v{T+i}, v{U+i}, v{q_}, v{m_}')
    for i in range(20): a(f'v_fma_f32 v{U+i}, v{T+i}, v{YU+i}, v{U+i}')
    for i in range(10): a(f'v_cvt_pk_bf16_f32 v{PK+i}, v{U+2*i}, v{U+2*i+1}')
    O = 216
    a(f'v_cmp_eq_u32 vcc, 0, v{VE+2}')
    a(f's_add_u32 s75, s94, {X3}\ns_add_u32 s76, s75, 4096')
    for p in range(2):
        R = PK + 4*p; o = O + 4*p
        a(f'v_cndmask_b32 v250, v{R}, v{R+2}, vcc\nv_cndmask_b32 v251, v{R+1}, v{R+3}, vcc')
        a(f'v_cndmask_b32_dpp v{o}, v250, v{R}, vcc quad_perm:[1,0,3,2] row_mask:0xf bank_mask:0xf')
        a(f'v_cndmask_b32_dpp v{o+1}, v251, v{R+1}, vcc quad_perm:[1,0,3,2] row_mask:0xf bank_mask:0xf')
        a('s_not_b64 vcc, vcc\ns_nop 1')
        a(f'v_cndmask_b32_dpp v{o+2}, v250, v{R+2}, vcc quad_perm:[1,0,3,2] row_mask:0xf bank_mask:0xf')
        a(f'v_cndmask_b32_dpp v{o+3}, v251, v{R+3}, vcc quad_perm:[1,0,3,2] row_mask:0xf bank_mask:0xf')
        a('s_not_b64 vcc, vcc\ns_nop 1')
        a(f'buffer_store_dwordx4 v[{o}:{o+3}], v{VE+3}, {WS}, s75 offen offset:{2048*p}{XPOL}')
    R = PK + 8
    a(f'v_mov_b32_dpp v{R+2}, v{R} quad_perm:[1,0,3,2] row_mask:0xf bank_mask:0xf\nv_mov_b32_dpp v{R+3}, v{R+1} quad_perm:[1,0,3,2] row_mask:0xf bank_mask:0xf')
    a('s_mov_b32 exec_lo, 0x55555555\ns_mov_b32 exec_hi, 0x55555555')
    a(f'buffer_store_dwordx4 v[{R}:{R+3}], v{VE+3}, {WS}, s76 offen{XPOL}')
    a('s_mov_b64 exec, -1')
    a.st(tg + 'x3st')
    a(f's_lshr_b32 s74, {sTB}, 1\ns_lshl_b32 s74, s74, 9\ns_and_b32 s75, {sTB}, 1\ns_lshl_b32 s75, s75, 3\ns_add_u32 s75, s75, {sCG}\ns_lshl_b32 s75, s75, 2\ns_add_u32 s74, s74, s75\ns_add_u32 s79, s74, {FX3}')
    a(f's_lshl_b32 s80, {sC}, 2\ns_and_b32 s75, {sS}, 3\ns_add_u32 s80, s80, s75\ns_lshl_b32 s80, s80, 7\ns_add_u32 s80, s80, {FX3}')
    a(f'v_lshrrev_b32 v249, 4, v{L16}\nv_min_u32 v249, 15, v249\nv_lshlrev_b32 v249, 2, v249')
    def prefill():
        lab = a.newlab('nd')
        a(f's_cmp_eq_u32 s{SW}, 1\ns_cbranch_scc1 {lab}')
        sv = a.vm_issued
        for i in range(PREN//3):
            (sa, oa), (sb, ob), (sc, oc) = PRE1[3*i:3*i+3]
            a(f's_mov_b32 s74, {sa*4096}\ns_mov_b32 s75, {oa}\ns_cmp_eq_u32 s{SW}, 2\ns_cselect_b32 s74, {sb*4096}, s74\ns_cselect_b32 s75, {ob}, s75')
            a(f's_cmp_eq_u32 s{SW}, 3\ns_cselect_b32 s74, {sc*4096}, s74\ns_cselect_b32 s75, {oc}, s75\ns_add_u32 s75, s75, {sW1}\ns_mov_b32 m0, s74')
            for j in range(4): a(f'buffer_load_dwordx4 v{L16}, {WS}, s75 offen offset:{1024*j}{SH} lds')
        a.vm_issued = sv
        return lab
    if PRE_EARLY and not last:
        lab = prefill()
        lj = a.newlab('pj')
        a(f's_waitcnt vmcnt({4*(PREN//3)})\ns_branch {lj}')
        a.label(lab)
        a('s_waitcnt vmcnt(0)')
        a.label(lj)
        a('s_barrier')
    else:
        a('s_waitcnt vmcnt(0)\ns_barrier')
    a.reset_counts()
    a.flag_store('s79', 'v250', 'v251', rep=4, stride=128, pol=FPOL)
    a.st(tg + 'x3flag')
    if last: return
    if PRE_EARLY:
        a('s_waitcnt vmcnt(0)')
    else:
        lab = prefill()
        a('s_waitcnt vmcnt(0)')
        a.label(lab)
    a.poll_w0(1, 'v249', 's80', 250, alt=(100, 104, 108))
    a.reset_counts()
```
